```python
import torch

def _softmax(x, axis=-1):
    return torch.softmax(x, dim=axis)
def _gelu(x):
    return torch.nn.functional.gelu(x, approximate="tanh")
def _silu(x):
    return torch.nn.functional.silu(x)
def _sigmoid(x):
    return torch.sigmoid(x)
def _layernorm(x, axis=-1, eps=1e-5):
    m = x.mean(dim=axis, keepdim=True)
    v = x.var(dim=axis, keepdim=True, unbiased=False)
    return (x - m) / torch.sqrt(v + eps)
def _scatter_add(tgt, idx, src, axis=0):
    return tgt.clone().index_add_(axis, idx, src)
def _segment_sum(src, seg, n):
    out = torch.zeros((n,) + src.shape[1:], dtype=src.dtype)
    return out.index_add_(0, seg, src)
def _pad(x, pw):
    flat = tuple(v for pair in reversed(pw) for v in pair)
    return torch.nn.functional.pad(x, flat)

kernel_name = 'concat_heads__sliding_local_dilated__mha_block__prompt'

def setup_inputs():

    _w = (lambda a: (lambda t: t.to(torch.bfloat16) if t.is_floating_point() else t)(torch.as_tensor(a)))
    def _A_setup():
        B, S, D = 1, 2048, 448
        return {
            "x": _w((lambda *s: torch.randn(*s, dtype=torch.bfloat16) * 0.4)(B, S, D)),
            "wqkv": _w((lambda *s: torch.randn(*s, dtype=torch.bfloat16) * 0.8)(D, 3 * D)),
            "wo": _w((lambda *s: torch.randn(*s, dtype=torch.bfloat16) * 0.1)(D, D)),
        }
    _A_in = _A_setup()

    def _B_setup():
        B, S, D, H = 1, 2048, 448, 16
        return {
            "x": _w((lambda *s: torch.randn(*s, dtype=torch.bfloat16) * 0.2)(B, S, D)),
            "wqkv": _w((lambda *s: torch.randn(*s, dtype=torch.bfloat16) * 0.8)(D, 3 * D)),
            "wo": _w((lambda *s: torch.randn(*s, dtype=torch.bfloat16) * 0.2)(D, D)),
        }
    _B_in = _B_setup()

    return {
        "A_x": _A_in["x"],
        "A_wqkv": _A_in["wqkv"],
        "A_wo": _A_in["wo"],
        "B_x": _B_in["x"],
        "B_wqkv": _B_in["wqkv"],
        "B_wo": _B_in["wo"],
    }

def reference(A_x, A_wqkv, A_wo, B_x, B_wqkv, B_wo):
    def _A_ref(x, wqkv, wo):
        B, S, D = x.shape
        H = 16; Dh = D // H
        W, dil = 8, 2
        qkv = (lambda x, *d: x.permute(*d))((x @ wqkv).reshape(B, S, 3, H, Dh), 2, 0, 3, 1, 4)
        q, k, v = qkv[0], qkv[1], qkv[2]
        scale = Dh ** -0.5
        pos = torch.arange(S)
        off = torch.arange(W) * dil
        idx = pos[:, None] - off[None, :]
        mask = idx >= 0
        idx_c = torch.where(mask, idx, 0).reshape(-1)
        kg = k[:, :, idx_c, :].reshape(B, H, S, W, Dh)
        vg = v[:, :, idx_c, :].reshape(B, H, S, W, Dh)
        logits = torch.einsum("bhsd,bhswd->bhsw", q, kg) * scale
        logits = torch.where(mask[None, None, :, :], logits, -1e9)
        attn = _softmax(logits, axis=-1)
        o = torch.einsum("bhsw,bhswd->bhsd", attn, vg)
        return (lambda x, *d: x.permute(*d))(o, 0, 2, 1, 3).reshape(B, S, D) @ wo

    def _B_ref(x, wqkv, wo):
        B, S, D = x.shape
        H = 16
        Dh = D // H
        qkv = (lambda x, *d: x.permute(*d))((x @ wqkv).reshape(B, S, 3, H, Dh), 2, 0, 3, 1, 4)
        q, k, v = qkv[0], qkv[1], qkv[2]
        scores = torch.einsum("bhqd,bhkd->bhqk", q, k) * (Dh ** -0.5)
        p = _softmax(scores, axis=-1)
        o = torch.einsum("bhqk,bhkd->bhqd", p, v)
        return (lambda x, *d: x.permute(*d))(o, 0, 2, 1, 3).reshape(B, S, D) @ wo

    a = _A_ref(A_x, A_wqkv, A_wo)
    b = _B_ref(B_x, B_wqkv, B_wo)
    return torch.concatenate([a, b], axis=-1)
```

```python
import re, sys

def parse_regs(tok):
    tok = tok.strip()
    neg = tok.lstrip('-')
    m = re.fullmatch(r'(?:abs\()?([vsa])(\d+)\)?', neg) or re.fullmatch(r'\|([vsa])(\d+)\|', neg)
    if m: return {(m.group(1), int(m.group(2)))}
    m = re.fullmatch(r'([vsa])\[(\d+):(\d+)\]', neg)
    if m: return {(m.group(1), i) for i in range(int(m.group(2)), int(m.group(3)) + 1)}
    if tok in ('vcc', 'vcc_lo', 'vcc_hi'): return {('s', 'vcc')}
    if tok in ('exec', 'exec_lo', 'exec_hi'): return {('s', 'exec')}
    if tok == 'm0': return {('s', 'm0')}
    return set()

TRANS = ('v_exp_f32', 'v_log_f32', 'v_rcp_f32', 'v_rsq_f32', 'v_sqrt_f32', 'v_sin_f32', 'v_cos_f32', 'v_rcp_iflag_f32', 'v_exp_f16')

class Ins:
    def __init__(self, text, lineno):
        self.text = text; self.lineno = lineno
        t = text.split(';')[0].strip()
        parts = t.split(None, 1)
        self.op = parts[0]
        rest = parts[1] if len(parts) > 1 else ''
        rest = re.sub(r'\s+\w+:\[[^\]]*\]', '', rest)
        ops = [o.strip() for o in rest.split(',')] if rest else []
        self.mods = ''
        if ops:
            last = ops[-1].split()
            if len(last) > 1 and not ops[-1].startswith('hwreg'):
                ops[-1] = last[0]; self.mods = ' '.join(last[1:])
        self.ops = ops
        op = self.op
        for suf in ('_e32', '_e64', '_dpp', '_sdwa'):
            if op.endswith(suf): op = op[:-len(suf)]
        self.base = op
        self.w = set(); self.r = set()
        self.mfma = op.startswith('v_mfma') or op.startswith('v_smfmac')
        self.valu = op.startswith('v_') and not self.mfma
        self.salu = op.startswith('s_')
        self.ds = op.startswith('ds_')
        self.vmem = op.startswith('buffer_') or op.startswith('global_')
        self.trans = op in TRANS
        self.dpp = 'row_' in self.mods or 'quad_perm' in self.mods or self.op.endswith('_dpp')
        R = [parse_regs(o) for o in ops]
        self.A = self.B = self.C = set()
        if self.mfma:
            self.w = R[0]; self.A = R[1]; self.B = R[2]
            if op.startswith('v_smfmac'):
                self.C = R[0]; self.B = R[2] | R[3]
            else:
                self.C = R[3]
            self.r = self.A | self.B | self.C
            self.passes = 8 if '32x32' in op else 4
        elif self.valu:
            if op.startswith('v_cmp'):
                self.w = R[0]; self.r = set().union(*R[1:])
            elif 'permlane' in op and 'swap' in op:
                self.w = R[0] | R[1]; self.r = R[0] | R[1]
            elif op in ('v_add_co_u32', 'v_sub_co_u32', 'v_addc_co_u32', 'v_subb_co_u32'):
                self.w = R[0] | R[1]; self.r = set().union(*R[2:])
            elif op == 'v_nop':
                pass
            else:
                self.w = R[0]; self.r = set().union(*R[1:]) if len(R) > 1 else set()
                if op in ('v_fmac_f32', 'v_writelane_b32', 'v_dot2c_f32_bf16') or self.dpp: self.r |= R[0]
        elif self.ds:
            if op.startswith('ds_read') or op.startswith('ds_bpermute') or op.startswith('ds_swizzle'):
                self.w = R[0]; self.r = set().union(*R[1:])
            else:
                self.r = set().union(*R)
        elif self.vmem:
            self.lds = ' lds' in (' ' + self.mods)
            if op in ('buffer_wbl2', 'buffer_inv'):
                pass
            elif 'load' in op and not self.lds:
                self.w = R[0]; self.r = set().union(*R[1:])
            else:
                self.r = set().union(*R)
                if 'atomic' in op and 'sc0' in self.mods: self.w = R[0]
            self.data = R[0] if ('store' in op) else set()
        elif self.salu:
            if op.startswith('s_cmp') or op.startswith('s_cbranch') or op in ('s_branch', 's_waitcnt', 's_nop', 's_barrier', 's_endpgm', 's_setprio', 's_sleep'):
                self.r = set().union(*R) if R else set()
            elif 'saveexec' in op:
                self.w = R[0] | {('s', 'exec')}; self.r = R[1]
            else:
                self.w = R[0] if R else set(); self.r = set().union(*R[1:]) if len(R) > 1 else set()
    def states(self):
        if self.op == 's_nop': return int(self.ops[0], 0) + 1
        return 1

def lint(text):
    ins = []; labels = {}
    intext = True
    for ln, line in enumerate(text.split('\n'), 1):
        t = line.split(';')[0].strip()
        if not t: continue
        if t.startswith('.section'): intext = False
        if t.startswith('.text'): intext = True
        if t.startswith('.') and not t.endswith(':'): continue
        if not intext: continue
        if t.endswith(':'):
            labels[t[:-1]] = len(ins); continue
        ins.append(Ins(t, ln))
    def succ(i):
        I = ins[i]
        if I.op == 's_endpgm': return []
        if I.op == 's_branch': return [labels[I.ops[0]]]
        if I.op.startswith('s_cbranch'): return [i + 1, labels[I.ops[0]]]
        return [i + 1] if i + 1 < len(ins) else []
    errs = set()
    def need(P, Cn):
        n = 0; why = ''
        def up(k, wy):
            nonlocal n, why
            if k > n: n = k; why = wy
        vw = {x for x in P.w if x[0] in 'va'}
        sw = {x for x in P.w if x[0] == 's'}
        if P.valu:
            if Cn.mfma and vw & Cn.r: up(2, 'valu->mfma')
            if P.trans and Cn.valu and not Cn.trans and vw & (Cn.r): up(1, 'trans->valu')
            if P.trans and (Cn.vmem or Cn.ds) and vw & Cn.r: up(1, 'trans->mem')
            if Cn.base in ('v_readfirstlane_b32', 'v_readlane_b32') and vw & Cn.r: up(1, 'valu->readlane')
            if 'permlane' in Cn.base and vw & Cn.r: up(2, 'valu->permlane')
            if Cn.dpp and vw & Cn.r: up(2, 'valu->dpp')
            if sw:
                if Cn.valu and sw & Cn.r: up(2, 'valu sgpr->valu')
                if Cn.vmem and sw & Cn.r: up(5, 'valu sgpr->vmem')
                if Cn.salu and sw & Cn.r: up(1, 'valu sgpr->salu(pad)')
                if Cn.op.startswith('s_cbranch_vcc') and ('s', 'vcc') in sw: up(1, 'vcc->branch(pad)')
        if P.mfma:
            big = 12 if P.passes == 8 else 8
            if Cn.mfma:
                if P.w & (Cn.A | Cn.B): up(big, 'mfma D->A/B')
                if P.w & Cn.C and not (P.w == Cn.C and P.passes == Cn.passes): up(big - 2, 'mfma D->C partial')
                if P.w & Cn.w and not (P.w & Cn.C): up(0, '')
            elif Cn.valu:
                if P.w & (Cn.r | Cn.w): up(big, 'mfma D->valu')
                if P.C & Cn.w: up(7 if P.passes == 8 else 3, 'mfma C WAR')
            elif Cn.vmem or Cn.ds:
                if P.w & (Cn.r | Cn.w): up(big, 'mfma D->mem')
        if P.salu and ('s', 'm0') in P.w and Cn.vmem and getattr(Cn, 'lds', False): up(1, 'm0->dma')
        if P.vmem and ('x4' in P.op or 'x3' in P.op) and getattr(P, 'data', None):
            if P.data & Cn.w: up(2 if Cn.valu else 1, 'store data WAR')
        return n, why
    for i, P in enumerate(ins):
        if not (P.valu or P.mfma or P.vmem or (P.salu and ('s', 'm0') in P.w)): continue
        maxd = 20 if P.mfma else 5
        stack = [(j, 0) for j in succ(i)]
        seen = {}
        while stack:
            j, d = stack.pop()
            if j >= len(ins) or d >= maxd: continue
            if seen.get(j, 99) <= d: continue
            seen[j] = d
            n, why = need(P, ins[j])
            if n > d: errs.add((P.lineno, ins[j].lineno, why, n, d, P.text, ins[j].text))
            for k in succ(j): stack.append((k, d + ins[j].states()))
    return sorted(errs)

if __name__ == '__main__':
    e = lint(open(sys.argv[1]).read())
    for x in e: print(x)
    print(len(e), 'hazards')
```

```python
import sys, math
from lint import lint

NAME = "concat_heads__sliding_local_dilated__mha_block__prompt"
SEC = 1835008
QB, KB, VB, QA, KA, VA = [i * SEC for i in range(6)]
OA = 6 * SEC
OB = OA + 0x200000
WS_SIZE = OB + 0x200000 + 0x10000
QSCALE = (28 ** -0.5) * math.log2(math.e)
import struct
def f2u(x): return struct.unpack('<I', struct.pack('<f', x))[0]

class Asm:
    def __init__(self): self.l = []
    def __call__(self, s):
        for x in s.strip('\n').split('\n'):
            x = x.strip()
            if not x: continue
            self.l.append(x if x.endswith(':') else '    ' + x)
    def text(self): return '\n'.join(self.l) + '\n'

def vr(a, n): return "v[%d:%d]" % (a, a + n - 1)
def sr(a, n): return "s[%d:%d]" % (a, a + n - 1)

S_WAVE = 3
SRD_XB, SRD_WB, SRD_XA, SRD_WA, SRD_WS, SRD_OUT, SRD_OA, SRD_OB = 4, 8, 12, 16, 20, 24, 28, 32
P = 64

def srd(a, d, ptr, size):
    a(f"s_mov_b32 s{d}, s{ptr}\ns_mov_b32 s{d+1}, s{ptr+1}\ns_mov_b32 s{d+2}, {size}\ns_mov_b32 s{d+3}, 0x20000")

def prologue(a, tag):
    a(f"""
    s_cmp_ge_u32 s2, 256
    s_cbranch_scc1 {tag}_exit
    s_load_dwordx16 s[64:79], s[0:1], 0
    s_load_dwordx2 s[80:81], s[0:1], 64
    v_lshrrev_b32 v1, 6, v0
    v_and_b32 v0, 63, v0
    v_readfirstlane_b32 s3, v1
    """)

GNS = 4
GSLOT = 28672
def gemm_phase(a, tag):
    a(f"""
    s_and_b32 s36, s2, 7
    s_lshr_b32 s37, s2, 3
    s_cmp_ge_u32 s37, 31
    s_cbranch_scc1 {tag}_gdone
    s_mul_i32 s36, s36, 31
    s_add_u32 s41, s36, s37
    s_cmp_ge_u32 s41, 242
    s_cbranch_scc1 {tag}_gdone
    s_mul_i32 s36, s41, 171
    s_lshr_b32 s36, s36, 10
    s_mul_i32 s37, s36, 6
    s_sub_u32 s37, s41, s37
    s_sub_u32 s42, s41, 132
    s_mul_i32 s43, s42, 205
    s_lshr_b32 s43, s43, 10
    s_mul_i32 s44, s43, 5
    s_sub_u32 s44, s42, s44
    s_add_u32 s44, s44, 6
    s_cmp_ge_u32 s41, 132
    s_cselect_b32 s36, s43, s36
    s_cselect_b32 s37, s44, s37
    s_mul_i32 s38, s36, 96
    s_min_u32 s38, s38, 1952
    s_lshl_b32 s39, s37, 2
    s_min_u32 s39, s39, 38
    s_add_u32 s40, s36, s37
    s_mul_i32 s41, s40, 37
    s_lshr_b32 s41, s41, 8
    s_mul_i32 s41, s41, 7
    s_sub_u32 s40, s40, s41
    s_cmp_ge_u32 s3, 4
    s_cbranch_scc0 {tag}_gcomp
    """)
    a(f"""
    s_sub_u32 s41, s3, 4
    v_lshrrev_b32 v1, 3, v0
    v_and_b32 v2, 7, v0
    v_lshrrev_b32 v3, 1, v1
    s_and_b32 s42, s41, 1
    s_lshl_b32 s42, s42, 2
    v_add_u32 v4, s42, v3
    v_xor_b32 v4, v2, v4
    v_lshlrev_b32 v4, 4, v4
    v_mul_u32_u24 v5, 896, v1
    v_add_u32 v8, v4, v5
    v_add_u32 v9, 28672, v8
    v_add_u32 v10, 57344, v8
    v_and_b32 v3, 1, v3
    v_lshlrev_b32 v3, 2, v3
    v_xor_b32 v4, v2, v3
    v_lshlrev_b32 v4, 4, v4
    v_mul_u32_u24 v5, 2688, v1
    v_add_u32 v11, v4, v5
    v_add_u32 v12, {32*2688}, v11
    v_add_u32 v13, 128, v11
    v_add_u32 v14, 128, v12
    s_lshl_b32 s43, s41, 3
    s_add_u32 s44, s38, s43
    s_mul_i32 s44, s44, 896
    s_mul_i32 s45, s43, 2688
    s_lshl_b32 s46, s39, 6
    s_add_u32 s45, s45, s46
    s_lshl_b32 s41, s41, 10
    s_waitcnt lgkmcnt(0)
    """)
    srd(a, SRD_XB, P + 6, 1835008); srd(a, SRD_WB, P + 8, 448 * 2688)
    srd(a, SRD_XA, P + 0, 1835008); srd(a, SRD_WA, P + 2, 448 * 2688)
    def issue(g):
        X, W = (SRD_XB, SRD_WB) if g < 7 else (SRD_XA, SRD_WA)
        slot = (g % GNS) * GSLOT
        a(f"""
        s_lshl_b32 s46, s40, 7
        s_add_u32 s46, s46, s44
        s_mul_i32 s47, s40, {64*2688}
        s_add_u32 s47, s47, s45
        """)
        order = [('x', 0), ('w', 0), ('w', 2), ('x', 1), ('w', 1), ('w', 3), ('x', 2)]
        for kind, u in order:
            if kind == 'x':
                a(f"s_add_u32 m0, s41, {slot + u * 4096}\ns_nop 0\nbuffer_load_dwordx4 v{8+u}, {sr(X,4)}, s46 offen lds")
            else:
                j, v = u >> 1, u & 1
                a(f"s_add_u32 m0, s41, {slot + 12288 + j * 8192 + v * 4096}\ns_nop 0\nbuffer_load_dwordx4 v{11 + 2*j + v}, {sr(W,4)}, s47 offen lds")
        a("""
        s_add_u32 s40, s40, 1
        s_cmp_ge_u32 s40, 7
        s_cselect_b32 s40, 0, s40
        """)
    for g in range(GNS - 1): issue(g)
    for c in range(14):
        newer = min(13, c + GNS - 2) - c
        a(f"s_waitcnt vmcnt({7 * newer})\ns_barrier")
        if c + GNS - 1 < 14: issue(c + GNS - 1)
    a(f"s_branch {tag}_gdone")
    ACC = 64
    XA = 8
    FR = 24
    a(f"""
    {tag}_gcomp:
    v_and_b32 v1, 31, v0
    v_lshrrev_b32 v2, 5, v0
    v_lshrrev_b32 v3, 1, v1
    v_and_b32 v3, 7, v3
    v_xor_b32 v3, v3, v2
    v_lshlrev_b32 v3, 4, v3
    v_lshl_add_u32 v8, v1, 7, v3
    v_xor_b32 v9, 32, v8
    v_xor_b32 v10, 64, v8
    v_xor_b32 v11, 96, v8
    """)
    a(f"""
    v_bfe_u32 v3, v0, 2, 2
    v_lshl_add_u32 v4, v2, 3, v3
    v_lshlrev_b32 v4, 7, v4
    v_lshrrev_b32 v3, 1, v3
    s_and_b32 s41, s3, 1
    v_xor_b32 v3, s41, v3
    v_lshl_add_u32 v4, v3, 6, v4
    v_bfe_u32 v3, v0, 4, 1
    v_lshl_add_u32 v4, v3, 5, v4
    v_and_b32 v3, 1, v0
    v_lshl_add_u32 v4, v3, 4, v4
    v_bfe_u32 v3, v0, 1, 1
    v_lshl_add_u32 v4, v3, 3, v4
    s_lshr_b32 s41, s3, 1
    s_lshl_b32 s41, s41, 13
    s_add_u32 s41, s41, 12288
    v_add_u32 v12, s41, v4
    s_add_u32 s42, s39, s3
    s_mov_b32 s43, 0
    s_mov_b32 s48, 0
    s_waitcnt lgkmcnt(0)
    """)
    srd(a, SRD_WS, P + 16, WS_SIZE)
    a(f"""
    s_cmp_eq_u32 s36, 21
    s_cselect_b32 s49, 2, 0
    s_cmp_eq_u32 s37, 10
    s_cselect_b32 s50, 2, 0
    s_cmp_lt_u32 s3, s50
    s_cselect_b32 s49, 3, s49
    s_lshr_b32 s51, s38, 5
    s_cmp_ge_u32 s42, 28
    s_cbranch_scc1 {tag}_gV
    """)
    def reads(ks, b):
        f = FR + 16 * b
        for m in range(3):
            a(f"ds_read_b128 {vr(f + 4*m, 4)}, v{16+ks} offset:{m*4096}")
        a(f"ds_read_b64_tr_b16 {vr(f+12, 2)}, v20 offset:{ks*2048}")
        a(f"ds_read_b64_tr_b16 {vr(f+14, 2)}, v20 offset:{ks*2048+512}")
    for var in ("QK", "V"):
        t = f"{tag}_g{var}"
        a(f"{t}:")
        if var == "QK":
            a(f"""
            v_lshlrev_b32 v13, 4, v0
            s_cmp_ge_u32 s42, 14
            s_cselect_b32 s52, {SEC - 14*2048}, 0
            s_cselect_b32 s53, 1.0, {hex(f2u(QSCALE))}
            s_lshl_b32 s54, s42, 11
            s_add_u32 s52, s52, s54
            s_mul_i32 s54, s51, 28672
            s_add_u32 s52, s52, s54
            """)
        else:
            a(f"""
            v_and_b32 v3, 19, v0
            v_bfe_u32 v4, v0, 2, 1
            v_lshl_add_u32 v3, v4, 3, v3
            v_bfe_u32 v4, v0, 3, 1
            v_lshl_add_u32 v3, v4, 2, v3
            s_sub_u32 s54, s42, 28
            s_lshl_b32 s54, s54, 5
            v_add_u32 v3, s54, v3
            v_mul_u32_u24 v4, 2341, v3
            v_lshrrev_b32 v4, 16, v4
            v_mul_u32_u24 v5, 28, v4
            v_sub_u32 v3, v3, v5
            v_mul_u32_u24 v4, {64*1792}, v4
            v_lshl_add_u32 v13, v3, 4, v4
            v_mul_u32_u24 v3, 448, v2
            v_add_u32 v13, v13, v3
            s_mul_i32 s52, s51, 1792
            s_add_u32 s52, s52, {2*SEC}
            """)
        a(f"{t}_pass:")
        for r in range(48): a(f"v_mov_b32 v{ACC+r}, 0")
        a(f"s_mov_b32 s55, 7\n{t}_chunk:")
        for i in range(5): a(f"v_add_u32 v{16+i}, s43, v{8+i}")
        a(f"""
        s_add_u32 s43, s43, {GSLOT}
        s_cmp_ge_u32 s43, {GSLOT*GNS}
        s_cselect_b32 s43, 0, s43
        s_barrier
        """)
        reads(0, 0)
        for ks in range(4):
            if ks < 3:
                reads(ks + 1, (ks + 1) & 1); a("s_waitcnt lgkmcnt(5)")
            else:
                a("s_waitcnt lgkmcnt(0)")
            f = FR + 16 * (ks & 1)
            for m in range(3):
                x, w, d = vr(f + 4*m, 4), vr(f + 12, 4), vr(ACC + 16*m, 16)
                if var == "QK": a(f"v_mfma_f32_32x32x16_bf16 {d}, {w}, {x}, {d}")
                else: a(f"v_mfma_f32_32x32x16_bf16 {d}, {x}, {w}, {d}")
        a(f"""
        s_sub_u32 s55, s55, 1
        s_cmp_lg_u32 s55, 0
        s_cbranch_scc1 {t}_chunk
        s_add_u32 s54, s52, s48
        s_nop 7
        """)
        for m in range(3):
            a(f"s_cmp_gt_u32 s49, {m}\ns_cbranch_scc1 {t}_skip{m}")
            d = ACC + 16 * m
            o = 24 + 8 * m
            if var == "QK":
                for r in range(16): a(f"v_mul_f32 v{d+r}, s53, v{d+r}")
            for r in range(8): a(f"v_cvt_pk_bf16_f32 v{o+r}, v{d+2*r}, v{d+2*r+1}")
            so = 1024 if var == "QK" else 896
            a(f"buffer_store_dwordx4 {vr(o,4)}, v13, {sr(SRD_WS,4)}, s54 offen")
            a(f"buffer_store_dwordx4 {vr(o+4,4)}, v13, {sr(SRD_WS,4)}, s54 offen offset:{so}")
            a(f"{t}_skip{m}:")
            a(f"s_add_u32 s54, s54, {28672 if var == 'QK' else 1792}")
        a(f"""
        s_waitcnt vmcnt(0)
        s_cmp_lg_u32 s48, 0
        s_mov_b32 s48, {3*SEC}
        s_cbranch_scc0 {t}_pass
        s_branch {tag}_gdone
        """)
    a(f"{tag}_gdone:")

ANS = 6
S0, S1, O_, CM, QF, KF, V0, V1, IDX, AD0, AD1, VA_, VB_ = 16, 32, 48, 64, 80, 88, 96, 100, 104, 105, 106, 107, 108
ONES = 0x3F803F80
def attn_common(a):
    a(f"""
    s_and_b32 s36, s2, 7
    s_lshl_b32 s36, s36, 1
    s_bfe_u32 s38, s2, 0x10003
    s_add_u32 s36, s36, s38
    s_lshr_b32 s37, s2, 4
    s_mul_i32 s39, s36, 7
    s_lshr_b32 s39, s39, 1
    s_lshl_b32 s39, s39, 9
    v_and_b32 v1, 31, v0
    v_lshrrev_b32 v2, 5, v0
    v_and_b32 v3, 51, v0
    v_bfe_u32 v4, v0, 2, 1
    v_lshl_add_u32 v3, v4, 3, v3
    v_bfe_u32 v4, v0, 3, 1
    v_lshl_add_u32 v3, v4, 2, v3
    v_lshlrev_b32 v5, 4, v3
    v_lshlrev_b32 v6, 4, v0
    v_mov_b32 v{IDX}, 0xdddddddd
    """)
    a(f"""
    s_cmp_eq_u32 s38, 0
    s_cselect_b32 s56, 0x0fffffff, 0xfffffff0
    s_mov_b32 s57, s56
    s_cselect_b32 s58, 0, -1
    s_cselect_b32 s59, -1, 0
    """)

def zero_qpad(a, q):
    lab = zero_qpad.n = getattr(zero_qpad, 'n', 0) + 1
    a(f"""
    s_mov_b64 exec, s[58:59]
    s_cmp_eq_u32 s38, 0
    s_cbranch_scc0 zq_odd{lab}
    v_mov_b32 v{q+6}, 0
    v_mov_b32 v{q+7}, 0
    s_branch zq_done{lab}
    zq_odd{lab}:
    v_mov_b32 v{q}, 0
    v_mov_b32 v{q+1}, 0
    zq_done{lab}:
    s_mov_b64 exec, -1
    """)

def finish_O(a, o, tmp, soff_sgpr, tag):
    a(f"""
    s_cmp_eq_u32 s38, 0
    s_cbranch_scc0 {tag}_lodd
    v_mov_b32 v{tmp}, v{o+12}
    v_mov_b32 v{tmp+1}, v{o+12}
    s_nop 1
    v_permlane32_swap_b32 v{tmp}, v{tmp+1}
    v_rcp_f32 v{tmp}, v{tmp+1}
    s_mov_b64 exec, s[58:59]
    v_mov_b32 v{o+12}, 0
    v_mov_b32 v{o+13}, 0
    v_mov_b32 v{o+14}, 0
    v_mov_b32 v{o+15}, 0
    s_branch {tag}_ldone
    {tag}_lodd:
    v_mov_b32 v{tmp}, v{o}
    v_mov_b32 v{tmp+1}, v{o}
    s_nop 1
    v_permlane32_swap_b32 v{tmp}, v{tmp+1}
    v_rcp_f32 v{tmp}, v{tmp}
    s_mov_b64 exec, s[58:59]
    v_mov_b32 v{o}, 0
    v_mov_b32 v{o+1}, 0
    v_mov_b32 v{o+2}, 0
    v_mov_b32 v{o+3}, 0
    {tag}_ldone:
    s_mov_b64 exec, -1
    """)
    for r in range(16): a(f"v_mul_f32 v{o+r}, v{tmp}, v{o+r}")
    for r in range(8): a(f"v_cvt_pk_bf16_f32 v{tmp+4+r}, v{o+2*r}, v{o+2*r+1}")
    a(f"buffer_store_dwordx4 {vr(tmp+4,4)}, v6, {sr(SRD_WS,4)}, s{soff_sgpr} offen")
    a(f"buffer_store_dwordx4 {vr(tmp+8,4)}, v6, {sr(SRD_WS,4)}, s{soff_sgpr} offen offset:1024")

def attn_phase(a, tag):
    attn_common(a)
    a("s_waitcnt lgkmcnt(0)")
    srd(a, SRD_WS, P + 16, WS_SIZE)
    a(f"""
    s_and_b32 s40, s3, 3
    s_lshl_b32 s41, s37, 2
    s_add_u32 s40, s40, s41
    s_mul_i32 s41, s40, 28672
    s_add_u32 s41, s41, s39
    buffer_load_dwordx4 {vr(QF,4)}, v6, {sr(SRD_WS,4)}, s41 offen
    buffer_load_dwordx4 {vr(QF+4,4)}, v6, {sr(SRD_WS,4)}, s41 offen offset:1024
    """)
    a(f"""
    s_lshr_b32 s47, s3, 1
    s_lshl_b32 s46, s47, 12
    s_and_b32 s48, s3, 1
    s_cmp_eq_u32 s48, 0
    s_cbranch_scc0 {tag}_dv
    s_mul_i32 s42, s47, 28672
    s_add_u32 s42, s42, s39
    s_add_u32 s42, s42, {KB}
    s_mov_b32 s43, {4*28672}
    s_mov_b64 s[60:61], -1
    v_mov_b32 v{VA_}, v6
    v_mov_b32 v{VB_}, v6
    s_branch {tag}_dd
    {tag}_dv:
    s_lshl_b32 s42, s36, 6
    s_add_u32 s42, s42, s47
    s_mul_i32 s42, s42, 1792
    s_add_u32 s42, s42, {VB - 256}
    s_mov_b32 s43, {4*1792}
    s_add_u32 s46, s46, 2048
    s_mov_b64 s[60:61], s[56:57]
    v_mul_u32_u24 v7, 448, v2
    v_lshl_add_u32 v7, v1, 4, v7
    s_lshl_b32 s48, s38, 6
    s_sub_u32 s48, 256, s48
    v_add_u32 v{VA_}, s48, v7
    v_subrev_u32 v{VB_}, 128, v{VA_}
    v_mov_b32 v8, {hex(ONES)}
    v_mov_b32 v9, v8
    v_mov_b32 v10, v8
    v_mov_b32 v11, v8
    v_add_u32 v7, s46, v6
    v_add_u32 v12, 0x10000, v7
    s_not_b64 exec, s[56:57]
    """)
    for sl in range(ANS):
        for s in range(2):
            off = sl * 16384 + s * 1024
            a(f"ds_write_b128 v{7 if off < 65536 else 12}, v[8:11] offset:{off & 0xffff}")
    a(f"""
    s_mov_b64 exec, -1
    {tag}_dd:
    s_lshl_b32 s45, s43, 4
    s_add_u32 s44, s42, s45
    s_mul_i32 s47, s43, s37
    s_add_u32 s42, s42, s47
    """)
    def dma(st):
        a(f"""
        s_add_u32 m0, s46, {(st % ANS) * 16384}
        s_mov_b64 exec, s[60:61]
        buffer_load_dwordx4 v{VA_}, {sr(SRD_WS,4)}, s42 offen lds
        buffer_load_dwordx4 v{VB_}, {sr(SRD_WS,4)}, s42 offen offset:1024 lds
        s_mov_b64 exec, -1
        s_add_u32 s42, s42, s43
        s_cmp_ge_u32 s42, s44
        s_cselect_b32 s47, s45, 0
        s_sub_u32 s42, s42, s47
        """)
    for st in range(ANS - 2): dma(st)
    a(f"""
    s_lshr_b32 s47, s3, 2
    s_lshl_b32 s47, s47, 13
    v_add_u32 v{AD0}, s47, v5
    v_add_u32 v{AD1}, 0x10000, v{AD0}
    """)
    for r in range(16): a(f"v_mov_b32 v{O_+r}, 0")
    for r in range(8): a(f"v_mov_b32 v{S1+8+r}, 0")
    for r in range(4): a(f"v_mov_b32 v{V1+r}, 0")
    def rd(dst, n, frag):
        st, u = n >> 1, n & 1
        off = (st % ANS) * 16384 + u * 4096 + frag * 1024
        a(f"ds_read_b128 {vr(dst,4)}, v{AD0 if off < 65536 else AD1} offset:{off & 0xffff}")
    def outstanding_after(j):
        last = min(15, max(ANS - 3, j - 1 + ANS - 2))
        return max(0, last - j)
    a(f"s_waitcnt vmcnt({2*outstanding_after(0)}) lgkmcnt(0)\ns_barrier")
    dma(ANS - 2)
    a(f"""
    ds_read_b128 {vr(S1,4)}, v5
    ds_read_b128 {vr(S1+4,4)}, v5 offset:1024
    """)
    rd(KF, 0, 0); rd(KF + 4, 0, 1); rd(V0, 0, 2)
    zero_qpad(a, QF)
    a(f"""
    s_waitcnt lgkmcnt(3)
    v_mfma_f32_32x32x16_bf16 {vr(S0,16)}, {vr(S1,4)}, {vr(QF,4)}, 0
    v_mfma_f32_32x32x16_bf16 {vr(S0,16)}, {vr(S1+4,4)}, {vr(QF+4,4)}, {vr(S0,16)}
    s_nop 11
    v_max3_f32 v7, v{S0}, v{S0+1}, v{S0+2}
    """)
    for r in range(3, 15, 2): a(f"v_max3_f32 v7, v7, v{S0+r}, v{S0+r+1}")
    a(f"""
    v_max_f32 v7, v7, v{S0+15}
    v_mov_b32 v8, v7
    s_nop 1
    v_permlane32_swap_b32 v7, v8
    v_max_f32 v7, v7, v8
    v_sub_f32 v{CM}, 0, v7
    """)
    for r in range(1, 16): a(f"v_mov_b32 v{CM+r}, v{CM}")
    a(f"""
    s_waitcnt lgkmcnt(1)
    s_nop 0
    v_mfma_f32_32x32x16_bf16 {vr(S0,16)}, {vr(KF,4)}, {vr(QF,4)}, {vr(CM,16)}
    v_mfma_f32_32x32x16_bf16 {vr(S0,16)}, {vr(KF+4,4)}, {vr(QF+4,4)}, {vr(S0,16)}
    """)
    rd(KF, 1, 0); rd(KF + 4, 1, 1)
    a("s_nop 9")
    for n in range(32):
        Sc = S0 if n % 2 == 0 else S1
        Sn = S1 if n % 2 == 0 else S0
        def ex(lo, hi):
            for r in range(lo, hi): a(f"v_exp_f32 v{Sc+r}, v{Sc+r}")
        last = n == 31
        ex(0, 2)
        if n > 0: a(f"s_waitcnt lgkmcnt({1 if last else 3})")
        a(f"v_smfmac_f32_32x32x32_bf16 {vr(O_,16)}, {vr(V1,4)}, {vr(Sn+8,8)}, v{IDX}")
        rd(V1, n, 3)
        ex(2, 5)
        if not last:
            a(f"s_waitcnt lgkmcnt({2 if n > 0 else 1})")
            a(f"v_mfma_f32_32x32x16_bf16 {vr(Sn,16)}, {vr(KF,4)}, {vr(QF,4)}, {vr(CM,16)}")
        ex(5, 8)
        if not last:
            a(f"v_mfma_f32_32x32x16_bf16 {vr(Sn,16)}, {vr(KF+4,4)}, {vr(QF+4,4)}, {vr(Sn,16)}")
        nk = 0
        if n + 2 < 32:
            if n % 2 == 0:
                j = n // 2 + 1
                a(f"s_waitcnt vmcnt({2*outstanding_after(j)})\ns_barrier")
                if j + ANS - 2 < 16: dma(j + ANS - 2)
            rd(KF, n + 2, 0); rd(KF + 4, n + 2, 1); nk = 2
        ex(8, 12)
        a(f"s_waitcnt lgkmcnt({1 + nk})")
        a(f"v_smfmac_f32_32x32x32_bf16 {vr(O_,16)}, {vr(V0,4)}, {vr(Sc,8)}, v{IDX}")
        if not last: rd(V0, n + 1, 2)
        if n == 30: a("s_nop 1")
        ex(12, 16)
        if n + 2 >= 32 and not last:
            pass
    a(f"""
    s_waitcnt lgkmcnt(0)
    s_nop 0
    v_smfmac_f32_32x32x32_bf16 {vr(O_,16)}, {vr(V1,4)}, {vr(S1+8,8)}, v{IDX}
    s_barrier
    s_and_b32 s47, s3, 3
    s_lshl_b32 s47, s47, 12
    v_add_u32 v7, s47, v6
    s_cmp_ge_u32 s3, 4
    s_nop 7
    s_cbranch_scc0 {tag}_g0
    """)
    for i in range(4): a(f"ds_write_b128 v7, {vr(O_+4*i,4)} offset:{i*1024}")
    a("s_waitcnt lgkmcnt(0)\ns_barrier")
    attn_A(a, tag)
    a(f"s_branch {tag}_adone\n{tag}_g0:\ns_barrier")
    for i in range(4): a(f"ds_read_b128 {vr(S0+4*i,4)}, v7 offset:{i*1024}")
    a(f"""
    s_lshl_b32 s41, s40, 4
    s_add_u32 s41, s41, s36
    s_lshl_b32 s41, s41, 11
    s_add_u32 s41, s41, {OB}
    s_waitcnt lgkmcnt(0)
    """)
    for r in range(16): a(f"v_add_f32 v{O_+r}, v{O_+r}, v{S0+r}")
    finish_O(a, O_, S1, 41, tag + "_fb")
    a(f"{tag}_adone:")

def attn_A(a, tag):
    Q, KP, KC, VP, VC, SP, SC, OO, T = 80, 88, 96, 112, 116, 16, 32, 48, 64
    a(f"""
    s_mul_i32 s41, s40, 28672
    s_add_u32 s41, s41, s39
    s_add_u32 s42, s41, {QA}
    s_add_u32 s43, s41, {KA}
    s_cmp_eq_u32 s40, 0
    s_cselect_b32 s44, 0, 28672
    s_cselect_b32 s45, 0, 1792
    s_sub_u32 s44, s43, s44
    buffer_load_dwordx4 {vr(Q,4)}, v6, {sr(SRD_WS,4)}, s42 offen
    buffer_load_dwordx4 {vr(Q+4,4)}, v6, {sr(SRD_WS,4)}, s42 offen offset:1024
    buffer_load_dwordx4 {vr(KP,4)}, v5, {sr(SRD_WS,4)}, s44 offen
    buffer_load_dwordx4 {vr(KP+4,4)}, v5, {sr(SRD_WS,4)}, s44 offen offset:1024
    buffer_load_dwordx4 {vr(KC,4)}, v5, {sr(SRD_WS,4)}, s43 offen
    buffer_load_dwordx4 {vr(KC+4,4)}, v5, {sr(SRD_WS,4)}, s43 offen offset:1024
    s_lshl_b32 s42, s36, 6
    s_add_u32 s42, s42, s40
    s_mul_i32 s42, s42, 1792
    s_add_u32 s42, s42, {VA - 256}
    s_sub_u32 s45, s42, s45
    v_and_b32 v7, 31, v3
    s_lshl_b32 s48, s38, 2
    v_subrev_u32 v8, s48, v7
    v_cmp_gt_u32 vcc, 28, v8
    v_mul_u32_u24 v9, 448, v2
    v_lshl_add_u32 v8, v8, 4, v9
    v_add_u32 v8, 256, v8
    """)
    for r in range(12): a(f"v_mov_b32 v{VP+r}, {hex(ONES)}")
    a(f"""
    s_mov_b64 exec, vcc
    buffer_load_dwordx4 {vr(VP,4)}, v8, {sr(SRD_WS,4)}, s45 offen offset:896
    buffer_load_dwordx4 {vr(VC,4)}, v8, {sr(SRD_WS,4)}, s42 offen
    buffer_load_dwordx4 {vr(VC+4,4)}, v8, {sr(SRD_WS,4)}, s42 offen offset:896
    s_mov_b64 exec, -1
    """)
    a(f"""
    v_lshlrev_b32 v9, 3, v2
    v_sub_u32 v9, v1, v9
    v_add_u32 v9, 18, v9
    v_mov_b32 v10, 0x5555
    v_mov_b32 v11, 0
    v_lshlrev_b64 v[10:11], v9, v[10:11]
    s_cmp_eq_u32 s40, 0
    s_cselect_b32 s48, 0, -1
    v_and_b32 v10, s48, v10
    v_not_b32 v10, v10
    v_not_b32 v11, v11
    s_mov_b32 s48, 0xf149f2ca
    """)
    for r in range(16):
        g, i = r >> 2, r & 3
        c = 16 * (g >> 1) + 4 * (g & 1) + i
        a(f"v_bfe_i32 v{SC+r}, v11, {c}, 1\nv_and_b32 v{SC+r}, s48, v{SC+r}")
        if r >= 8: a(f"v_bfe_i32 v{SP+r}, v10, {c}, 1\nv_and_b32 v{SP+r}, s48, v{SP+r}")
        else: a(f"v_mov_b32 v{SP+r}, 0")
        a(f"v_mov_b32 v{OO+r}, 0")
    a("s_waitcnt vmcnt(7)")
    zero_qpad(a, Q)
    a(f"""
    s_waitcnt vmcnt(3)
    v_mfma_f32_32x32x16_bf16 {vr(SP,16)}, {vr(KP,4)}, {vr(Q,4)}, {vr(SP,16)}
    v_mfma_f32_32x32x16_bf16 {vr(SC,16)}, {vr(KC,4)}, {vr(Q,4)}, {vr(SC,16)}
    v_mfma_f32_32x32x16_bf16 {vr(SP,16)}, {vr(KP+4,4)}, {vr(Q+4,4)}, {vr(SP,16)}
    v_mfma_f32_32x32x16_bf16 {vr(SC,16)}, {vr(KC+4,4)}, {vr(Q+4,4)}, {vr(SC,16)}
    s_nop 11
    """)
    regs = list(range(SP + 8, SP + 16)) + list(range(SC, SC + 16))
    a(f"v_max_f32 v7, v{regs[0]}, v{regs[1]}")
    for k in range(2, 24, 2): a(f"v_max3_f32 v7, v7, v{regs[k]}, v{regs[k+1]}")
    a("v_mov_b32 v8, v7\ns_nop 1\nv_permlane32_swap_b32 v7, v8\nv_max_f32 v7, v7, v8")
    for r in regs: a(f"v_sub_f32 v{r}, v{r}, v7")
    for r in regs: a(f"v_exp_f32 v{r}, v{r}")
    a(f"""
    s_lshl_b32 s41, s40, 4
    s_add_u32 s41, s41, s36
    s_lshl_b32 s41, s41, 11
    s_add_u32 s41, s41, {OA}
    s_waitcnt vmcnt(0)
    v_smfmac_f32_32x32x32_bf16 {vr(OO,16)}, {vr(VP,4)}, {vr(SP+8,8)}, v{IDX}
    v_smfmac_f32_32x32x32_bf16 {vr(OO,16)}, {vr(VC,4)}, {vr(SC,8)}, v{IDX}
    v_smfmac_f32_32x32x32_bf16 {vr(OO,16)}, {vr(VC+4,4)}, {vr(SC+8,8)}, v{IDX}
    s_nop 11
    """)
    finish_O(a, OO, T, 41, tag + "_fa")

def oproj_phase(a, tag):
    a(f"""
    s_lshr_b32 s37, s2, 3
    s_cmp_ge_u32 s37, 28
    s_cbranch_scc1 {tag}_odone
    s_mul_i32 s36, s37, 37
    s_lshr_b32 s36, s36, 8
    s_mul_i32 s38, s36, 7
    s_sub_u32 s37, s37, s38
    s_and_b32 s38, s2, 7
    s_lshl_b32 s38, s38, 2
    s_add_u32 s36, s36, s38
    v_lshrrev_b32 v1, 3, v0
    v_and_b32 v2, 7, v0
    v_bfe_u32 v3, v1, 1, 1
    v_lshlrev_b32 v3, 2, v3
    v_xor_b32 v4, v2, v3
    v_lshlrev_b32 v4, 4, v4
    v_mul_u32_u24 v5, 896, v1
    v_add_u32 v8, v4, v5
    v_lshlrev_b32 v9, 4, v0
    """)
    a(f"""
    v_lshrrev_b32 v2, 5, v0
    v_bfe_u32 v3, v0, 2, 2
    v_lshl_add_u32 v4, v2, 3, v3
    v_lshlrev_b32 v4, 7, v4
    v_lshrrev_b32 v3, 1, v3
    s_bfe_u32 s41, s3, 0x10001
    v_xor_b32 v3, s41, v3
    v_lshl_add_u32 v4, v3, 6, v4
    v_bfe_u32 v3, v0, 4, 1
    v_lshl_add_u32 v4, v3, 5, v4
    v_and_b32 v3, 1, v0
    v_lshl_add_u32 v4, v3, 4, v4
    v_bfe_u32 v3, v0, 1, 1
    v_lshl_add_u32 v12, v3, 3, v4
    s_and_b32 s42, s3, 1
    s_lshl_b32 s43, s42, 15
    s_add_u32 s43, s43, 57344
    v_add_u32 v13, s43, v9
    v_and_b32 v3, 31, v0
    v_mul_u32_u24 v3, 1792, v3
    v_lshl_add_u32 v14, v2, 4, v3
    s_lshl_b32 s44, s36, 1
    s_add_u32 s44, s44, s42
    s_mul_i32 s44, s44, {32*1792}
    s_lshl_b32 s45, s37, 7
    s_add_u32 s44, s44, s45
    s_lshl_b32 s45, s41, 6
    s_add_u32 s44, s44, s45
    s_waitcnt lgkmcnt(0)
    """)
    srd(a, SRD_WS, P + 16, WS_SIZE); srd(a, SRD_OUT, P + 12, 2048 * 1792)
    srd(a, SRD_OA, P + 4, 448 * 896); srd(a, SRD_OB, P + 10, 448 * 896)
    for br, (W, Ob) in enumerate(((SRD_OA, OA), (SRD_OB, OB))):
        a(f"""
        s_mul_i32 s46, s3, {8*896}
        s_lshl_b32 s47, s37, 7
        s_add_u32 s46, s46, s47
        s_lshl_b32 s47, s3, 10
        s_lshl_b32 s48, s36, 16
        s_lshl_b32 s49, s3, 13
        s_add_u32 s48, s48, s49
        s_add_u32 s48, s48, {Ob}
        """)
        for i in range(7):
            a(f"s_add_u32 m0, s47, {i*8192}\ns_nop 0\nbuffer_load_dwordx4 v8, {sr(W,4)}, s46 offen lds\ns_add_u32 s46, s46, {64*896}")
        for i in range(2):
            a(f"s_add_u32 m0, s49, {57344 + i*4096}\ns_nop 0")
            for k in range(4):
                a(f"buffer_load_dwordx4 v9, {sr(SRD_WS,4)}, s48 offen offset:{k*1024} lds")
            a("s_add_u32 s48, s48, 4096")
        a(f"s_waitcnt vmcnt(0)\ns_barrier\ns_cmp_ge_u32 s3, 4\ns_cbranch_scc1 {tag}_oskip{br}")
        ACC, FR = 64, 24
        def reads(k, b):
            hd, s = k >> 1, k & 1
            row = 28 * hd - 4 * (hd & 1) + 16 * s
            f = FR + 8 * b
            a(f"ds_read_b128 {vr(f,4)}, v13 offset:{k*1024}")
            a(f"ds_read_b64_tr_b16 {vr(f+4,2)}, v12 offset:{row*128}")
            a(f"ds_read_b64_tr_b16 {vr(f+6,2)}, v12 offset:{row*128+512}")
        NB = 4
        for k in range(NB - 1): reads(k, k)
        for k in range(32):
            if k + NB - 1 < 32: reads(k + NB - 1, (k + NB - 1) % NB)
            a(f"s_waitcnt lgkmcnt({3*min(NB-1, 31-k)})")
            f = FR + 8 * (k % NB)
            a(f"v_mfma_f32_32x32x16_bf16 {vr(ACC,16)}, {vr(f+4,4)}, {vr(f,4)}, {vr(ACC,16) if k else 0}")
        a("s_nop 11")
        for r in range(8): a(f"v_cvt_pk_bf16_f32 v{80+r}, v{ACC+2*r}, v{ACC+2*r+1}")
        a(f"buffer_store_dwordx4 v[80:83], v14, {sr(SRD_OUT,4)}, s44 offen offset:{br*896}")
        a(f"buffer_store_dwordx4 v[84:87], v14, {sr(SRD_OUT,4)}, s44 offen offset:{br*896+32}")
        a(f"{tag}_oskip{br}:")
        if br == 0: a("s_barrier")
    a(f"{tag}_odone:")

def kernel(name, body, vgpr):
    a = Asm()
    prologue(a, name)
    body(a, name)
    a(f"{name}_exit:\ns_endpgm")
    code = f".globl {name}_kernel\n.p2align 8\n.type {name}_kernel,@function\n{name}_kernel:\n" + a.text()
    desc = f""".p2align 6
.amdhsa_kernel {name}_kernel
  .amdhsa_next_free_vgpr {vgpr}
  .amdhsa_next_free_sgpr 96
  .amdhsa_accum_offset {vgpr}
  .amdhsa_group_segment_fixed_size 0
  .amdhsa_kernarg_size 72
  .amdhsa_user_sgpr_count 2
  .amdhsa_user_sgpr_kernarg_segment_ptr 1
  .amdhsa_system_sgpr_workgroup_id_x 1
.end_amdhsa_kernel
"""
    return code, desc

def main(out):
    ks = [("qkv", gemm_phase, 128, GNS * GSLOT), ("att", attn_phase, 128, ANS * 16384), ("opj", oproj_phase, 128, 57344 + 65536)]
    hdr = "".join(f"; @launch kernel={n}_kernel grid=(256,1,1) block=(512,1,1) lds={l}\n" for n, _, _, l in ks)
    hdr += '.amdgcn_target "amdgcn-amd-amdhsa--gfx950"\n.text\n'
    codes, descs = zip(*[kernel(n, b, v) for n, b, v, _ in ks])
    txt = hdr + "".join(codes) + '.section .rodata,"a"\n' + "".join(descs)
    open(out, "w").write(txt)
    e = lint(txt)
    for x in e: print("HAZARD", x)
    print("written", out, len(txt), "bytes;", len(e), "hazards")

if __name__ == "__main__":
    main(sys.argv[1] if len(sys.argv) > 1 else f"cdna_kernels/{NAME}.s")
```

```python
import sys, math, os, struct
from lint import lint

NAME = "concat_heads__sliding_local_dilated__mha_block__prompt"
def X(k, d=0): return int(os.environ.get(k, str(d)))
SEC = 1835008
QB, KB, VB, QA, KA, VA = [i * SEC for i in range(6)]
OA = 6 * SEC
OB = OA + 0x200000
FB = OB + 0x200000
FA = FB + 0x3000
FOA = FA + 0x3000
FOB = FOA + 0x2000
WS_SIZE = FOB + 0x2000
QSCALE = (28 ** -0.5) * math.log2(math.e)
def f2u(x): return struct.unpack('<I', struct.pack('<f', x))[0]
STAMP = X("STAMP")
TS_OFF = 0x1000000
SPIN_MAX = 400000

class Asm:
    def __init__(self): self.l = []; self.vm = []; self.nlab = 0
    def __call__(self, s):
        for x in s.strip('\n').split('\n'):
            x = x.strip()
            if not x: continue
            self.l.append(x if x.endswith(':') else '    ' + x)
    def text(self): return '\n'.join(self.l) + '\n'
    def lab(self, p):
        self.nlab += 1; return f"{p}_{self.nlab}"
    def vm_reset(self): self.vm = []
    def vmem(self, ins, tag):
        self(ins); self.vm.append(tag)
    def vm_wait(self, tag, extra=""):
        idx = [i for i, t in enumerate(self.vm) if t == tag]
        if not idx:
            if extra: self(f"s_waitcnt {extra}")
            return
        n = len(self.vm) - 1 - idx[-1]
        assert n < 64
        self(f"s_waitcnt vmcnt({n}) {extra}")
        self.vm = self.vm[idx[-1] + 1:]

def vr(a, n): return "v[%d:%d]" % (a, a + n - 1)
def sr(a, n=4): return "s[%d:%d]" % (a, a + n - 1)

SRD_XB, SRD_WB, SRD_XA, SRD_WA, SRD_WS, SRD_OUT, SRD_DBG = 4, 8, 12, 16, 20, 24, 28
SRD_WOA, SRD_WOB = 4, 8
NON = 32
S_HD, S_QB, S_ODD, S_P0 = 34, 35, 36, 37
S_RB, S_CB, S_ROW, S_COL, S_ACT = 38, 39, 40, 41, 42
S_RB2, S_CB2, S_ACT2 = 43, 44, 45
VMASK, QPAD = 46, 48
S_W4 = 50
T0 = 51
P = 64
WS = sr(SRD_WS)

def srd(a, d, ptr, size):
    a(f"s_mov_b32 s{d}, s{ptr}\ns_mov_b32 s{d+1}, s{ptr+1}\ns_mov_b32 s{d+2}, {size}\ns_mov_b32 s{d+3}, 0x20000")

def stamp(a, i):
    if STAMP: a(f"s_memtime s[{82+4*i}:{83+4*i}]\ns_memrealtime s[{84+4*i}:{85+4*i}]\ns_waitcnt lgkmcnt(0)")
TRACE = X("TRACE")
def trace(a, idx, reg=165):
    if TRACE: a(f"s_memtime s[98:99]\ns_waitcnt lgkmcnt(0)\nv_writelane_b32 v{reg + idx // 64}, s98, {idx % 64}")
def stamp_out(a):
    if TRACE:
        a(f"""
        s_mov_b32 s22, 0x2000000
        s_lshl_b32 s4, s2, 4
        s_add_u32 s4, s4, s3
        s_lshl_b32 s4, s4, 9
        s_add_u32 s4, s4, {TS_OFF + 0x100000}
        v_lshlrev_b32 v1, 2, v0
        buffer_store_dword v165, v1, s[20:23], s4 offen
        buffer_store_dword v166, v1, s[20:23], s4 offen offset:256
        """)
    if not STAMP: return
    a("s_waitcnt vmcnt(0)")
    stamp(a, 4)
    a(f"""
    s_mov_b32 s22, 0x2000000
    s_lshl_b32 s4, s2, 4
    s_add_u32 s4, s4, s3
    s_lshl_b32 s4, s4, 6
    s_add_u32 s4, s4, {TS_OFF}
    """)
    for i in range(5):
        a(f"v_mov_b32 v{8+2*i}, s{84+4*i}\nv_mov_b32 v{9+2*i}, s{82+4*i}")
    a(f"""
    v_mov_b32 v1, 0
    s_mov_b64 exec, 1
    buffer_store_dwordx4 v[8:11], v1, s[20:23], s4 offen
    buffer_store_dwordx4 v[12:15], v1, s[20:23], s4 offen offset:16
    buffer_store_dwordx2 v[16:17], v1, s[20:23], s4 offen offset:32
    """)

GNS = 4
GSLOT = 28672
ANS = 6
L_WOB, L_Q, L_RING = 0, 57344, 65536
L_WOA = L_Q
def slot_addr(st): return L_RING + ((st % ANS + 2) % ANS) * 16384
L_COMB = slot_addr(13)
L_RED = slot_addr(15)
L_SYNC = slot_addr(14)
L_RELAY = slot_addr(3)
ABAR = [0, 4, 8, 12, 16, 20, 24, 28]
ONES = 0x3F803F80

def setup(a):
    if TRACE: a("v_mov_b32 v165, 0\nv_mov_b32 v166, 0"); trace(a, 0)
    if STAMP:
        for i in range(86, 98, 2): a(f"s_mov_b64 s[{i}:{i+1}], 0")
        a("s_memtime s[82:83]\ns_memrealtime s[84:85]")
    a(f"""
    s_cmp_ge_u32 s2, 256
    s_cbranch_scc1 L_exit
    s_load_dwordx16 s[64:79], s[0:1], 0
    s_load_dwordx2 s[80:81], s[0:1], 64
    v_lshrrev_b32 v1, 6, v0
    v_and_b32 v0, 63, v0
    v_readfirstlane_b32 s3, v1
    s_and_b32 s51, s2, 7
    s_lshr_b32 s52, s2, 3
    s_mul_i32 s53, s51, 31
    s_add_u32 s53, s53, s52
    s_cmp_lt_u32 s52, 31
    s_cselect_b32 s{S_ACT}, 1, 0
    s_cmp_lt_u32 s53, 242
    s_cselect_b32 s{S_ACT}, s{S_ACT}, 0
    s_mul_i32 s{S_RB}, s53, 171
    s_lshr_b32 s{S_RB}, s{S_RB}, 10
    s_mul_i32 s{S_CB}, s{S_RB}, 6
    s_sub_u32 s{S_CB}, s53, s{S_CB}
    s_sub_u32 s54, s53, 132
    s_mul_i32 s55, s54, 205
    s_lshr_b32 s55, s55, 10
    s_mul_i32 s56, s55, 5
    s_sub_u32 s56, s54, s56
    s_add_u32 s56, s56, 6
    s_cmp_ge_u32 s53, 132
    s_cselect_b32 s{S_RB}, s55, s{S_RB}
    s_cselect_b32 s{S_CB}, s56, s{S_CB}
    s_mul_i32 s{S_ROW}, s{S_RB}, 96
    s_min_u32 s{S_ROW}, s{S_ROW}, 1952
    s_lshl_b32 s{S_COL}, s{S_CB}, 2
    s_min_u32 s{S_COL}, s{S_COL}, 38
    s_and_b32 s{S_W4}, s3, 3
    s_cmp_ge_u32 s3, 8
    s_cbranch_scc0 L_comp
    """)

def setup2(a):
    a(f"""
    s_and_b32 s51, s2, 7
    s_lshl_b32 s{S_HD}, s51, 1
    s_bfe_u32 s{S_ODD}, s2, 0x10003
    s_add_u32 s{S_HD}, s{S_HD}, s{S_ODD}
    s_lshr_b32 s{S_QB}, s2, 4
    s_mul_i32 s{S_P0}, s{S_HD}, 7
    s_lshr_b32 s{S_P0}, s{S_P0}, 1
    s_lshl_b32 s{S_P0}, s{S_P0}, 9
    s_lshr_b32 s52, s2, 3
    s_cmp_lt_u32 s52, 28
    s_cselect_b32 s{S_ACT2}, 1, 0
    s_mul_i32 s{S_RB2}, s52, 37
    s_lshr_b32 s{S_RB2}, s{S_RB2}, 8
    s_mul_i32 s53, s{S_RB2}, 7
    s_sub_u32 s{S_CB2}, s52, s53
    s_lshl_b32 s51, s51, 2
    s_add_u32 s{S_RB2}, s{S_RB2}, s51
    s_min_u32 s{S_RB2}, s{S_RB2}, 31
    s_cmp_eq_u32 s{S_ODD}, 0
    s_cselect_b32 s{VMASK}, 0x0fffffff, -16
    s_mov_b32 s{VMASK+1}, s{VMASK}
    s_cselect_b32 s{QPAD}, 0, -1
    s_cselect_b32 s{QPAD+1}, -1, 0
    v_and_b32 v1, 31, v0
    v_lshrrev_b32 v2, 5, v0
    v_and_b32 v3, 51, v0
    v_bfe_u32 v4, v0, 2, 1
    v_lshl_add_u32 v3, v4, 3, v3
    v_bfe_u32 v4, v0, 3, 1
    v_lshl_add_u32 v3, v4, 2, v3
    v_lshlrev_b32 v5, 4, v3
    v_lshlrev_b32 v6, 4, v0
    """)

def nonce_load(a, vt):
    a(f"v_mov_b32 v{vt+2}, 0")
    a.vmem(f"buffer_load_dwordx2 {vr(vt,2)}, v{vt+2}, {sr(SRD_DBG)}, 0 offen sc1", "non")
def nonce_get(a, vt):
    L = a.lab("non")
    a(f"""
    s_mov_b32 s63, 0
    {L}:
    v_readfirstlane_b32 s{NON}, v{vt}
    v_readfirstlane_b32 s{NON+1}, v{vt+1}
    s_add_u32 s63, s63, 1
    s_cmp_lg_u32 s{NON+1}, 0
    s_cbranch_scc1 {L}_ok
    s_cmp_ge_u32 s63, {SPIN_MAX}
    s_cbranch_scc1 {L}_ok
    s_sleep 4
    buffer_load_dwordx2 {vr(vt,2)}, v{vt+2}, {sr(SRD_DBG)}, 0 offen sc1
    s_waitcnt vmcnt(0)
    s_branch {L}
    {L}_ok:
    """)

def put_flag(a, soff, vt):
    a(f"""
    v_mov_b32 v{vt}, s{NON}
    v_mov_b32 v{vt+1}, s{NON+1}
    v_mov_b32 v{vt+2}, 0
    s_mov_b64 exec, 1
    """)
    a.vmem(f"buffer_store_dwordx2 {vr(vt,2)}, v{vt+2}, {WS}, s{soff} offen sc1", "flag")
    a("s_mov_b64 exec, -1")

def zero_qpad(a, q):
    L = a.lab("zq")
    a(f"""
    s_mov_b64 exec, s[{QPAD}:{QPAD+1}]
    s_cmp_eq_u32 s{S_ODD}, 0
    s_cbranch_scc0 {L}_o
    v_mov_b32 v{q+6}, 0
    v_mov_b32 v{q+7}, 0
    s_branch {L}_d
    {L}_o:
    v_mov_b32 v{q}, 0
    v_mov_b32 v{q+1}, 0
    {L}_d:
    s_mov_b64 exec, -1
    """)

def finish_O(a, o, tmp, soff):
    L = a.lab("fo")
    a(f"""
    s_cmp_eq_u32 s{S_ODD}, 0
    s_cbranch_scc0 {L}_o
    v_mov_b32 v{tmp}, v{o+12}
    v_mov_b32 v{tmp+1}, v{o+12}
    s_nop 1
    v_permlane32_swap_b32 v{tmp}, v{tmp+1}
    v_rcp_f32 v{tmp}, v{tmp+1}
    s_mov_b64 exec, s[{QPAD}:{QPAD+1}]
    v_mov_b32 v{o+12}, 0
    v_mov_b32 v{o+13}, 0
    v_mov_b32 v{o+14}, 0
    v_mov_b32 v{o+15}, 0
    s_branch {L}_d
    {L}_o:
    v_mov_b32 v{tmp}, v{o}
    v_mov_b32 v{tmp+1}, v{o}
    s_nop 1
    v_permlane32_swap_b32 v{tmp}, v{tmp+1}
    v_rcp_f32 v{tmp}, v{tmp}
    s_mov_b64 exec, s[{QPAD}:{QPAD+1}]
    v_mov_b32 v{o}, 0
    v_mov_b32 v{o+1}, 0
    v_mov_b32 v{o+2}, 0
    v_mov_b32 v{o+3}, 0
    {L}_d:
    s_mov_b64 exec, -1
    """)
    for r in range(8): a(f"v_mul_f32 v{o+r}, v{tmp}, v{o+r}")
    for r in range(4): a(f"v_cvt_pk_bf16_f32 v{tmp+4+r}, v{o+2*r}, v{o+2*r+1}")
    a.vmem(f"buffer_store_dwordx4 {vr(tmp+4,4)}, v6, {WS}, s{soff} offen sc1", "ost")
    for r in range(8, 16): a(f"v_mul_f32 v{o+r}, v{tmp}, v{o+r}")
    for r in range(4, 8): a(f"v_cvt_pk_bf16_f32 v{tmp+4+r}, v{o+2*r}, v{o+2*r+1}")
    a.vmem(f"buffer_store_dwordx4 {vr(tmp+8,4)}, v6, {WS}, s{soff} offen offset:1024 sc1", "ost")

def w_frag_addr(a, dst, half_expr):
    a(f"""
    v_lshrrev_b32 v7, 5, v0
    v_bfe_u32 v4, v0, 2, 2
    v_lshl_add_u32 v{dst}, v7, 3, v4
    v_lshlrev_b32 v{dst}, 7, v{dst}
    v_lshrrev_b32 v4, 1, v4
    v_xor_b32 v4, {half_expr}, v4
    v_lshl_add_u32 v{dst}, v4, 6, v{dst}
    v_bfe_u32 v4, v0, 4, 1
    v_lshl_add_u32 v{dst}, v4, 5, v{dst}
    v_and_b32 v4, 1, v0
    v_lshl_add_u32 v{dst}, v4, 4, v{dst}
    v_bfe_u32 v4, v0, 1, 1
    v_lshl_add_u32 v{dst}, v4, 3, v{dst}
    """)

def gemm_compute(a):
    ACC, FR, GO = 88, 24, 136
    a(f"""
    s_waitcnt lgkmcnt(0)
    """)
    srd(a, SRD_WS, P + 16, WS_SIZE); srd(a, SRD_DBG, P + 14, 256); srd(a, SRD_OUT, P + 12, 2048 * 1792)
    setup2(a)
    a(f"""
    s_cmp_eq_u32 s{S_ACT}, 0
    s_cbranch_scc1 L_gidle
    v_lshrrev_b32 v4, 1, v1
    v_and_b32 v4, 7, v4
    v_xor_b32 v4, v4, v2
    v_lshlrev_b32 v4, 4, v4
    v_lshl_add_u32 v8, v1, 7, v4
    v_xor_b32 v9, 32, v8
    v_xor_b32 v10, 64, v8
    v_xor_b32 v11, 96, v8
    s_and_b32 s51, s3, 1
    """)
    w_frag_addr(a, 12, "s51")
    a(f"""
    s_bfe_u32 s51, s3, 0x10001
    s_lshl_b32 s51, s51, 13
    s_add_u32 s51, s51, 12288
    v_add_u32 v12, s51, v12
    s_add_u32 s51, s{S_COL}, s{S_W4}
    s_cmp_eq_u32 s{S_RB}, 21
    s_cselect_b32 s55, 2, 0
    s_cmp_eq_u32 s{S_CB}, 10
    s_cselect_b32 s56, 2, 0
    s_cmp_lt_u32 s{S_W4}, s56
    s_cselect_b32 s55, 3, s55
    s_lshr_b32 s57, s{S_ROW}, 5
    s_cmp_ge_u32 s3, 4
    s_cselect_b32 s58, {3*SEC}, 0
    s_cselect_b32 s59, {FA - FB}, 0
    s_cselect_b32 s52, {(7 % GNS) * GSLOT}, 0
    s_add_u32 s59, s59, {FB}
    s_lshl_b32 s60, s51, 8
    s_add_u32 s59, s59, s60
    s_lshl_b32 s60, s{S_RB}, 3
    s_add_u32 s59, s59, s60
    """)
    for r in range(48): a(f"v_mov_b32 v{ACC+r}, 0")
    a(f"""
    s_cmp_ge_u32 s51, 28
    s_cbranch_scc1 L_gV
    """)
    def addrs():
        for i in range(5): a(f"v_add_u32 v{16+i}, s52, v{8+i}")
        a(f"s_add_u32 s52, s52, {GSLOT}\ns_cmp_ge_u32 s52, {GSLOT*GNS}\ns_cselect_b32 s52, 0, s52")
    def reads(ks):
        f = FR + 16 * ks
        for m in range(3):
            a(f"ds_read_b128 {vr(f + 4*m, 4)}, v{16+ks} offset:{m*4096}")
        a(f"ds_read_b64_tr_b16 {vr(f+12, 2)}, v20 offset:{ks*2048}")
        a(f"ds_read_b64_tr_b16 {vr(f+14, 2)}, v20 offset:{ks*2048+512}")
    for var in ("QK", "V"):
        t = f"L_g{var}"
        a(f"{t}:")
        if var == "QK":
            a(f"""
            v_mov_b32 v13, v6
            s_cmp_ge_u32 s51, 14
            s_cselect_b32 s53, {SEC - 14*2048}, 0
            s_cselect_b32 s54, 1.0, {hex(f2u(QSCALE))}
            s_lshl_b32 s60, s51, 11
            s_add_u32 s53, s53, s60
            s_mul_i32 s60, s57, 28672
            s_add_u32 s53, s53, s60
            """)
        else:
            a(f"""
            v_and_b32 v4, 31, v3
            s_sub_u32 s60, s51, 28
            s_lshl_b32 s60, s60, 5
            v_add_u32 v4, s60, v4
            v_mul_u32_u24 v7, 2341, v4
            v_lshrrev_b32 v7, 16, v7
            v_mul_u32_u24 v13, 28, v7
            v_sub_u32 v4, v4, v13
            v_mul_u32_u24 v7, {64*1792}, v7
            v_lshl_add_u32 v13, v4, 4, v7
            v_mul_u32_u24 v4, 448, v2
            v_add_u32 v13, v13, v4
            s_mul_i32 s53, s57, 1792
            s_add_u32 s53, s53, {2*SEC}
            """)
        a(f"s_add_u32 s53, s53, s58")
        addrs()
        a(f"s_cmp_ge_u32 s3, 4\ns_cbranch_scc0 {t}_go")
        for i in range(7): a("s_barrier")
        a(f"{t}_go:\ns_barrier")
        def mf(ks):
            f = FR + 16 * ks
            for m in range(3):
                x, w, d = vr(f + 4*m, 4), vr(f + 12, 4), vr(ACC + 16*m, 16)
                if var == "QK": a(f"v_mfma_f32_32x32x16_bf16 {d}, {w}, {x}, {d}")
                else: a(f"v_mfma_f32_32x32x16_bf16 {d}, {x}, {w}, {d}")
        reads(0); reads(1)
        a(f"s_mov_b32 s56, 6\n{t}_chunk:")
        for ks in range(2):
            reads(ks + 2); a("s_waitcnt lgkmcnt(10)"); mf(ks)
        a(f"s_cmp_eq_u32 s56, 0\ns_cbranch_scc1 {t}_last")
        addrs()
        a("s_sub_u32 s56, s56, 1\ns_waitcnt lgkmcnt(0)\ns_barrier")
        reads(0); mf(2)
        reads(1); mf(3)
        a(f"s_branch {t}_chunk\n{t}_last:\ns_waitcnt lgkmcnt(0)")
        a(f"s_cmp_ge_u32 s3, 4\ns_cbranch_scc1 {t}_nb0\ns_barrier\n{t}_nb0:")
        mf(2); mf(3)
        nonce_load(a, 160)
        a(f"s_mov_b32 s57, {28672 if var == 'QK' else 1792}\ns_mov_b32 s58, {1024 if var == 'QK' else 896}\ns_nop 5")
        for m in range(3):
            d = ACC + 16 * m
            if var == "QK":
                for r in range(16): a(f"v_mul_f32 v{d+r}, s54, v{d+r}")
            for r in range(8): a(f"v_cvt_pk_bf16_f32 v{GO+8*m+r}, v{d+2*r}, v{d+2*r+1}")
        if var == "QK": a("s_branch L_gepi")
    a(f"""
    L_gepi:
    v_add_u32 v14, s58, v13
    s_cmp_ge_u32 s3, 4
    s_cbranch_scc1 L_att
    """)
    sched = {8: [0], 9: [1], 10: [2]} if X("GSCHED") == 1 else {8: [0, 1], 9: [2]} if X("GSCHED") == 0 else {8: [0, 1, 2]}
    PUB = X("PUB", 11)
    for g in range(8, 14):
        for m in sched.get(g, []): gemm_store(a, m)
        a("s_barrier")
        if g == PUB: gemm_publish(a)
    a("s_branch L_att")
    a(f"""
    L_gidle:
    s_mov_b32 s55, 3
    v_mov_b32 v13, 0
    v_mov_b32 v14, 0
    """)
    nonce_load(a, 160)
    a("s_barrier\ns_cmp_ge_u32 s3, 4\ns_cbranch_scc1 L_att")
    gemm_publish(a)

def gemm_store(a, m, GO=136):
    L = a.lab("gs")
    a(f"""
    s_cmp_gt_u32 s55, {m}
    s_cbranch_scc1 {L}
    buffer_store_dwordx4 {vr(GO+8*m,4)}, v13, {WS}, s53 offen sc1
    buffer_store_dwordx4 {vr(GO+8*m+4,4)}, v14, {WS}, s53 offen sc1
    {L}:
    s_add_u32 s53, s53, s57
    """)
def gemm_publish(a):
    L = a.lab("gp")
    a("s_waitcnt vmcnt(0)")
    nonce_get(a, 160)
    a(f"s_cmp_eq_u32 s55, 3\ns_cbranch_scc1 {L}")
    put_flag(a, 59, 160)
    a(f"{L}:")

S0, S1, O_, CM, QF, KF, V0, V1, IDX, AD0, AD1 = 16, 32, 48, 64, 80, 88, 96, 100, 104, 105, 106
def attn_compute(a):
    a("L_att:")
    stamp(a, 1)
    a(f"""
    v_mov_b32 v{IDX}, 0xdddddddd
    s_cmp_ge_u32 s3, 4
    s_cbranch_scc1 L_att1
    v_mov_b32 v8, {hex(ONES)}
    v_mov_b32 v9, v8
    v_mov_b32 v10, v8
    v_mov_b32 v11, v8
    s_lshl_b32 s51, s{S_W4}, 12
    s_add_u32 s51, s51, {L_RING + 2048}
    v_add_u32 v7, s51, v6
    v_add_u32 v12, 0x10000, v7
    s_not_b64 exec, s[{VMASK}:{VMASK+1}]
    """)
    for sl in range(ANS):
        for s in range(2):
            off = sl * 16384 + s * 1024
            a(f"ds_write_b128 v{7 if off < 65536 else 12}, v[8:11] offset:{off & 0xffff}")
    a(f"""
    s_mov_b64 exec, -1
    L_att1:
    s_lshr_b32 s51, s3, 2
    s_lshl_b32 s51, s51, 13
    s_add_u32 s51, s51, {L_RING}
    v_add_u32 v{AD0}, s51, v5
    v_add_u32 v{AD1}, 0x10000, v{AD0}
    v_add_u32 v7, {slot_addr(0)}, v5
    s_lshl_b32 s51, s{S_W4}, 11
    s_add_u32 s51, s51, {L_Q}
    v_add_u32 v8, s51, v6
    """)
    for r in range(16): a(f"v_mov_b32 v{O_+r}, 0")
    for r in range(4): a(f"v_mov_b32 v{V1+r}, 0")
    def rd(dst, n, frag):
        st, u = n >> 1, n & 1
        off = slot_addr(st) - L_RING + u * 4096 + frag * 1024
        a(f"ds_read_b128 {vr(dst,4)}, v{AD0 if off < 65536 else AD1} offset:{off & 0xffff}")
    a("s_waitcnt lgkmcnt(0)\ns_barrier")
    stamp(a, 2)
    a(f"""
    ds_read_b128 {vr(QF,4)}, v8
    ds_read_b128 {vr(QF+4,4)}, v8 offset:1024
    ds_read_b128 {vr(CM,4)}, v7
    ds_read_b128 {vr(CM+4,4)}, v7 offset:1024
    """)
    rd(KF, 0, 0); rd(KF + 4, 0, 1); rd(V0, 0, 2)
    for r in range(8): a(f"v_mov_b32 v{S1+8+r}, 0")
    a("s_waitcnt lgkmcnt(5)")
    zero_qpad(a, QF)
    a(f"""
    s_waitcnt lgkmcnt(3)
    v_mfma_f32_32x32x16_bf16 {vr(S0,16)}, {vr(CM,4)}, {vr(QF,4)}, 0
    v_mfma_f32_32x32x16_bf16 {vr(S0,16)}, {vr(CM+4,4)}, {vr(QF+4,4)}, {vr(S0,16)}
    s_nop 11
    v_max3_f32 v7, v{S0}, v{S0+1}, v{S0+2}
    """)
    for r in range(3, 15, 2): a(f"v_max3_f32 v7, v7, v{S0+r}, v{S0+r+1}")
    a(f"""
    v_max_f32 v7, v7, v{S0+15}
    v_mov_b32 v8, v7
    s_nop 1
    v_permlane32_swap_b32 v7, v8
    v_max_f32 v7, v7, v8
    v_sub_f32 v{CM}, {hex(f2u(-float(X("BIAS", 16))))}, v7
    """)
    for r in range(1, 16): a(f"v_mov_b32 v{CM+r}, v{CM}")
    a(f"""
    s_waitcnt lgkmcnt(1)
    s_nop 0
    v_mfma_f32_32x32x16_bf16 {vr(S0,16)}, {vr(KF,4)}, {vr(QF,4)}, {vr(CM,16)}
    v_mfma_f32_32x32x16_bf16 {vr(S0,16)}, {vr(KF+4,4)}, {vr(QF+4,4)}, {vr(S0,16)}
    """)
    rd(KF, 1, 0); rd(KF + 4, 1, 1)
    a("s_nop 9")
    for n in range(32):
        Sc = S0 if n % 2 == 0 else S1
        Sn = S1 if n % 2 == 0 else S0
        def ex(lo, hi):
            for r in range(lo, hi): a(f"v_exp_f32 v{Sc+r}, v{Sc+r}")
        last = n == 31
        ex(0, 2)
        if n > 0: a(f"s_waitcnt lgkmcnt({1 if last else 3})")
        a(f"v_smfmac_f32_32x32x32_bf16 {vr(O_,16)}, {vr(V1,4)}, {vr(Sn+8,8)}, v{IDX}")
        rd(V1, n, 3)
        ex(2, 5)
        if not last:
            a(f"s_waitcnt lgkmcnt({2 if n > 0 else 1})")
            a(f"v_mfma_f32_32x32x16_bf16 {vr(Sn,16)}, {vr(KF,4)}, {vr(QF,4)}, {vr(CM,16)}")
        ex(5, 8)
        if not last:
            a(f"v_mfma_f32_32x32x16_bf16 {vr(Sn,16)}, {vr(KF+4,4)}, {vr(QF+4,4)}, {vr(Sn,16)}")
        nk = 0
        if n + 2 < 32:
            if n in ABAR: a("s_barrier")
            rd(KF, n + 2, 0); rd(KF + 4, n + 2, 1); nk = 2
        ex(8, 12)
        a(f"s_waitcnt lgkmcnt({1 + nk})")
        a(f"v_smfmac_f32_32x32x32_bf16 {vr(O_,16)}, {vr(V0,4)}, {vr(Sc,8)}, v{IDX}")
        if not last: rd(V0, n + 1, 2)
        if n == 30: a("s_nop 1")
        if n < 3 or n == X("APUB", 6):
            L = a.lab("g1")
            a(f"s_cmp_ge_u32 s3, 4\ns_cbranch_scc0 {L}")
            if n < 3: gemm_store(a, n)
            else: gemm_publish(a)
            a(f"{L}:")
        ex(12, 16)
    a(f"""
    s_waitcnt lgkmcnt(0)
    s_nop 0
    v_smfmac_f32_32x32x32_bf16 {vr(O_,16)}, {vr(V1,4)}, {vr(S1+8,8)}, v{IDX}
    """)
    stamp(a, 3)
    trace(a, 112)
    a(f"""
    s_lshl_b32 s51, s{S_W4}, 12
    s_add_u32 s51, s51, {L_COMB}
    v_add_u32 v7, s51, v6
    s_cmp_ge_u32 s3, 4
    s_nop 6
    s_cbranch_scc1 L_comb
    """)
    for i in range(4): a(f"ds_write_b128 v7, {vr(O_+4*i,4)} offset:{i*1024}")
    a("s_waitcnt lgkmcnt(0)\ns_barrier\ns_barrier")
    a.vm_reset()
    oproj(a, "B")
    a("s_branch L_end\nL_comb:\ns_barrier")
    for i in range(4): a(f"ds_read_b128 {vr(S0+4*i,4)}, v7 offset:{i*1024}")
    a(f"""
    s_lshl_b32 s52, s{S_QB}, 2
    s_add_u32 s52, s52, s{S_W4}
    s_lshl_b32 s51, s52, 4
    s_add_u32 s51, s51, s{S_HD}
    s_lshl_b32 s53, s51, 3
    s_add_u32 s53, s53, {FOB}
    s_lshl_b32 s51, s51, 11
    s_add_u32 s51, s51, {OB}
    s_waitcnt lgkmcnt(0)
    s_barrier
    """)
    for r in range(16): a(f"v_add_f32 v{O_+r}, v{O_+r}, v{S0+r}")
    a(f"v_maximum3_f32 v8, |v{O_}|, |v{O_+1}|, |v{O_+2}|")
    for r in range(3, 15, 2): a(f"v_maximum3_f32 v8, v8, |v{O_+r}|, |v{O_+r+1}|")
    a(f"""
    v_maximum3_f32 v8, v8, |v{O_+15}|, |v{O_+15}|
    v_cmp_nlt_f32 vcc, v8, {'0' if X('FORCEFB') else 'v9'}
    """.replace("v_cmp_nlt_f32 vcc, v8, v9", f"v_cmp_ngt_f32 vcc, {hex(f2u(2.0**120))}, v8").replace("v_cmp_nlt_f32 vcc, v8, 0", "v_cmp_ngt_f32 vcc, -1.0, v8"))
    a("s_nop 0\ns_cbranch_vccnz L_fallback\nL_fbret:")
    a.vm_reset()
    trace(a, 113)
    finish_O(a, O_, S1, 51)
    trace(a, 114)
    a("s_waitcnt vmcnt(0)")
    trace(a, 115)
    put_flag(a, 53, 8)
    a("s_branch L_end")
    fallback(a)

def fallback(a):
    a(f"""
    L_fallback:
    v_and_b32 v7, 31, v3
    s_lshl_b32 s54, s{S_ODD}, 2
    v_subrev_u32 v8, s54, v7
    v_cmp_gt_u32 s[60:61], 28, v8
    v_mul_u32_u24 v9, 448, v2
    v_lshl_add_u32 v8, v8, 4, v9
    v_add_u32 v8, 256, v8
    v_mov_b32 v7, 0xff800000
    s_add_u32 s54, s{S_P0}, {KB}
    s_mov_b32 s56, 64
    L_fb1:
    buffer_load_dwordx4 {vr(KF,4)}, v5, {WS}, s54 offen sc1
    buffer_load_dwordx4 {vr(KF+4,4)}, v5, {WS}, s54 offen offset:1024 sc1
    s_add_u32 s54, s54, 28672
    s_waitcnt vmcnt(0)
    v_mfma_f32_32x32x16_bf16 {vr(S0,16)}, {vr(KF,4)}, {vr(QF,4)}, 0
    v_mfma_f32_32x32x16_bf16 {vr(S0,16)}, {vr(KF+4,4)}, {vr(QF+4,4)}, {vr(S0,16)}
    s_nop 11
    """)
    for r in range(0, 16, 2): a(f"v_max3_f32 v7, v7, v{S0+r}, v{S0+r+1}")
    a(f"""
    s_sub_u32 s56, s56, 1
    s_cmp_lg_u32 s56, 0
    s_cbranch_scc1 L_fb1
    v_mov_b32 v9, v7
    s_nop 1
    v_permlane32_swap_b32 v7, v9
    v_max_f32 v7, v7, v9
    """)
    for r in range(16): a(f"v_sub_f32 v{CM+r}, 0, v7\nv_mov_b32 v{O_+r}, 0")
    for r in range(8): a(f"v_mov_b32 v{V0+r}, {hex(ONES)}")
    a(f"""
    s_add_u32 s54, s{S_P0}, {KB}
    s_mul_i32 s57, s{S_HD}, {64*1792}
    s_add_u32 s57, s57, {VB - 256}
    s_mov_b32 s56, 64
    L_fb2:
    buffer_load_dwordx4 {vr(KF,4)}, v5, {WS}, s54 offen sc1
    buffer_load_dwordx4 {vr(KF+4,4)}, v5, {WS}, s54 offen offset:1024 sc1
    s_mov_b64 exec, s[60:61]
    buffer_load_dwordx4 {vr(V0,4)}, v8, {WS}, s57 offen sc1
    buffer_load_dwordx4 {vr(V1,4)}, v8, {WS}, s57 offen offset:896 sc1
    s_mov_b64 exec, -1
    s_add_u32 s54, s54, 28672
    s_add_u32 s57, s57, 1792
    s_waitcnt vmcnt(0)
    v_mfma_f32_32x32x16_bf16 {vr(S0,16)}, {vr(KF,4)}, {vr(QF,4)}, {vr(CM,16)}
    v_mfma_f32_32x32x16_bf16 {vr(S0,16)}, {vr(KF+4,4)}, {vr(QF+4,4)}, {vr(S0,16)}
    s_nop 11
    """)
    for r in range(16): a(f"v_exp_f32 v{S0+r}, v{S0+r}")
    a(f"""
    s_nop 1
    v_smfmac_f32_32x32x32_bf16 {vr(O_,16)}, {vr(V0,4)}, {vr(S0,8)}, v{IDX}
    v_smfmac_f32_32x32x32_bf16 {vr(O_,16)}, {vr(V1,4)}, {vr(S0+8,8)}, v{IDX}
    s_sub_u32 s56, s56, 1
    s_cmp_lg_u32 s56, 0
    s_nop 7
    s_cbranch_scc1 L_fb2
    s_nop 7
    s_branch L_fbret
    """)

OF, OACC, OW, OAD = 16, 80, 112, 144
def oproj_flag_load(a, F):
    a(f"""
    s_and_b32 s51, s{S_W4}, 1
    s_lshl_b32 s52, s{S_RB2}, 1
    s_add_u32 s52, s52, s51
    s_lshr_b32 s51, s{S_W4}, 1
    s_lshl_b32 s53, s52, 7
    s_lshl_b32 s54, s51, 6
    s_add_u32 s53, s53, s54
    s_add_u32 s62, s53, {F}
    v_and_b32 v{OAD+6}, 7, v0
    v_lshlrev_b32 v{OAD+6}, 3, v{OAD+6}
    """)
    a.vmem(f"buffer_load_dwordx2 {vr(OAD+4,2)}, v{OAD+6}, {WS}, s62 offen sc1", "oflag")
def oproj_flag_check(a):
    L = a.lab("of")
    a.vm_wait("oflag")
    a(f"""
    s_mov_b32 s63, 0
    {L}:
    v_cmp_ne_u64 vcc, s[{NON}:{NON+1}], {vr(OAD+4,2)}
    s_add_u32 s63, s63, 1
    s_cbranch_vccz {L}_ok
    s_cmp_ge_u32 s63, {SPIN_MAX}
    s_cbranch_scc1 {L}_ok
    s_sleep {X("OSLEEP", 1)}
    buffer_load_dwordx2 {vr(OAD+4,2)}, v{OAD+6}, {WS}, s62 offen sc1
    s_waitcnt vmcnt(0)
    s_branch {L}
    {L}_ok:
    """)
def oproj_loads(a, Ob):
    a(f"""
    s_and_b32 s51, s{S_W4}, 1
    s_lshl_b32 s52, s{S_RB2}, 1
    s_add_u32 s52, s52, s51
    s_lshr_b32 s51, s{S_W4}, 1
    s_lshl_b32 s53, s52, 15
    s_lshl_b32 s54, s51, 14
    s_add_u32 s53, s53, s54
    s_add_u32 s53, s53, {Ob}
    """)
    for k in range(16):
        a.vmem(f"buffer_load_dwordx4 {vr(OF+4*k,4)}, v6, {WS}, s53 offen offset:{(k&3)*1024} sc1", f"of{k}")
        if k & 3 == 3 and k < 15: a("s_add_u32 s53, s53, 4096")
def oproj_compute(a, br):
    LW = L_WOA if br == "A" else L_WOB
    L = a.lab("op")
    w_frag_addr(a, OAD, "0")
    a(f"""
    s_lshr_b32 s51, s{S_W4}, 1
    s_mul_i32 s52, s51, {224*128}
    s_add_u32 s52, s52, {LW}
    v_add_u32 v{OAD}, s52, v{OAD}
    v_xor_b32 v{OAD+1}, 64, v{OAD}
    """)
    NB = 4
    def reads(k):
        hd, s = k >> 1, k & 1
        row = 28 * hd - 4 * (hd & 1) + 16 * s
        f = OW + 8 * (k % NB)
        for n in range(2):
            a(f"ds_read_b64_tr_b16 {vr(f+4*n,2)}, v{OAD+n} offset:{row*128}")
            a(f"ds_read_b64_tr_b16 {vr(f+4*n+2,2)}, v{OAD+n} offset:{row*128+512}")
    for k in range(NB - 1): reads(k)
    for k in range(16):
        if k + NB - 1 < 16: reads(k + NB - 1)
        a.vm_wait(f"of{k}", f"lgkmcnt({4*min(NB-1, 15-k)})")
        f = OW + 8 * (k % NB)
        for n in range(2):
            d = vr(OACC + 16*n, 16)
            a(f"v_mfma_f32_32x32x16_bf16 {d}, {vr(f+4*n,4)}, {vr(OF+4*k,4)}, {d if k else 0}")
    trace(a, 116)
    a(f"s_lshl_b32 s52, s{S_W4}, 12\ns_xor_b32 s53, s52, 0x2000\ns_add_u32 s52, s52, {L_RED if br == 'A' else L_COMB}\ns_add_u32 s53, s53, {L_RED if br == 'A' else L_COMB}")
    fl = (0 if br == "A" else 16)
    a(f"""
    v_add_u32 v{OAD+2}, s52, v6
    v_add_u32 v{OAD+3}, s53, v6
    s_lshl_b32 s54, s{S_W4}, 2
    s_add_u32 s54, s54, {L_SYNC + fl}
    v_mov_b32 v{OAD+4}, s54
    v_xor_b32 v{OAD+5}, 8, v{OAD+4}
    v_mov_b32 v{OAD+6}, 1
    v_and_b32 v4, 31, v0
    v_mul_u32_u24 v4, 1792, v4
    v_lshl_add_u32 v4, v2, 4, v4
    s_and_b32 s54, s{S_W4}, 1
    s_lshl_b32 s55, s{S_RB2}, 1
    s_add_u32 s55, s55, s54
    s_mul_i32 s55, s55, {32*1792}
    s_lshl_b32 s54, s{S_CB2}, 7
    s_add_u32 s55, s55, s54
    s_lshl_b32 s54, s51, 6
    s_add_u32 s55, s55, s54
    s_cmp_eq_u32 s51, 0
    s_cbranch_scc1 {L}_k0
    """)
    for var in (1, 0):
        keep, send = OACC + 16 * var, OACC + 16 * (1 - var)
        if var == 0: a(f"{L}_k0:")
        for i in range(4): a(f"ds_write_b128 v{OAD+2}, {vr(send+4*i,4)} offset:{i*1024}")
        a(f"""
        s_waitcnt lgkmcnt(0)
        ds_write_b32 v{OAD+4}, v{OAD+6}
        s_mov_b32 s63, 0
        {L}_w{var}:
        ds_read_b32 v7, v{OAD+5}
        s_add_u32 s63, s63, 1
        s_waitcnt lgkmcnt(0)
        v_cmp_eq_u32 vcc, 0, v7
        s_cmp_ge_u32 s63, {SPIN_MAX*8}
        s_cbranch_scc1 {L}_g{var}
        s_cbranch_vccnz {L}_w{var}
        {L}_g{var}:
        """)
        for i in range(4): a(f"ds_read_b128 {vr(OF+4*i,4)}, v{OAD+3} offset:{i*1024}")
        for hf in range(2):
            a(f"s_waitcnt lgkmcnt({2 - 2*hf})")
            for r in range(8*hf, 8*hf+8): a(f"v_add_f32 v{keep+r}, v{keep+r}, v{OF+r}")
            for r in range(4*hf, 4*hf+4): a(f"v_cvt_pk_bf16_f32 v{OF+16+r}, v{keep+2*r}, v{keep+2*r+1}")
            a(f"buffer_store_dwordx4 {vr(OF+16+4*hf,4)}, v4, {sr(SRD_OUT)}, s55 offen offset:{(0 if br == 'A' else 896) + 32*hf} {os.environ.get('OUTF', '')}")
        if var == 1: a(f"s_branch {L}_e")
    a(f"{L}_e:")
    trace(a, 117)
    if TRACE: a("s_waitcnt vmcnt(0)")
    trace(a, 118)
def oproj(a, br):
    a(f"s_cmp_eq_u32 s{S_ACT2}, 0\ns_cbranch_scc1 L_end")
    trace(a, 113)
    oproj_flag_load(a, FOB); oproj_flag_check(a); a.vm_reset()
    trace(a, 114)
    oproj_loads(a, OB)
    trace(a, 115)
    oproj_compute(a, br)

def qkv_flag_loads(a, F, vt):
    a(f"""
    s_lshr_b32 s51, s{S_P0}, 11
    s_add_u32 s52, s{S_P0}, 1536
    s_lshr_b32 s52, s52, 11
    s_sub_u32 s52, s52, s51
    s_lshl_b32 s52, s52, 8
    v_mul_u32_u24 v{vt+6}, s52, v2
    v_min_u32 v4, 21, v1
    v_lshl_add_u32 v{vt+6}, v4, 3, v{vt+6}
    s_lshl_b32 s51, s51, 8
    s_add_u32 s61, s51, {F}
    s_add_u32 s62, s61, {28*256}
    """)
    qkv_flag_issue(a, vt)
def qkv_flag_issue(a, vt):
    a.vmem(f"buffer_load_dwordx2 {vr(vt,2)}, v{vt+6}, {WS}, s61 offen sc1", "qf")
    a.vmem(f"buffer_load_dwordx2 {vr(vt+2,2)}, v{vt+6}, {WS}, s61 offen offset:{14*256} sc1", "qf")
    a.vmem(f"buffer_load_dwordx2 {vr(vt+4,2)}, v{vt+6}, {WS}, s62 offen sc1", "qf")
def qkv_flag_check(a, vt):
    L = a.lab("qf")
    a.vm_wait("qf")
    a(f"""
    s_mov_b32 s63, 0
    {L}:
    v_cmp_ne_u64 vcc, s[{NON}:{NON+1}], {vr(vt,2)}
    v_cmp_ne_u64 s[52:53], s[{NON}:{NON+1}], {vr(vt+2,2)}
    v_cmp_ne_u64 s[54:55], s[{NON}:{NON+1}], {vr(vt+4,2)}
    s_add_u32 s63, s63, 1
    s_or_b64 s[52:53], s[52:53], vcc
    s_or_b64 s[52:53], s[52:53], s[54:55]
    s_cbranch_scc0 {L}_ok
    s_cmp_ge_u32 s63, {SPIN_MAX}
    s_cbranch_scc1 {L}_ok
    s_sleep {X("QSLEEP", 4)}
    """)
    keep = list(a.vm)
    qkv_flag_issue(a, vt)
    a.vm = keep
    a(f"s_waitcnt vmcnt(0)\ns_branch {L}\n{L}_ok:")

def service(a):
    a("L_sv:\ns_setprio 3")
    a.vm_reset()
    a(f"""
    v_lshrrev_b32 v1, 3, v0
    v_and_b32 v2, 7, v0
    v_lshrrev_b32 v3, 1, v1
    s_and_b32 s51, s3, 1
    s_lshl_b32 s51, s51, 2
    v_add_u32 v4, s51, v3
    v_xor_b32 v4, v2, v4
    v_lshlrev_b32 v4, 4, v4
    v_mul_u32_u24 v5, 896, v1
    v_add_u32 v8, v4, v5
    v_add_u32 v9, 28672, v8
    v_add_u32 v10, 57344, v8
    v_and_b32 v3, 1, v3
    v_lshlrev_b32 v3, 2, v3
    v_xor_b32 v4, v2, v3
    v_lshlrev_b32 v4, 4, v4
    v_add_u32 v15, v4, v5
    v_mul_u32_u24 v5, 2688, v1
    v_add_u32 v11, v4, v5
    v_add_u32 v12, {32*2688}, v11
    v_add_u32 v13, 128, v11
    v_add_u32 v14, 128, v12
    s_lshl_b32 s51, s{S_W4}, 3
    s_add_u32 s56, s{S_ROW}, s51
    s_mul_i32 s56, s56, 896
    s_mul_i32 s57, s51, 2688
    s_lshl_b32 s52, s{S_COL}, 6
    s_add_u32 s57, s57, s52
    s_lshl_b32 s58, s{S_W4}, 10
    s_waitcnt lgkmcnt(0)
    """)
    srd(a, SRD_XB, P + 6, 1835008); srd(a, SRD_WB, P + 8, 448 * 2688)
    a(f"s_cmp_eq_u32 s{S_ACT}, 0\ns_cbranch_scc1 L_sv_nog")
    def issue(g):
        Xs, W = (SRD_XB, SRD_WB) if g < 7 else (SRD_XA, SRD_WA)
        slot = (g % GNS) * GSLOT
        c = g % 7
        a(f"s_add_u32 s60, s56, {c*128}\ns_add_u32 s61, s57, {c*64*2688}")
        order = [('x', 0), ('w', 0), ('w', 2), ('x', 1), ('w', 1), ('w', 3), ('x', 2)]
        for kind, u in order:
            if kind == 'x':
                a(f"s_add_u32 m0, s58, {slot + u * 4096}\ns_nop 0")
                a.vmem(f"buffer_load_dwordx4 v{8+u}, {sr(Xs)}, s60 offen lds", f"g{g}")
            else:
                j, v = u >> 1, u & 1
                a(f"s_add_u32 m0, s58, {slot + 12288 + j * 8192 + v * 4096}\ns_nop 0")
                a.vmem(f"buffer_load_dwordx4 v{11 + 2*j + v}, {sr(W)}, s61 offen lds", f"g{g}")
    PRE = X("PRE", 2)
    issue(0)
    def rest_srds():
        srd(a, SRD_XA, P + 0, 1835008); srd(a, SRD_WA, P + 2, 448 * 2688)
        srd(a, SRD_WS, P + 16, WS_SIZE); srd(a, SRD_DBG, P + 14, 256); srd(a, SRD_OUT, P + 12, 2048 * 1792)
    rest_srds()
    a(f"""
    s_sub_u32 s51, s3, 8
    s_or_b32 s51, s51, s2
    s_cmp_eq_u32 s51, 0
    s_cbranch_scc0 L_nonon
    s_memrealtime s[52:53]
    v_mov_b32 v18, 0
    s_waitcnt lgkmcnt(0)
    s_or_b32 s53, s53, 0x80000000
    v_mov_b32 v16, s52
    v_mov_b32 v17, s53
    s_mov_b64 exec, 1
    buffer_store_dwordx2 v[16:17], v18, {sr(SRD_DBG)}, 0 offen sc1
    s_mov_b64 exec, -1
    L_nonon:
    """)
    VW, VVA, VVB, FL = 160, 161, 162, 150
    A = AttnA(a)
    def sv_setup():
        a("v_mov_b32 v160, v15")
        setup2(a)
        a(f"""
        v_mul_u32_u24 v7, 448, v2
        v_lshl_add_u32 v7, v1, 4, v7
        s_lshl_b32 s51, s{S_ODD}, 6
        s_sub_u32 s51, 256, s51
        v_add_u32 v{VVA}, s51, v7
        v_subrev_u32 v{VVB}, 128, v{VVA}
        v_lshlrev_b32 v163, 12, v0
        v_add_u32 v163, {L_RELAY}, v163
        s_lshl_b32 s51, s{S_W4}, 12
        s_add_u32 s51, s51, {L_RELAY}
        v_mov_b32 v164, s51
        v_mov_b32 v7, 0
        ds_write_b32 v164, v7
        """)
        A.masks()
        a("s_waitcnt lgkmcnt(0)")
    issued = 1
    while issued < PRE: issue(issued); issued += 1
    sv_setup()
    for c in range(14):
        trace(a, 1 + 3*c)
        a.vm_wait(f"g{c}")
        trace(a, 2 + 3*c)
        a("s_barrier")
        trace(a, 3 + 3*c)
        if c == 0: stamp(a, 1)
        while issued <= min(13, c + GNS - 1): issue(issued); issued += 1
        if c == 10: nonce_load(a, 144)
        if c == X("FBAT", 12): qkv_flag_loads(a, FB, FL)
    a("s_branch L_sv_att\nL_sv_nog:")
    rest_srds()
    sv_setup()
    nonce_load(a, 144)
    qkv_flag_loads(a, FB, FL)
    a("s_barrier\nL_sv_att:\ns_waitcnt vmcnt(0)")
    a.vm_reset()
    srd(a, SRD_WOA, P + 4, 448 * 896); srd(a, SRD_WOB, P + 10, 448 * 896)
    nonce_get(a, 144)
    a(f"""
    s_lshl_b32 s58, s{S_W4}, 12
    s_mul_i32 s59, s{S_W4}, 28672
    s_add_u32 s59, s59, s{S_P0}
    s_lshl_b32 s60, s{S_HD}, 6
    s_add_u32 s60, s60, s{S_W4}
    s_mul_i32 s60, s60, 1792
    s_add_u32 s60, s60, {VB - 256}
    s_cmp_eq_u32 s{S_W4}, 0
    s_cbranch_scc0 L_relay
    """)
    qkv_flag_check(a, FL)
    a(f"""
    v_mov_b32 v7, 1
    s_mov_b64 exec, 14
    ds_write_b32 v163, v7
    s_mov_b64 exec, -1
    s_branch L_relay_ok
    L_relay:
    v_cmp_ne_u64 vcc, s[{NON}:{NON+1}], {vr(FL,2)}
    v_cmp_ne_u64 s[52:53], s[{NON}:{NON+1}], {vr(FL+2,2)}
    v_cmp_ne_u64 s[54:55], s[{NON}:{NON+1}], {vr(FL+4,2)}
    s_mov_b32 s63, 0
    s_or_b64 s[52:53], s[52:53], vcc
    s_or_b64 s[52:53], s[52:53], s[54:55]
    s_cbranch_scc0 L_relay_ok
    L_relay_w:
    ds_read_b32 v7, v164
    s_add_u32 s63, s63, 1
    s_waitcnt lgkmcnt(0)
    v_cmp_eq_u32 vcc, 0, v7
    s_cmp_ge_u32 s63, {SPIN_MAX*16}
    s_cbranch_scc1 L_relay_ok
    s_cbranch_vccz L_relay_ok
    s_sleep 1
    s_branch L_relay_w
    L_relay_ok:
    """)
    stamp(a, 2)
    trace(a, 44)
    a(f"""
    s_mul_i32 s56, s{S_QB}, {4*28672}
    s_add_u32 s56, s56, s59
    s_lshl_b32 s51, s{S_W4}, 11
    s_add_u32 m0, s51, {L_Q}
    s_add_u32 s59, s59, {KB}
    """)
    a.vmem(f"buffer_load_dwordx4 v6, {WS}, s56 offen sc1 lds", "a0")
    a.vmem(f"buffer_load_dwordx4 v6, {WS}, s56 offen offset:1024 sc1 lds", "a0")
    def dma(st):
        a(f"s_add_u32 m0, s58, {slot_addr(st)}\ns_add_u32 s56, s59, {st*4*28672}")
        a.vmem(f"buffer_load_dwordx4 v6, {WS}, s56 offen sc1 lds", f"a{st}")
        a.vmem(f"buffer_load_dwordx4 v6, {WS}, s56 offen offset:1024 sc1 lds", f"a{st}")
        a(f"s_add_u32 m0, s58, {slot_addr(st) + 2048}\ns_add_u32 s57, s60, {st*4*1792}\ns_mov_b64 exec, s[{VMASK}:{VMASK+1}]")
        a.vmem(f"buffer_load_dwordx4 v{VVA}, {WS}, s57 offen sc1 lds", f"a{st}")
        a.vmem(f"buffer_load_dwordx4 v{VVB}, {WS}, s57 offen offset:1024 sc1 lds", f"a{st}")
        a("s_mov_b64 exec, -1")
    def wo_dma(W, lds, i0, n, tag):
        a(f"""
        s_mul_i32 s51, s{S_W4}, {8*896}
        s_lshl_b32 s52, s{S_CB2}, 7
        s_add_u32 s51, s51, s52
        s_lshl_b32 s52, s{S_W4}, 10
        """)
        for j in range(i0, i0 + n):
            a(f"s_add_u32 m0, s52, {lds + j*4096}\ns_add_u32 s53, s51, {j*32*896}")
            a.vmem(f"buffer_load_dwordx4 v{VW}, {sr(W)}, s53 offen lds", tag)
    APRE = X("APRE", 3)
    for st in range(APRE): dma(st)
    issued = APRE
    bars = [-2] + ABAR
    for i, n in enumerate(bars):
        need = bars[i + 1] // 2 if i + 1 < len(bars) else 15
        trace(a, 64 + 3*i)
        a.vm_wait(f"a{need}", "lgkmcnt(0)" if i == 0 else "")
        trace(a, 65 + 3*i)
        a("s_barrier")
        trace(a, 66 + 3*i)
        if n == 12: qkv_flag_loads(a, FA, FL)
        if n == 28: oproj_flag_load(a, FOA)
        while issued <= min(15, max(n // 2 - 1, -1) + ANS): dma(issued); issued += 1
        if n == 0: wo_dma(SRD_WOB, L_WOB, 0, 5, "wob")
        if n == 4: wo_dma(SRD_WOB, L_WOB, 5, 5, "wob")
        if n == 8: wo_dma(SRD_WOB, L_WOB, 10, 4, "wob"); wo_dma(SRD_WOA, L_WOA, 0, 2, "woa")
        if n == 12: qkv_flag_check(a, FL); A.loads()
        if n == 16: A.qk(); A.pv(); a("s_nop 7"); A.fin()
        if n == 20: A.pub()
        if n == 24: wo_dma(SRD_WOA, L_WOA, 2, 8, "woa")
        if n == 28:
            wo_dma(SRD_WOA, L_WOA, 10, 4, "woa")
            oproj_flag_check(a)
            oproj_loads(a, OA)
    a.vm_wait("woa")
    a("s_barrier")
    a(f"""
    v_mov_b32 v7, {L_SYNC}
    v_lshl_add_u32 v7, v0, 2, v7
    v_mov_b32 v8, 0
    s_mov_b64 exec, 0xff
    ds_write_b32 v7, v8
    s_mov_b64 exec, -1
    s_waitcnt lgkmcnt(0)
    s_barrier
    """)
    stamp(a, 3)
    trace(a, 113)
    a(f"s_cmp_eq_u32 s{S_ACT2}, 0\ns_cbranch_scc1 L_end")
    oproj_compute(a, "A")

class AttnA:
    Q, KP, KC, VP, VC, SP, SC, OO, T, IX = 80, 88, 96, 112, 116, 16, 32, 48, 64, 124
    def __init__(s, a): s.a = a
    def tq(s): s.a(f"s_lshl_b32 s51, s{S_QB}, 2\ns_add_u32 s51, s51, s{S_W4}")
    def masks(s):
        a = s.a; s.tq()
        a(f"""
        v_lshlrev_b32 v7, 3, v2
        v_sub_u32 v7, v1, v7
        v_add_u32 v7, 18, v7
        v_mov_b32 v126, 0x5555
        v_mov_b32 v127, 0
        v_lshlrev_b64 v[126:127], v7, v[126:127]
        s_cmp_eq_u32 s51, 0
        s_cselect_b32 s52, 0, -1
        v_and_b32 v126, s52, v126
        v_not_b32 v126, v126
        v_not_b32 v127, v127
        s_mov_b32 s52, 0xf149f2ca
        v_mov_b32 v{s.IX}, 0xdddddddd
        """)
        for r in range(16):
            g, i = r >> 2, r & 3
            c = 16 * (g >> 1) + 4 * (g & 1) + i
            a(f"v_bfe_i32 v{s.SC+r}, v127, {c}, 1\nv_and_b32 v{s.SC+r}, s52, v{s.SC+r}")
            if r >= 8: a(f"v_bfe_i32 v{s.SP+r}, v126, {c}, 1\nv_and_b32 v{s.SP+r}, s52, v{s.SP+r}")
            else: a(f"v_mov_b32 v{s.SP+r}, 0")
            a(f"v_mov_b32 v{s.OO+r}, 0")
        for r in range(12): a(f"v_mov_b32 v{s.VP+r}, {hex(ONES)}")
    def loads(s):
        a = s.a; s.tq()
        a(f"""
        s_mul_i32 s52, s51, 28672
        s_add_u32 s52, s52, s{S_P0}
        s_add_u32 s53, s52, {KA}
        s_add_u32 s52, s52, {QA}
        s_cmp_eq_u32 s51, 0
        s_cselect_b32 s54, 0, 28672
        s_cselect_b32 s55, 0, 1792
        s_sub_u32 s54, s53, s54
        """)
        a.vmem(f"buffer_load_dwordx4 {vr(s.Q,4)}, v6, {WS}, s52 offen sc1", "aq")
        a.vmem(f"buffer_load_dwordx4 {vr(s.Q+4,4)}, v6, {WS}, s52 offen offset:1024 sc1", "aq")
        a.vmem(f"buffer_load_dwordx4 {vr(s.KP,4)}, v5, {WS}, s54 offen sc1", "aq")
        a.vmem(f"buffer_load_dwordx4 {vr(s.KP+4,4)}, v5, {WS}, s54 offen offset:1024 sc1", "aq")
        a.vmem(f"buffer_load_dwordx4 {vr(s.KC,4)}, v5, {WS}, s53 offen sc1", "aq")
        a.vmem(f"buffer_load_dwordx4 {vr(s.KC+4,4)}, v5, {WS}, s53 offen offset:1024 sc1", "aq")
        a(f"""
        s_lshl_b32 s52, s{S_HD}, 6
        s_add_u32 s52, s52, s51
        s_mul_i32 s52, s52, 1792
        s_add_u32 s52, s52, {VA - 256}
        s_sub_u32 s55, s52, s55
        v_and_b32 v7, 31, v3
        s_lshl_b32 s53, s{S_ODD}, 2
        v_subrev_u32 v8, s53, v7
        v_cmp_gt_u32 vcc, 28, v8
        v_mul_u32_u24 v9, 448, v2
        v_lshl_add_u32 v8, v8, 4, v9
        v_add_u32 v8, 256, v8
        """)
        a("s_mov_b64 exec, vcc")
        a.vmem(f"buffer_load_dwordx4 {vr(s.VP,4)}, v8, {WS}, s55 offen offset:896 sc1", "aq")
        a.vmem(f"buffer_load_dwordx4 {vr(s.VC,4)}, v8, {WS}, s52 offen sc1", "aq")
        a.vmem(f"buffer_load_dwordx4 {vr(s.VC+4,4)}, v8, {WS}, s52 offen offset:896 sc1", "aq")
        a("s_mov_b64 exec, -1")
    def qk(s):
        a = s.a
        a.vm_wait("aq")
        zero_qpad(a, s.Q)
        a(f"""
        s_nop 0
        v_mfma_f32_32x32x16_bf16 {vr(s.SP,16)}, {vr(s.KP,4)}, {vr(s.Q,4)}, {vr(s.SP,16)}
        v_mfma_f32_32x32x16_bf16 {vr(s.SC,16)}, {vr(s.KC,4)}, {vr(s.Q,4)}, {vr(s.SC,16)}
        v_mfma_f32_32x32x16_bf16 {vr(s.SP,16)}, {vr(s.KP+4,4)}, {vr(s.Q+4,4)}, {vr(s.SP,16)}
        v_mfma_f32_32x32x16_bf16 {vr(s.SC,16)}, {vr(s.KC+4,4)}, {vr(s.Q+4,4)}, {vr(s.SC,16)}
        """)
        a("s_nop 11")
        s.regs = regs = list(range(s.SP + 8, s.SP + 16)) + list(range(s.SC, s.SC + 16))
        a(f"v_max_f32 v7, v{regs[0]}, v{regs[1]}")
        for k in range(2, 24, 2): a(f"v_max3_f32 v7, v7, v{regs[k]}, v{regs[k+1]}")
        a("v_mov_b32 v8, v7\ns_nop 1\nv_permlane32_swap_b32 v7, v8\nv_max_f32 v7, v7, v8")
        for r in regs: a(f"v_sub_f32 v{r}, v{r}, v7")
    def pv(s):
        a = s.a
        for r in s.regs: a(f"v_exp_f32 v{r}, v{r}")
        a(f"""
        v_smfmac_f32_32x32x32_bf16 {vr(s.OO,16)}, {vr(s.VP,4)}, {vr(s.SP+8,8)}, v{s.IX}
        v_smfmac_f32_32x32x32_bf16 {vr(s.OO,16)}, {vr(s.VC,4)}, {vr(s.SC,8)}, v{s.IX}
        v_smfmac_f32_32x32x32_bf16 {vr(s.OO,16)}, {vr(s.VC+4,4)}, {vr(s.SC+8,8)}, v{s.IX}
        """)
    def fin(s):
        a = s.a; s.tq()
        a(f"""
        s_lshl_b32 s51, s51, 4
        s_add_u32 s51, s51, s{S_HD}
        s_lshl_b32 s51, s51, 11
        s_add_u32 s51, s51, {OA}
        """)
        finish_O(a, s.OO, s.T, 51)
    def pub(s):
        a = s.a; s.tq()
        a(f"""
        s_lshl_b32 s51, s51, 4
        s_add_u32 s51, s51, s{S_HD}
        s_lshl_b32 s51, s51, 3
        s_add_u32 s51, s51, {FOA}
        """)
        a.vm_wait("ost")
        put_flag(a, 51, 8)

def main(out):
    a = Asm()
    setup(a)
    service(a)
    a("s_branch L_end\nL_comp:")
    a.vm_reset()
    gemm_compute(a)
    attn_compute(a)
    a("L_end:")
    stamp_out(a)
    a("L_exit:\ns_endpgm")
    kn = NAME + "_kernel"
    if X("LIST"): hdr = f"; @launch kernel={kn} grid=(256,1,1) block=(768,1,1) lds=163840\n"
    else: hdr = "; @launch grid=(256,1,1) block=(768,1,1) lds=163840\n"
    hdr += f'.amdgcn_target "amdgcn-amd-amdhsa--gfx950"\n.text\n.globl {kn}\n.p2align 8\n.type {kn},@function\n{kn}:\n'
    desc = f""".section .rodata,"a"
.p2align 6
.amdhsa_kernel {kn}
  .amdhsa_next_free_vgpr 168
  .amdhsa_next_free_sgpr 102
  .amdhsa_accum_offset 168
  .amdhsa_group_segment_fixed_size 0
  .amdhsa_kernarg_size 72
  .amdhsa_user_sgpr_count 2
  .amdhsa_user_sgpr_kernarg_segment_ptr 1
  .amdhsa_system_sgpr_workgroup_id_x 1
.end_amdhsa_kernel
"""
    txt = hdr + a.text() + desc
    open(out, "w").write(txt)
    e = lint(txt)
    for x in e: print("HAZARD", x)
    print("written", out, len(txt), "bytes;", len(e), "hazards")

if __name__ == "__main__":
    main(sys.argv[1] if len(sys.argv) > 1 else f"cdna_kernels/{NAME}.s")
```

```python
import sys, math, os, struct
from lint import lint

NAME = "concat_heads__sliding_local_dilated__mha_block__prompt"
def X(k, d=0): return int(os.environ.get(k, str(d)))
SEC = 1835008
QB, KB, VB, QA, KA, VA = [i * SEC for i in range(6)]
OA = 6 * SEC
OB = OA + 0x200000
FB = OB + 0x200000
FA = FB + 42 * 4096
FOA = FA + 42 * 4096
FOB = FOA + 0x20000
WS_SIZE = FOB + 0x20000
QSCALE = (28 ** -0.5) * math.log2(math.e)
def f2u(x): return struct.unpack('<I', struct.pack('<f', x))[0]
STAMP = X("STAMP")
TS_OFF = 0x1000000
SPIN_MAX = 400000

class Asm:
    def __init__(self): self.l = []; self.vm = []; self.nlab = 0
    def __call__(self, s):
        for x in s.strip('\n').split('\n'):
            x = x.strip()
            if not x: continue
            self.l.append(x if x.endswith(':') else '    ' + x)
    def text(self): return '\n'.join(self.l) + '\n'
    def lab(self, p):
        self.nlab += 1; return f"{p}_{self.nlab}"
    def vm_reset(self): self.vm = []
    def vmem(self, ins, tag):
        self(ins); self.vm.append(tag)
    def vm_wait(self, tag, extra=""):
        idx = [i for i, t in enumerate(self.vm) if t == tag]
        if not idx:
            if extra: self(f"s_waitcnt {extra}")
            return
        n = len(self.vm) - 1 - idx[-1]
        assert n < 64
        self(f"s_waitcnt vmcnt({n}) {extra}")
        self.vm = self.vm[idx[-1] + 1:]

def vr(a, n): return "v[%d:%d]" % (a, a + n - 1)
def sr(a, n=4): return "s[%d:%d]" % (a, a + n - 1)

SRD_XB, SRD_WB, SRD_XA, SRD_WA, SRD_WS, SRD_OUT, SRD_DBG = 4, 8, 12, 16, 20, 24, 28
SRD_WOA, SRD_WOB = 4, 8
NON = 32
S_HD, S_QB, S_ODD, S_P0 = 34, 35, 36, 37
S_RB, S_CB, S_ROW, S_COL, S_ACT = 38, 39, 40, 41, 42
S_RB2, S_CB2, S_ACT2 = 43, 44, 45
VMASK, QPAD = 46, 48
S_W4 = 50
T0 = 51
P = 64
WS = sr(SRD_WS)

def srd(a, d, ptr, size):
    a(f"s_mov_b32 s{d}, s{ptr}\ns_mov_b32 s{d+1}, s{ptr+1}\ns_mov_b32 s{d+2}, {size}\ns_mov_b32 s{d+3}, 0x20000")

def stamp(a, i):
    if STAMP: a(f"s_memtime s[{82+4*i}:{83+4*i}]\ns_memrealtime s[{84+4*i}:{85+4*i}]\ns_waitcnt lgkmcnt(0)")
TRACE = X("TRACE")
def trace(a, idx, reg=165):
    if TRACE: a(f"s_memtime s[98:99]\ns_waitcnt lgkmcnt(0)\nv_writelane_b32 v{reg + idx // 64}, s98, {idx % 64}")
def stamp_out(a):
    if TRACE:
        a(f"""
        s_mov_b32 s22, 0x2000000
        s_lshl_b32 s4, s2, 4
        s_add_u32 s4, s4, s3
        s_lshl_b32 s4, s4, 9
        s_add_u32 s4, s4, {TS_OFF + 0x100000}
        v_lshlrev_b32 v1, 2, v0
        buffer_store_dword v165, v1, s[20:23], s4 offen
        buffer_store_dword v166, v1, s[20:23], s4 offen offset:256
        """)
    if not STAMP: return
    a("s_waitcnt vmcnt(0)")
    stamp(a, 4)
    a(f"""
    s_mov_b32 s22, 0x2000000
    s_lshl_b32 s4, s2, 4
    s_add_u32 s4, s4, s3
    s_lshl_b32 s4, s4, 6
    s_add_u32 s4, s4, {TS_OFF}
    """)
    for i in range(5):
        a(f"v_mov_b32 v{8+2*i}, s{84+4*i}\nv_mov_b32 v{9+2*i}, s{82+4*i}")
    a(f"""
    v_mov_b32 v1, 0
    s_mov_b64 exec, 1
    buffer_store_dwordx4 v[8:11], v1, s[20:23], s4 offen
    buffer_store_dwordx4 v[12:15], v1, s[20:23], s4 offen offset:16
    buffer_store_dwordx2 v[16:17], v1, s[20:23], s4 offen offset:32
    """)

GNS = 4
GSLOT = 28672
ANS = 6
L_WOB, L_Q, L_RING = 0, 57344, 65536
L_WOA = L_Q
def slot_addr(st): return L_RING + ((st % ANS + 2) % ANS) * 16384
L_COMB = slot_addr(13)
L_RED = slot_addr(15)
L_SYNC = slot_addr(14)
L_RELAY = slot_addr(3)
ABAR = [0, 4, 8, 12, 16, 20, 24, 28]
ONES = 0x3F803F80

def setup(a):
    if TRACE: a("v_mov_b32 v165, 0\nv_mov_b32 v166, 0"); trace(a, 0)
    if STAMP:
        for i in range(86, 98, 2): a(f"s_mov_b64 s[{i}:{i+1}], 0")
        a("s_memtime s[82:83]\ns_memrealtime s[84:85]")
    a(f"""
    s_cmp_ge_u32 s2, 256
    s_cbranch_scc1 L_exit
    s_load_dwordx16 s[64:79], s[0:1], 0
    s_load_dwordx2 s[80:81], s[0:1], 64
    v_lshrrev_b32 v1, 6, v0
    v_and_b32 v0, 63, v0
    v_readfirstlane_b32 s3, v1
    s_and_b32 s51, s2, 7
    s_lshr_b32 s52, s2, 3
    s_mul_i32 s53, s51, 31
    s_add_u32 s53, s53, s52
    s_cmp_lt_u32 s52, 31
    s_cselect_b32 s{S_ACT}, 1, 0
    s_cmp_lt_u32 s53, 242
    s_cselect_b32 s{S_ACT}, s{S_ACT}, 0
    s_mul_i32 s{S_RB}, s53, 171
    s_lshr_b32 s{S_RB}, s{S_RB}, 10
    s_mul_i32 s{S_CB}, s{S_RB}, 6
    s_sub_u32 s{S_CB}, s53, s{S_CB}
    s_sub_u32 s54, s53, 132
    s_mul_i32 s55, s54, 205
    s_lshr_b32 s55, s55, 10
    s_mul_i32 s56, s55, 5
    s_sub_u32 s56, s54, s56
    s_add_u32 s56, s56, 6
    s_cmp_ge_u32 s53, 132
    s_cselect_b32 s{S_RB}, s55, s{S_RB}
    s_cselect_b32 s{S_CB}, s56, s{S_CB}
    s_mul_i32 s{S_ROW}, s{S_RB}, 96
    s_min_u32 s{S_ROW}, s{S_ROW}, 1952
    s_lshl_b32 s{S_COL}, s{S_CB}, 2
    s_min_u32 s{S_COL}, s{S_COL}, 38
    s_and_b32 s{S_W4}, s3, 3
    s_cmp_ge_u32 s3, 8
    s_cbranch_scc0 L_comp
    """)

def setup2(a):
    a(f"""
    s_and_b32 s51, s2, 7
    s_lshl_b32 s{S_HD}, s51, 1
    s_bfe_u32 s{S_ODD}, s2, 0x10003
    s_add_u32 s{S_HD}, s{S_HD}, s{S_ODD}
    s_lshr_b32 s{S_QB}, s2, 4
    s_mul_i32 s{S_P0}, s{S_HD}, 7
    s_lshr_b32 s{S_P0}, s{S_P0}, 1
    s_lshl_b32 s{S_P0}, s{S_P0}, 9
    s_lshr_b32 s52, s2, 3
    s_cmp_lt_u32 s52, 28
    s_cselect_b32 s{S_ACT2}, 1, 0
    s_mul_i32 s{S_RB2}, s52, 37
    s_lshr_b32 s{S_RB2}, s{S_RB2}, 8
    s_mul_i32 s53, s{S_RB2}, 7
    s_sub_u32 s{S_CB2}, s52, s53
    s_lshl_b32 s51, s51, 2
    s_add_u32 s{S_RB2}, s{S_RB2}, s51
    s_min_u32 s{S_RB2}, s{S_RB2}, 31
    s_cmp_eq_u32 s{S_ODD}, 0
    s_cselect_b32 s{VMASK}, 0x0fffffff, -16
    s_mov_b32 s{VMASK+1}, s{VMASK}
    s_cselect_b32 s{QPAD}, 0, -1
    s_cselect_b32 s{QPAD+1}, -1, 0
    v_and_b32 v1, 31, v0
    v_lshrrev_b32 v2, 5, v0
    v_and_b32 v3, 51, v0
    v_bfe_u32 v4, v0, 2, 1
    v_lshl_add_u32 v3, v4, 3, v3
    v_bfe_u32 v4, v0, 3, 1
    v_lshl_add_u32 v3, v4, 2, v3
    v_lshlrev_b32 v5, 4, v3
    v_lshlrev_b32 v6, 4, v0
    """)

def nonce_load(a, vt):
    a(f"v_mov_b32 v{vt+2}, 0")
    a.vmem(f"buffer_load_dwordx2 {vr(vt,2)}, v{vt+2}, {sr(SRD_DBG)}, 0 offen sc1", "non")
def nonce_get(a, vt):
    L = a.lab("non")
    a(f"""
    s_mov_b32 s63, 0
    {L}:
    v_readfirstlane_b32 s{NON}, v{vt}
    v_readfirstlane_b32 s{NON+1}, v{vt+1}
    s_add_u32 s63, s63, 1
    s_cmp_lg_u32 s{NON+1}, 0
    s_cbranch_scc1 {L}_ok
    s_cmp_ge_u32 s63, {SPIN_MAX}
    s_cbranch_scc1 {L}_ok
    s_sleep 4
    buffer_load_dwordx2 {vr(vt,2)}, v{vt+2}, {sr(SRD_DBG)}, 0 offen sc1
    s_waitcnt vmcnt(0)
    s_branch {L}
    {L}_ok:
    """)

def put_flag(a, soff, vt):
    a(f"""
    v_mov_b32 v{vt}, s{NON}
    v_mov_b32 v{vt+1}, s{NON+1}
    v_mov_b32 v{vt+2}, 0
    s_mov_b64 exec, 1
    """)
    a.vmem(f"buffer_store_dwordx2 {vr(vt,2)}, v{vt+2}, {WS}, s{soff} offen sc1", "flag")
    a("s_mov_b64 exec, -1")

def zero_qpad(a, q):
    L = a.lab("zq")
    a(f"""
    s_mov_b64 exec, s[{QPAD}:{QPAD+1}]
    s_cmp_eq_u32 s{S_ODD}, 0
    s_cbranch_scc0 {L}_o
    v_mov_b32 v{q+6}, 0
    v_mov_b32 v{q+7}, 0
    s_branch {L}_d
    {L}_o:
    v_mov_b32 v{q}, 0
    v_mov_b32 v{q+1}, 0
    {L}_d:
    s_mov_b64 exec, -1
    """)

def finish_O(a, o, tmp, soff):
    L = a.lab("fo")
    a(f"""
    s_cmp_eq_u32 s{S_ODD}, 0
    s_cbranch_scc0 {L}_o
    v_mov_b32 v{tmp}, v{o+12}
    v_mov_b32 v{tmp+1}, v{o+12}
    s_nop 1
    v_permlane32_swap_b32 v{tmp}, v{tmp+1}
    v_rcp_f32 v{tmp}, v{tmp+1}
    s_mov_b64 exec, s[{QPAD}:{QPAD+1}]
    v_mov_b32 v{o+12}, 0
    v_mov_b32 v{o+13}, 0
    v_mov_b32 v{o+14}, 0
    v_mov_b32 v{o+15}, 0
    s_branch {L}_d
    {L}_o:
    v_mov_b32 v{tmp}, v{o}
    v_mov_b32 v{tmp+1}, v{o}
    s_nop 1
    v_permlane32_swap_b32 v{tmp}, v{tmp+1}
    v_rcp_f32 v{tmp}, v{tmp}
    s_mov_b64 exec, s[{QPAD}:{QPAD+1}]
    v_mov_b32 v{o}, 0
    v_mov_b32 v{o+1}, 0
    v_mov_b32 v{o+2}, 0
    v_mov_b32 v{o+3}, 0
    {L}_d:
    s_mov_b64 exec, -1
    """)
    for r in range(8): a(f"v_mul_f32 v{o+r}, v{tmp}, v{o+r}")
    for r in range(4): a(f"v_cvt_pk_bf16_f32 v{tmp+4+r}, v{o+2*r}, v{o+2*r+1}")
    a.vmem(f"buffer_store_dwordx4 {vr(tmp+4,4)}, v6, {WS}, s{soff} offen sc1", "ost")
    for r in range(8, 16): a(f"v_mul_f32 v{o+r}, v{tmp}, v{o+r}")
    for r in range(4, 8): a(f"v_cvt_pk_bf16_f32 v{tmp+4+r}, v{o+2*r}, v{o+2*r+1}")
    a.vmem(f"buffer_store_dwordx4 {vr(tmp+8,4)}, v6, {WS}, s{soff} offen offset:1024 sc1", "ost")

def w_frag_addr(a, dst, half_expr):
    a(f"""
    v_lshrrev_b32 v7, 5, v0
    v_bfe_u32 v4, v0, 2, 2
    v_lshl_add_u32 v{dst}, v7, 3, v4
    v_lshlrev_b32 v{dst}, 7, v{dst}
    v_lshrrev_b32 v4, 1, v4
    v_xor_b32 v4, {half_expr}, v4
    v_lshl_add_u32 v{dst}, v4, 6, v{dst}
    v_bfe_u32 v4, v0, 4, 1
    v_lshl_add_u32 v{dst}, v4, 5, v{dst}
    v_and_b32 v4, 1, v0
    v_lshl_add_u32 v{dst}, v4, 4, v{dst}
    v_bfe_u32 v4, v0, 1, 1
    v_lshl_add_u32 v{dst}, v4, 3, v{dst}
    """)

def gemm_compute(a):
    ACC, FR, GO = 88, 24, 136
    a(f"""
    s_waitcnt lgkmcnt(0)
    """)
    srd(a, SRD_WS, P + 16, WS_SIZE); srd(a, SRD_DBG, P + 14, 256); srd(a, SRD_OUT, P + 12, 2048 * 1792)
    setup2(a)
    a(f"""
    v_mov_b32 v162, 0
    s_cmp_eq_u32 s{S_ACT}, 0
    s_cbranch_scc1 L_gidle
    v_lshrrev_b32 v4, 1, v1
    v_and_b32 v4, 7, v4
    v_xor_b32 v4, v4, v2
    v_lshlrev_b32 v4, 4, v4
    v_lshl_add_u32 v8, v1, 7, v4
    v_xor_b32 v9, 32, v8
    v_xor_b32 v10, 64, v8
    v_xor_b32 v11, 96, v8
    s_and_b32 s51, s3, 1
    """)
    w_frag_addr(a, 12, "s51")
    a(f"""
    s_bfe_u32 s51, s3, 0x10001
    s_lshl_b32 s51, s51, 13
    s_add_u32 s51, s51, 12288
    v_add_u32 v12, s51, v12
    s_add_u32 s51, s{S_COL}, s{S_W4}
    s_cmp_eq_u32 s{S_RB}, 21
    s_cselect_b32 s55, 2, 0
    s_cmp_eq_u32 s{S_CB}, 10
    s_cselect_b32 s56, 2, 0
    s_cmp_lt_u32 s{S_W4}, s56
    s_cselect_b32 s55, 3, s55
    s_lshr_b32 s57, s{S_ROW}, 5
    s_cmp_ge_u32 s3, 4
    s_cselect_b32 s58, {3*SEC}, 0
    s_cselect_b32 s59, {FA - FB}, 0
    s_cselect_b32 s52, {(7 % GNS) * GSLOT}, 0
    s_add_u32 s59, s59, {FB}
    s_lshl_b32 s60, s51, 12
    s_add_u32 s59, s59, s60
    s_lshl_b32 s60, s{S_RB}, 7
    s_add_u32 s59, s59, s60
    """)
    for r in range(48): a(f"v_mov_b32 v{ACC+r}, 0")
    a(f"""
    s_cmp_ge_u32 s51, 28
    s_cbranch_scc1 L_gV
    """)
    def addrs():
        for i in range(5): a(f"v_add_u32 v{16+i}, s52, v{8+i}")
        a(f"s_add_u32 s52, s52, {GSLOT}\ns_cmp_ge_u32 s52, {GSLOT*GNS}\ns_cselect_b32 s52, 0, s52")
    def reads(ks):
        f = FR + 16 * ks
        for m in range(3):
            a(f"ds_read_b128 {vr(f + 4*m, 4)}, v{16+ks} offset:{m*4096}")
        a(f"ds_read_b64_tr_b16 {vr(f+12, 2)}, v20 offset:{ks*2048}")
        a(f"ds_read_b64_tr_b16 {vr(f+14, 2)}, v20 offset:{ks*2048+512}")
    for var in ("QK", "V"):
        t = f"L_g{var}"
        a(f"{t}:")
        if var == "QK":
            a(f"""
            v_mov_b32 v13, v6
            s_cmp_ge_u32 s51, 14
            s_cselect_b32 s53, {SEC - 14*2048}, 0
            s_cselect_b32 s54, 1.0, {hex(f2u(QSCALE))}
            s_lshl_b32 s60, s51, 11
            s_add_u32 s53, s53, s60
            s_mul_i32 s60, s57, 28672
            s_add_u32 s53, s53, s60
            """)
        else:
            a(f"""
            v_and_b32 v4, 31, v3
            s_sub_u32 s60, s51, 28
            s_lshl_b32 s60, s60, 5
            v_add_u32 v4, s60, v4
            v_mul_u32_u24 v7, 2341, v4
            v_lshrrev_b32 v7, 16, v7
            v_mul_u32_u24 v13, 28, v7
            v_sub_u32 v4, v4, v13
            v_mul_u32_u24 v7, {64*1792}, v7
            v_lshl_add_u32 v13, v4, 4, v7
            v_mul_u32_u24 v4, 448, v2
            v_add_u32 v13, v13, v4
            s_mul_i32 s53, s57, 1792
            s_add_u32 s53, s53, {2*SEC}
            """)
        a(f"s_add_u32 s53, s53, s58")
        addrs()
        a(f"s_cmp_ge_u32 s3, 4\ns_cbranch_scc0 {t}_go")
        for i in range(7): a("s_barrier")
        a(f"{t}_go:\ns_barrier")
        def mf(ks):
            f = FR + 16 * ks
            for m in range(3):
                x, w, d = vr(f + 4*m, 4), vr(f + 12, 4), vr(ACC + 16*m, 16)
                if var == "QK": a(f"v_mfma_f32_32x32x16_bf16 {d}, {w}, {x}, {d}")
                else: a(f"v_mfma_f32_32x32x16_bf16 {d}, {x}, {w}, {d}")
        reads(0); reads(1)
        a(f"s_mov_b32 s56, 6\n{t}_chunk:")
        for ks in range(2):
            reads(ks + 2); a("s_waitcnt lgkmcnt(10)"); mf(ks)
        a(f"s_cmp_eq_u32 s56, 0\ns_cbranch_scc1 {t}_last")
        addrs()
        a("s_sub_u32 s56, s56, 1\ns_waitcnt lgkmcnt(0)\ns_barrier")
        reads(0); mf(2)
        reads(1); mf(3)
        a(f"s_branch {t}_chunk\n{t}_last:\ns_waitcnt lgkmcnt(0)")
        a(f"s_cmp_ge_u32 s3, 4\ns_cbranch_scc1 {t}_nb0\ns_barrier\n{t}_nb0:")
        mf(2); mf(3)
        a(f"s_mov_b32 s57, {28672 if var == 'QK' else 1792}\ns_mov_b32 s58, {1024 if var == 'QK' else 896}\ns_nop 7")
        for m in range(3):
            d = ACC + 16 * m
            if var == "QK":
                for r in range(16): a(f"v_mul_f32 v{d+r}, s54, v{d+r}")
            for r in range(8): a(f"v_cvt_pk_bf16_f32 v{GO+8*m+r}, v{d+2*r}, v{d+2*r+1}")
        if var == "QK": a("s_branch L_gepi")
    a(f"""
    L_gepi:
    v_add_u32 v14, s58, v13
    s_cmp_ge_u32 s3, 4
    s_cbranch_scc1 L_att
    """)
    sched = {8: [0], 9: [1], 10: [2]} if X("GSCHED", 2) == 1 else {8: [0, 1], 9: [2]} if X("GSCHED", 2) == 0 else {8: [0, 1, 2]}
    PUB = X("PUB", 9)
    for g in range(8, 14):
        if g == 8: trace(a, 44)
        for m in sched.get(g, []): gemm_store(a, m)
        if g == 8: trace(a, 45)
        a("s_barrier")
        if g == PUB: gemm_publish(a)
    a("s_branch L_att")
    a(f"""
    L_gidle:
    s_mov_b32 s55, 3
    v_mov_b32 v13, 0
    v_mov_b32 v14, 0
    """)
    nonce_load(a, 160)
    a("s_barrier\ns_cmp_ge_u32 s3, 4\ns_cbranch_scc1 L_att")
    gemm_publish(a)

def gemm_store(a, m, GO=136):
    L = a.lab("gs")
    a(f"""
    s_cmp_gt_u32 s55, {m}
    s_cbranch_scc1 {L}
    buffer_store_dwordx4 {vr(GO+8*m,4)}, v13, {WS}, s53 offen sc1
    buffer_store_dwordx4 {vr(GO+8*m+4,4)}, v14, {WS}, s53 offen sc1
    {L}:
    s_add_u32 s53, s53, s57
    """)
    if m == 2: nonce_load(a, 160)
def gemm_publish(a):
    L = a.lab("gp")
    trace(a, 46)
    a("s_waitcnt vmcnt(0)")
    trace(a, 47)
    nonce_get(a, 160)
    a(f"s_cmp_eq_u32 s55, 3\ns_cbranch_scc1 {L}")
    put_flag(a, 59, 160)
    a(f"{L}:")

S0, S1, O_, CM, QF, KF, V0, V1, IDX, AD0, AD1 = 16, 32, 48, 64, 80, 88, 96, 100, 104, 105, 106
def attn_compute(a):
    a("L_att:")
    stamp(a, 1)
    a(f"""
    v_mov_b32 v{IDX}, 0xdddddddd
    s_cmp_ge_u32 s3, 4
    s_cbranch_scc1 L_att1
    v_mov_b32 v8, {hex(ONES)}
    v_mov_b32 v9, v8
    v_mov_b32 v10, v8
    v_mov_b32 v11, v8
    s_lshl_b32 s51, s{S_W4}, 12
    s_add_u32 s51, s51, {L_RING + 2048}
    v_add_u32 v7, s51, v6
    v_add_u32 v12, 0x10000, v7
    s_not_b64 exec, s[{VMASK}:{VMASK+1}]
    """)
    for sl in range(ANS):
        for s in range(2):
            off = sl * 16384 + s * 1024
            a(f"ds_write_b128 v{7 if off < 65536 else 12}, v[8:11] offset:{off & 0xffff}")
    a(f"""
    s_mov_b64 exec, -1
    L_att1:
    s_lshr_b32 s51, s3, 2
    s_lshl_b32 s51, s51, 13
    s_add_u32 s51, s51, {L_RING}
    v_add_u32 v{AD0}, s51, v5
    v_add_u32 v{AD1}, 0x10000, v{AD0}
    v_add_u32 v7, {slot_addr(0)}, v5
    s_lshl_b32 s51, s{S_W4}, 11
    s_add_u32 s51, s51, {L_Q}
    v_add_u32 v8, s51, v6
    """)
    for r in range(16): a(f"v_mov_b32 v{O_+r}, 0")
    for r in range(4): a(f"v_mov_b32 v{V1+r}, 0")
    def rd(dst, n, frag):
        st, u = n >> 1, n & 1
        off = slot_addr(st) - L_RING + u * 4096 + frag * 1024
        a(f"ds_read_b128 {vr(dst,4)}, v{AD0 if off < 65536 else AD1} offset:{off & 0xffff}")
    a("s_waitcnt lgkmcnt(0)\ns_barrier")
    stamp(a, 2)
    a(f"""
    ds_read_b128 {vr(QF,4)}, v8
    ds_read_b128 {vr(QF+4,4)}, v8 offset:1024
    ds_read_b128 {vr(CM,4)}, v7
    ds_read_b128 {vr(CM+4,4)}, v7 offset:1024
    """)
    rd(KF, 0, 0); rd(KF + 4, 0, 1); rd(V0, 0, 2)
    for r in range(8): a(f"v_mov_b32 v{S1+8+r}, 0")
    a("s_waitcnt lgkmcnt(5)")
    zero_qpad(a, QF)
    a(f"""
    s_waitcnt lgkmcnt(3)
    v_mfma_f32_32x32x16_bf16 {vr(S0,16)}, {vr(CM,4)}, {vr(QF,4)}, 0
    v_mfma_f32_32x32x16_bf16 {vr(S0,16)}, {vr(CM+4,4)}, {vr(QF+4,4)}, {vr(S0,16)}
    s_nop 11
    v_max3_f32 v7, v{S0}, v{S0+1}, v{S0+2}
    """)
    for r in range(3, 15, 2): a(f"v_max3_f32 v7, v7, v{S0+r}, v{S0+r+1}")
    a(f"""
    v_max_f32 v7, v7, v{S0+15}
    v_mov_b32 v8, v7
    s_nop 1
    v_permlane32_swap_b32 v7, v8
    v_max_f32 v7, v7, v8
    v_sub_f32 v{CM}, {hex(f2u(-float(X("BIAS", 16))))}, v7
    """)
    for r in range(1, 16): a(f"v_mov_b32 v{CM+r}, v{CM}")
    a(f"""
    s_waitcnt lgkmcnt(1)
    s_nop 0
    v_mfma_f32_32x32x16_bf16 {vr(S0,16)}, {vr(KF,4)}, {vr(QF,4)}, {vr(CM,16)}
    v_mfma_f32_32x32x16_bf16 {vr(S0,16)}, {vr(KF+4,4)}, {vr(QF+4,4)}, {vr(S0,16)}
    """)
    rd(KF, 1, 0); rd(KF + 4, 1, 1)
    a("s_nop 9")
    for n in range(32):
        Sc = S0 if n % 2 == 0 else S1
        Sn = S1 if n % 2 == 0 else S0
        def ex(lo, hi):
            for r in range(lo, hi): a(f"v_exp_f32 v{Sc+r}, v{Sc+r}")
        last = n == 31
        ex(0, 2)
        if n > 0: a(f"s_waitcnt lgkmcnt({1 if last else 3})")
        a(f"v_smfmac_f32_32x32x32_bf16 {vr(O_,16)}, {vr(V1,4)}, {vr(Sn+8,8)}, v{IDX}")
        rd(V1, n, 3)
        ex(2, 5)
        if not last:
            a(f"s_waitcnt lgkmcnt({2 if n > 0 else 1})")
            a(f"v_mfma_f32_32x32x16_bf16 {vr(Sn,16)}, {vr(KF,4)}, {vr(QF,4)}, {vr(CM,16)}")
        ex(5, 8)
        if not last:
            a(f"v_mfma_f32_32x32x16_bf16 {vr(Sn,16)}, {vr(KF+4,4)}, {vr(QF+4,4)}, {vr(Sn,16)}")
        nk = 0
        if n + 2 < 32:
            if n in ABAR: a("s_barrier")
            rd(KF, n + 2, 0); rd(KF + 4, n + 2, 1); nk = 2
        ex(8, 12)
        a(f"s_waitcnt lgkmcnt({1 + nk})")
        a(f"v_smfmac_f32_32x32x32_bf16 {vr(O_,16)}, {vr(V0,4)}, {vr(Sc,8)}, v{IDX}")
        if not last: rd(V0, n + 1, 2)
        if n == 30: a("s_nop 1")
        if n < 3 or n == X("APUB", 6):
            L = a.lab("g1")
            a(f"s_cmp_ge_u32 s3, 4\ns_cbranch_scc0 {L}")
            if n < 3: gemm_store(a, n)
            else: gemm_publish(a)
            a(f"{L}:")
        ex(12, 16)
    a(f"""
    s_waitcnt lgkmcnt(0)
    s_nop 0
    v_smfmac_f32_32x32x32_bf16 {vr(O_,16)}, {vr(V1,4)}, {vr(S1+8,8)}, v{IDX}
    """)
    stamp(a, 3)
    trace(a, 112)
    a(f"""
    s_lshl_b32 s51, s{S_W4}, 12
    s_add_u32 s51, s51, {L_COMB}
    v_add_u32 v7, s51, v6
    s_cmp_ge_u32 s3, 4
    s_nop 6
    s_cbranch_scc1 L_comb
    """)
    for i in range(4): a(f"ds_write_b128 v7, {vr(O_+4*i,4)} offset:{i*1024}")
    a("s_waitcnt lgkmcnt(0)\ns_barrier\ns_barrier")
    a.vm_reset()
    oproj(a, "B")
    a("s_branch L_end\nL_comb:\ns_barrier")
    for i in range(4): a(f"ds_read_b128 {vr(S0+4*i,4)}, v7 offset:{i*1024}")
    a(f"""
    s_lshl_b32 s52, s{S_QB}, 2
    s_add_u32 s52, s52, s{S_W4}
    s_lshl_b32 s51, s52, 4
    s_add_u32 s51, s51, s{S_HD}
    s_lshl_b32 s53, s51, 7
    s_add_u32 s53, s53, {FOB}
    s_lshl_b32 s51, s51, 11
    s_add_u32 s51, s51, {OB}
    s_waitcnt lgkmcnt(0)
    s_barrier
    """)
    for r in range(16): a(f"v_add_f32 v{O_+r}, v{O_+r}, v{S0+r}")
    a(f"v_maximum3_f32 v8, |v{O_}|, |v{O_+1}|, |v{O_+2}|")
    for r in range(3, 15, 2): a(f"v_maximum3_f32 v8, v8, |v{O_+r}|, |v{O_+r+1}|")
    a(f"""
    v_maximum3_f32 v8, v8, |v{O_+15}|, |v{O_+15}|
    v_cmp_nlt_f32 vcc, v8, {'0' if X('FORCEFB') else 'v9'}
    """.replace("v_cmp_nlt_f32 vcc, v8, v9", f"v_cmp_ngt_f32 vcc, {hex(f2u(2.0**120))}, v8").replace("v_cmp_nlt_f32 vcc, v8, 0", "v_cmp_ngt_f32 vcc, -1.0, v8"))
    a("s_nop 0\ns_cbranch_vccnz L_fallback\nL_fbret:")
    a.vm_reset()
    trace(a, 113)
    finish_O(a, O_, S1, 51)
    trace(a, 114)
    a("s_waitcnt vmcnt(0)")
    trace(a, 115)
    put_flag(a, 53, 8)
    if TRACE: a("s_waitcnt vmcnt(0)")
    trace(a, 116)
    a("s_branch L_end")
    fallback(a)

def fallback(a):
    a(f"""
    L_fallback:
    v_and_b32 v7, 31, v3
    s_lshl_b32 s54, s{S_ODD}, 2
    v_subrev_u32 v8, s54, v7
    v_cmp_gt_u32 s[60:61], 28, v8
    v_mul_u32_u24 v9, 448, v2
    v_lshl_add_u32 v8, v8, 4, v9
    v_add_u32 v8, 256, v8
    v_mov_b32 v7, 0xff800000
    s_add_u32 s54, s{S_P0}, {KB}
    s_mov_b32 s56, 64
    L_fb1:
    buffer_load_dwordx4 {vr(KF,4)}, v5, {WS}, s54 offen sc1
    buffer_load_dwordx4 {vr(KF+4,4)}, v5, {WS}, s54 offen offset:1024 sc1
    s_add_u32 s54, s54, 28672
    s_waitcnt vmcnt(0)
    v_mfma_f32_32x32x16_bf16 {vr(S0,16)}, {vr(KF,4)}, {vr(QF,4)}, 0
    v_mfma_f32_32x32x16_bf16 {vr(S0,16)}, {vr(KF+4,4)}, {vr(QF+4,4)}, {vr(S0,16)}
    s_nop 11
    """)
    for r in range(0, 16, 2): a(f"v_max3_f32 v7, v7, v{S0+r}, v{S0+r+1}")
    a(f"""
    s_sub_u32 s56, s56, 1
    s_cmp_lg_u32 s56, 0
    s_cbranch_scc1 L_fb1
    v_mov_b32 v9, v7
    s_nop 1
    v_permlane32_swap_b32 v7, v9
    v_max_f32 v7, v7, v9
    """)
    for r in range(16): a(f"v_sub_f32 v{CM+r}, 0, v7\nv_mov_b32 v{O_+r}, 0")
    for r in range(8): a(f"v_mov_b32 v{V0+r}, {hex(ONES)}")
    a(f"""
    s_add_u32 s54, s{S_P0}, {KB}
    s_mul_i32 s57, s{S_HD}, {64*1792}
    s_add_u32 s57, s57, {VB - 256}
    s_mov_b32 s56, 64
    L_fb2:
    buffer_load_dwordx4 {vr(KF,4)}, v5, {WS}, s54 offen sc1
    buffer_load_dwordx4 {vr(KF+4,4)}, v5, {WS}, s54 offen offset:1024 sc1
    s_mov_b64 exec, s[60:61]
    buffer_load_dwordx4 {vr(V0,4)}, v8, {WS}, s57 offen sc1
    buffer_load_dwordx4 {vr(V1,4)}, v8, {WS}, s57 offen offset:896 sc1
    s_mov_b64 exec, -1
    s_add_u32 s54, s54, 28672
    s_add_u32 s57, s57, 1792
    s_waitcnt vmcnt(0)
    v_mfma_f32_32x32x16_bf16 {vr(S0,16)}, {vr(KF,4)}, {vr(QF,4)}, {vr(CM,16)}
    v_mfma_f32_32x32x16_bf16 {vr(S0,16)}, {vr(KF+4,4)}, {vr(QF+4,4)}, {vr(S0,16)}
    s_nop 11
    """)
    for r in range(16): a(f"v_exp_f32 v{S0+r}, v{S0+r}")
    a(f"""
    s_nop 1
    v_smfmac_f32_32x32x32_bf16 {vr(O_,16)}, {vr(V0,4)}, {vr(S0,8)}, v{IDX}
    v_smfmac_f32_32x32x32_bf16 {vr(O_,16)}, {vr(V1,4)}, {vr(S0+8,8)}, v{IDX}
    s_sub_u32 s56, s56, 1
    s_cmp_lg_u32 s56, 0
    s_nop 7
    s_cbranch_scc1 L_fb2
    s_nop 7
    s_branch L_fbret
    """)

OF, OACC, OW, OAD = 16, 80, 112, 144
def oproj_flag_load(a, F):
    a(f"""
    s_and_b32 s51, s{S_W4}, 1
    s_lshl_b32 s52, s{S_RB2}, 1
    s_add_u32 s52, s52, s51
    s_lshr_b32 s51, s{S_W4}, 1
    s_lshl_b32 s53, s52, 11
    s_lshl_b32 s54, s51, 10
    s_add_u32 s53, s53, s54
    s_add_u32 s62, s53, {F}
    v_min_u32 v{OAD+6}, 7, v0
    v_lshlrev_b32 v{OAD+6}, 7, v{OAD+6}
    """)
    a.vmem(f"buffer_load_dwordx2 {vr(OAD+4,2)}, v{OAD+6}, {WS}, s62 offen sc1", "oflag")
def oproj_flag_check(a):
    L = a.lab("of")
    a.vm_wait("oflag")
    a(f"""
    s_mov_b32 s63, 0
    {L}:
    v_cmp_ne_u64 vcc, s[{NON}:{NON+1}], {vr(OAD+4,2)}
    s_add_u32 s63, s63, 1
    s_cbranch_vccz {L}_ok
    s_cmp_ge_u32 s63, {SPIN_MAX}
    s_cbranch_scc1 {L}_ok
    s_sleep {X("OSLEEP", 2)}
    s_mov_b64 exec, vcc
    buffer_load_dwordx2 {vr(OAD+4,2)}, v{OAD+6}, {WS}, s62 offen sc1
    s_mov_b64 exec, -1
    s_waitcnt vmcnt(0)
    s_branch {L}
    {L}_ok:
    """)
def oproj_loads(a, Ob):
    a(f"""
    s_and_b32 s51, s{S_W4}, 1
    s_lshl_b32 s52, s{S_RB2}, 1
    s_add_u32 s52, s52, s51
    s_lshr_b32 s51, s{S_W4}, 1
    s_lshl_b32 s53, s52, 15
    s_lshl_b32 s54, s51, 14
    s_add_u32 s53, s53, s54
    s_add_u32 s53, s53, {Ob}
    """)
    for k in range(16):
        a.vmem(f"buffer_load_dwordx4 {vr(OF+4*k,4)}, v6, {WS}, s53 offen offset:{(k&3)*1024} sc1", f"of{k}")
        if k & 3 == 3 and k < 15: a("s_add_u32 s53, s53, 4096")
def oproj_compute(a, br):
    LW = L_WOA if br == "A" else L_WOB
    L = a.lab("op")
    w_frag_addr(a, OAD, "0")
    a(f"""
    s_lshr_b32 s51, s{S_W4}, 1
    s_mul_i32 s52, s51, {224*128}
    s_add_u32 s52, s52, {LW}
    v_add_u32 v{OAD}, s52, v{OAD}
    v_xor_b32 v{OAD+1}, 64, v{OAD}
    """)
    NB = 4
    def reads(k):
        hd, s = k >> 1, k & 1
        row = 28 * hd - 4 * (hd & 1) + 16 * s
        f = OW + 8 * (k % NB)
        for n in range(2):
            a(f"ds_read_b64_tr_b16 {vr(f+4*n,2)}, v{OAD+n} offset:{row*128}")
            a(f"ds_read_b64_tr_b16 {vr(f+4*n+2,2)}, v{OAD+n} offset:{row*128+512}")
    for k in range(NB - 1): reads(k)
    for k in range(16):
        if k + NB - 1 < 16: reads(k + NB - 1)
        a.vm_wait(f"of{k}", f"lgkmcnt({4*min(NB-1, 15-k)})")
        f = OW + 8 * (k % NB)
        for n in range(2):
            d = vr(OACC + 16*n, 16)
            a(f"v_mfma_f32_32x32x16_bf16 {d}, {vr(f+4*n,4)}, {vr(OF+4*k,4)}, {d if k else 0}")
    trace(a, 116)
    a(f"s_lshl_b32 s52, s{S_W4}, 12\ns_xor_b32 s53, s52, 0x2000\ns_add_u32 s52, s52, {L_RED if br == 'A' else L_COMB}\ns_add_u32 s53, s53, {L_RED if br == 'A' else L_COMB}")
    fl = (0 if br == "A" else 16)
    a(f"""
    v_add_u32 v{OAD+2}, s52, v6
    v_add_u32 v{OAD+3}, s53, v6
    s_lshl_b32 s54, s{S_W4}, 2
    s_add_u32 s54, s54, {L_SYNC + fl}
    v_mov_b32 v{OAD+4}, s54
    v_xor_b32 v{OAD+5}, 8, v{OAD+4}
    v_mov_b32 v{OAD+6}, 1
    v_and_b32 v4, 31, v0
    v_mul_u32_u24 v4, 1792, v4
    v_lshl_add_u32 v4, v2, 4, v4
    s_and_b32 s54, s{S_W4}, 1
    s_lshl_b32 s55, s{S_RB2}, 1
    s_add_u32 s55, s55, s54
    s_mul_i32 s55, s55, {32*1792}
    s_lshl_b32 s54, s{S_CB2}, 7
    s_add_u32 s55, s55, s54
    s_lshl_b32 s54, s51, 6
    s_add_u32 s55, s55, s54
    s_cmp_eq_u32 s51, 0
    s_cbranch_scc1 {L}_k0
    """)
    for var in (1, 0):
        keep, send = OACC + 16 * var, OACC + 16 * (1 - var)
        if var == 0: a(f"{L}_k0:")
        for i in range(4): a(f"ds_write_b128 v{OAD+2}, {vr(send+4*i,4)} offset:{i*1024}")
        a(f"""
        s_waitcnt lgkmcnt(0)
        ds_write_b32 v{OAD+4}, v{OAD+6}
        s_mov_b32 s63, 0
        {L}_w{var}:
        ds_read_b32 v7, v{OAD+5}
        s_add_u32 s63, s63, 1
        s_waitcnt lgkmcnt(0)
        v_cmp_eq_u32 vcc, 0, v7
        s_cmp_ge_u32 s63, {SPIN_MAX*8}
        s_cbranch_scc1 {L}_g{var}
        s_cbranch_vccnz {L}_w{var}
        {L}_g{var}:
        """)
        for i in range(4): a(f"ds_read_b128 {vr(OF+4*i,4)}, v{OAD+3} offset:{i*1024}")
        for hf in range(2):
            a(f"s_waitcnt lgkmcnt({2 - 2*hf})")
            for r in range(8*hf, 8*hf+8): a(f"v_add_f32 v{keep+r}, v{keep+r}, v{OF+r}")
            for r in range(4*hf, 4*hf+4): a(f"v_cvt_pk_bf16_f32 v{OF+16+r}, v{keep+2*r}, v{keep+2*r+1}")
            a(f"buffer_store_dwordx4 {vr(OF+16+4*hf,4)}, v4, {sr(SRD_OUT)}, s55 offen offset:{(0 if br == 'A' else 896) + 32*hf} {os.environ.get('OUTF', '')}")
        if var == 1: a(f"s_branch {L}_e")
    a(f"{L}_e:")
    trace(a, 117)
    if TRACE: a("s_waitcnt vmcnt(0)")
    trace(a, 118)
def oproj(a, br):
    a(f"s_cmp_eq_u32 s{S_ACT2}, 0\ns_cbranch_scc1 L_end")
    trace(a, 113)
    if X("ODELAY"): a(f"s_sleep {X('ODELAY')}")
    oproj_flag_load(a, FOB); oproj_flag_check(a); a.vm_reset()
    trace(a, 114)
    oproj_loads(a, OB)
    trace(a, 115)
    oproj_compute(a, br)

def qkv_flag_loads(a, F, vt):
    a(f"""
    s_lshr_b32 s51, s{S_P0}, 11
    s_add_u32 s52, s{S_P0}, 1536
    s_lshr_b32 s52, s52, 11
    s_sub_u32 s52, s52, s51
    s_lshl_b32 s52, s52, 12
    v_mul_u32_u24 v7, s52, v2
    s_lshl_b32 s51, s51, 12
    s_add_u32 s61, s51, {F}
    s_lshl_b32 s51, s{S_QB}, 2
    """)
    if F == FB:
        a("s_add_u32 s52, s51, 3")
    else:
        a(f"s_add_u32 s52, s51, s{S_W4}\ns_max_u32 s51, s52, 1\ns_sub_u32 s51, s51, 1")
    a(f"""
    s_mul_i32 s51, s51, 86
    s_lshr_b32 s51, s51, 8
    s_mul_i32 s52, s52, 86
    s_lshr_b32 s52, s52, 8
    v_max_u32 v4, s51, v1
    v_min_u32 v4, s52, v4
    v_lshl_add_u32 v{vt+7}, v4, 7, v7
    """)
    if F == FB: a(f"v_min_u32 v4, 21, v1")
    a(f"""
    v_lshl_add_u32 v{vt+6}, v4, 7, v7
    v_add_u32 v{vt+6}, {14*4096}, v{vt+6}
    s_add_u32 s62, s61, {14*4096}
    """)
    a.vmem(f"buffer_load_dwordx2 {vr(vt,2)}, v{vt+7}, {WS}, s61 offen sc1", "qf")
    a.vmem(f"buffer_load_dwordx2 {vr(vt+2,2)}, v{vt+6}, {WS}, s61 offen sc1", "qf")
    a.vmem(f"buffer_load_dwordx2 {vr(vt+4,2)}, v{vt+6}, {WS}, s62 offen sc1", "qf")
def qkv_flag_check(a, vt):
    L = a.lab("qf")
    a.vm_wait("qf")
    a(f"""
    s_mov_b32 s63, 0
    {L}:
    v_cmp_ne_u64 vcc, s[{NON}:{NON+1}], {vr(vt,2)}
    v_cmp_ne_u64 s[52:53], s[{NON}:{NON+1}], {vr(vt+2,2)}
    v_cmp_ne_u64 s[54:55], s[{NON}:{NON+1}], {vr(vt+4,2)}
    s_add_u32 s63, s63, 1
    s_or_b64 s[56:57], s[52:53], vcc
    s_or_b64 s[56:57], s[56:57], s[54:55]
    s_cbranch_scc0 {L}_ok
    s_cmp_ge_u32 s63, {SPIN_MAX}
    s_cbranch_scc1 {L}_ok
    s_sleep {X("QSLEEP", 2)}
    s_or_b64 exec, vcc, 1
    buffer_load_dwordx2 {vr(vt,2)}, v{vt+7}, {WS}, s61 offen sc1
    s_or_b64 exec, s[52:53], 1
    buffer_load_dwordx2 {vr(vt+2,2)}, v{vt+6}, {WS}, s61 offen sc1
    s_or_b64 exec, s[54:55], 1
    buffer_load_dwordx2 {vr(vt+4,2)}, v{vt+6}, {WS}, s62 offen sc1
    s_mov_b64 exec, -1
    s_waitcnt vmcnt(0)
    s_branch {L}
    {L}_ok:
    """)

def service(a):
    a("L_sv:\ns_setprio 3")
    a.vm_reset()
    a(f"""
    v_lshrrev_b32 v1, 3, v0
    v_and_b32 v2, 7, v0
    v_lshrrev_b32 v3, 1, v1
    s_and_b32 s51, s3, 1
    s_lshl_b32 s51, s51, 2
    v_add_u32 v4, s51, v3
    v_xor_b32 v4, v2, v4
    v_lshlrev_b32 v4, 4, v4
    v_mul_u32_u24 v5, 896, v1
    v_add_u32 v8, v4, v5
    v_add_u32 v9, 28672, v8
    v_add_u32 v10, 57344, v8
    v_and_b32 v3, 1, v3
    v_lshlrev_b32 v3, 2, v3
    v_xor_b32 v4, v2, v3
    v_lshlrev_b32 v4, 4, v4
    v_add_u32 v15, v4, v5
    v_mul_u32_u24 v5, 2688, v1
    v_add_u32 v11, v4, v5
    v_add_u32 v12, {32*2688}, v11
    v_add_u32 v13, 128, v11
    v_add_u32 v14, 128, v12
    s_lshl_b32 s51, s{S_W4}, 3
    s_add_u32 s56, s{S_ROW}, s51
    s_mul_i32 s56, s56, 896
    s_mul_i32 s57, s51, 2688
    s_lshl_b32 s52, s{S_COL}, 6
    s_add_u32 s57, s57, s52
    s_lshl_b32 s58, s{S_W4}, 10
    s_add_u32 s59, s{S_RB}, s{S_CB}
    """)
    R = X("ROT")
    if R == 7: a("s_mul_i32 s51, s59, 37\ns_lshr_b32 s51, s51, 8\ns_mul_i32 s51, s51, 7\ns_sub_u32 s59, s59, s51")
    if R == 2: a("s_and_b32 s59, s59, 1\ns_mul_i32 s59, s59, 3")
    if R == 3: a("s_mul_i32 s51, s59, 86\ns_lshr_b32 s51, s51, 8\ns_mul_i32 s51, s51, 3\ns_sub_u32 s59, s59, s51\ns_lshl_b32 s59, s59, 1")
    if R == 8: a("s_and_b32 s59, s2, 7\ns_min_u32 s59, s59, 6")
    if R == 9: a("s_and_b32 s59, s59, 1\ns_mul_i32 s59, s59, 3\ns_and_b32 s51, s2, 3\ns_add_u32 s59, s59, s51")
    a("s_waitcnt lgkmcnt(0)")
    srd(a, SRD_XB, P + 6, 1835008); srd(a, SRD_WB, P + 8, 448 * 2688)
    a(f"s_cmp_eq_u32 s{S_ACT}, 0\ns_cbranch_scc1 L_sv_nog")
    def issue(g):
        Xs, W = (SRD_XB, SRD_WB) if g < 7 else (SRD_XA, SRD_WA)
        slot = (g % GNS) * GSLOT
        c = g % 7
        if X("ROT") == 0:
            a(f"s_add_u32 s60, s56, {c*128}\ns_add_u32 s61, s57, {c*64*2688}")
        else:
            a(f"""
            s_lshl_b32 s60, s59, 7
            s_add_u32 s60, s60, s56
            s_mul_i32 s61, s59, {64*2688}
            s_add_u32 s61, s61, s57
            s_add_u32 s59, s59, 1
            s_cmp_ge_u32 s59, 7
            s_cselect_b32 s59, 0, s59
            """)
        order = [('x', 0), ('w', 0), ('w', 2), ('x', 1), ('w', 1), ('w', 3), ('x', 2)]
        for kind, u in order:
            if kind == 'x':
                a(f"s_add_u32 m0, s58, {slot + u * 4096}\ns_nop 0")
                a.vmem(f"buffer_load_dwordx4 v{8+u}, {sr(Xs)}, s60 offen lds", f"g{g}")
            else:
                j, v = u >> 1, u & 1
                a(f"s_add_u32 m0, s58, {slot + 12288 + j * 8192 + v * 4096}\ns_nop 0")
                a.vmem(f"buffer_load_dwordx4 v{11 + 2*j + v}, {sr(W)}, s61 offen lds", f"g{g}")
    PRE = X("PRE", 2)
    issue(0)
    def rest_srds():
        srd(a, SRD_XA, P + 0, 1835008); srd(a, SRD_WA, P + 2, 448 * 2688)
        srd(a, SRD_WS, P + 16, WS_SIZE); srd(a, SRD_DBG, P + 14, 256); srd(a, SRD_OUT, P + 12, 2048 * 1792)
    rest_srds()
    a(f"""
    s_sub_u32 s51, s3, 8
    s_or_b32 s51, s51, s2
    s_cmp_eq_u32 s51, 0
    s_cbranch_scc0 L_nonon
    s_memrealtime s[52:53]
    v_mov_b32 v18, 0
    s_waitcnt lgkmcnt(0)
    s_or_b32 s53, s53, 0x80000000
    v_mov_b32 v16, s52
    v_mov_b32 v17, s53
    s_mov_b64 exec, 1
    buffer_store_dwordx2 v[16:17], v18, {sr(SRD_DBG)}, 0 offen sc1
    s_mov_b64 exec, -1
    L_nonon:
    """)
    VW, VVA, VVB, FL = 160, 161, 162, 150
    A = AttnA(a)
    def sv_setup():
        a("v_mov_b32 v160, v15\nv_mov_b32 v156, 0\nv_mov_b32 v157, 0")
        setup2(a)
        a(f"""
        v_mul_u32_u24 v7, 448, v2
        v_lshl_add_u32 v7, v1, 4, v7
        s_lshl_b32 s51, s{S_ODD}, 6
        s_sub_u32 s51, 256, s51
        v_add_u32 v{VVA}, s51, v7
        v_subrev_u32 v{VVB}, 128, v{VVA}
        v_lshlrev_b32 v163, 12, v0
        v_add_u32 v163, {L_RELAY}, v163
        s_lshl_b32 s51, s{S_W4}, 12
        s_add_u32 s51, s51, {L_RELAY}
        v_mov_b32 v164, s51
        v_mov_b32 v7, 0
        ds_write_b32 v164, v7
        """)
        A.masks()
        a("s_waitcnt lgkmcnt(0)")
    issued = 1
    while issued < PRE: issue(issued); issued += 1
    sv_setup()
    for c in range(14):
        trace(a, 1 + 3*c)
        a.vm_wait(f"g{c}")
        trace(a, 2 + 3*c)
        a("s_barrier")
        trace(a, 3 + 3*c)
        if c == 0: stamp(a, 1)
        while issued <= min(13, c + GNS - 1): issue(issued); issued += 1
        if c == 10: nonce_load(a, 144)
        if c == X("FBAT", 12):
            keep = list(a.vm)
            a(f"s_cmp_eq_u32 s{S_W4}, 0\ns_cbranch_scc0 L_nofb")
            qkv_flag_loads(a, FB, FL)
            a("L_nofb:")
            a.vm = keep
    a("s_branch L_sv_att\nL_sv_nog:")
    rest_srds()
    sv_setup()
    nonce_load(a, 144)
    qkv_flag_loads(a, FB, FL)
    a("s_barrier\nL_sv_att:\ns_waitcnt vmcnt(0)")
    a.vm_reset()
    srd(a, SRD_WOA, P + 4, 448 * 896); srd(a, SRD_WOB, P + 10, 448 * 896)
    nonce_get(a, 144)
    a(f"""
    s_lshl_b32 s58, s{S_W4}, 12
    s_mul_i32 s59, s{S_W4}, 28672
    s_add_u32 s59, s59, s{S_P0}
    s_lshl_b32 s60, s{S_HD}, 6
    s_add_u32 s60, s60, s{S_W4}
    s_mul_i32 s60, s60, 1792
    s_add_u32 s60, s60, {VB - 256}
    s_cmp_eq_u32 s{S_W4}, 0
    s_cbranch_scc0 L_relay
    """)
    qkv_flag_check(a, FL)
    a(f"""
    v_mov_b32 v7, 1
    s_mov_b64 exec, 14
    ds_write_b32 v163, v7
    s_mov_b64 exec, -1
    s_branch L_relay_ok
    L_relay:
    s_mov_b32 s63, 0
    L_relay_w:
    ds_read_b32 v7, v164
    s_add_u32 s63, s63, 1
    s_waitcnt lgkmcnt(0)
    v_cmp_eq_u32 vcc, 0, v7
    s_cmp_ge_u32 s63, {SPIN_MAX*16}
    s_cbranch_scc1 L_relay_ok
    s_cbranch_vccz L_relay_ok
    s_sleep 1
    s_branch L_relay_w
    L_relay_ok:
    """)
    stamp(a, 2)
    trace(a, 44)
    a(f"""
    s_mul_i32 s56, s{S_QB}, {4*28672}
    s_add_u32 s56, s56, s59
    s_lshl_b32 s51, s{S_W4}, 11
    s_add_u32 m0, s51, {L_Q}
    s_add_u32 s59, s59, {KB}
    """)
    a.vmem(f"buffer_load_dwordx4 v6, {WS}, s56 offen sc1 lds", "a0")
    a.vmem(f"buffer_load_dwordx4 v6, {WS}, s56 offen offset:1024 sc1 lds", "a0")
    def dma(st):
        a(f"s_add_u32 m0, s58, {slot_addr(st)}\ns_add_u32 s56, s59, {st*4*28672}")
        a.vmem(f"buffer_load_dwordx4 v6, {WS}, s56 offen sc1 lds", f"a{st}")
        a.vmem(f"buffer_load_dwordx4 v6, {WS}, s56 offen offset:1024 sc1 lds", f"a{st}")
        a(f"s_add_u32 m0, s58, {slot_addr(st) + 2048}\ns_add_u32 s57, s60, {st*4*1792}\ns_mov_b64 exec, s[{VMASK}:{VMASK+1}]")
        a.vmem(f"buffer_load_dwordx4 v{VVA}, {WS}, s57 offen sc1 lds", f"a{st}")
        a.vmem(f"buffer_load_dwordx4 v{VVB}, {WS}, s57 offen offset:1024 sc1 lds", f"a{st}")
        a("s_mov_b64 exec, -1")
    def wo_dma(W, lds, i0, n, tag):
        a(f"""
        s_mul_i32 s51, s{S_W4}, {8*896}
        s_lshl_b32 s52, s{S_CB2}, 7
        s_add_u32 s51, s51, s52
        s_lshl_b32 s52, s{S_W4}, 10
        """)
        for j in range(i0, i0 + n):
            a(f"s_add_u32 m0, s52, {lds + j*4096}\ns_add_u32 s53, s51, {j*32*896}")
            a.vmem(f"buffer_load_dwordx4 v{VW}, {sr(W)}, s53 offen lds", tag)
    APRE = X("APRE", 3)
    for st in range(APRE): dma(st)
    issued = APRE
    bars = [-2] + ABAR
    for i, n in enumerate(bars):
        need = bars[i + 1] // 2 if i + 1 < len(bars) else 15
        trace(a, 64 + 3*i)
        a.vm_wait(f"a{need}", "lgkmcnt(0)" if i == 0 else "")
        trace(a, 65 + 3*i)
        a("s_barrier")
        trace(a, 66 + 3*i)
        if n == 12: qkv_flag_loads(a, FA, FL)
        if n == 28: oproj_flag_load(a, FOA)
        while issued <= min(15, max(n // 2 - 1, -1) + ANS): dma(issued); issued += 1
        if n == 0: wo_dma(SRD_WOB, L_WOB, 0, 5, "wob")
        if n == 4: wo_dma(SRD_WOB, L_WOB, 5, 5, "wob")
        if n == 8: wo_dma(SRD_WOB, L_WOB, 10, 4, "wob"); wo_dma(SRD_WOA, L_WOA, 0, 2, "woa")
        if n == 12: qkv_flag_check(a, FL); A.loads()
        if n == 16: A.qk(); A.pv(); a("s_nop 7"); A.fin()
        if n == 20: A.pub()
        if n == 24: wo_dma(SRD_WOA, L_WOA, 2, 8, "woa")
        if n == 28:
            wo_dma(SRD_WOA, L_WOA, 10, 4, "woa")
            oproj_flag_check(a)
            oproj_loads(a, OA)
    a.vm_wait("woa")
    a("s_barrier")
    a(f"""
    v_mov_b32 v7, {L_SYNC}
    v_lshl_add_u32 v7, v0, 2, v7
    v_mov_b32 v8, 0
    s_mov_b64 exec, 0xff
    ds_write_b32 v7, v8
    s_mov_b64 exec, -1
    s_waitcnt lgkmcnt(0)
    s_barrier
    """)
    stamp(a, 3)
    trace(a, 113)
    a(f"s_cmp_eq_u32 s{S_ACT2}, 0\ns_cbranch_scc1 L_end")
    if X("NOOPA"): a("s_branch L_end")
    oproj_compute(a, "A")

class AttnA:
    Q, KP, KC, VP, VC, SP, SC, OO, T, IX = 80, 88, 96, 112, 116, 16, 32, 48, 64, 124
    def __init__(s, a): s.a = a
    def tq(s): s.a(f"s_lshl_b32 s51, s{S_QB}, 2\ns_add_u32 s51, s51, s{S_W4}")
    def masks(s):
        a = s.a; s.tq()
        a(f"""
        v_lshlrev_b32 v7, 3, v2
        v_sub_u32 v7, v1, v7
        v_add_u32 v7, 18, v7
        v_mov_b32 v126, 0x5555
        v_mov_b32 v127, 0
        v_lshlrev_b64 v[126:127], v7, v[126:127]
        s_cmp_eq_u32 s51, 0
        s_cselect_b32 s52, 0, -1
        v_and_b32 v126, s52, v126
        v_not_b32 v126, v126
        v_not_b32 v127, v127
        s_mov_b32 s52, 0xf149f2ca
        v_mov_b32 v{s.IX}, 0xdddddddd
        """)
        for r in range(16):
            g, i = r >> 2, r & 3
            c = 16 * (g >> 1) + 4 * (g & 1) + i
            a(f"v_bfe_i32 v{s.SC+r}, v127, {c}, 1\nv_and_b32 v{s.SC+r}, s52, v{s.SC+r}")
            if r >= 8: a(f"v_bfe_i32 v{s.SP+r}, v126, {c}, 1\nv_and_b32 v{s.SP+r}, s52, v{s.SP+r}")
            else: a(f"v_mov_b32 v{s.SP+r}, 0")
            a(f"v_mov_b32 v{s.OO+r}, 0")
        for r in range(12): a(f"v_mov_b32 v{s.VP+r}, {hex(ONES)}")
    def loads(s):
        a = s.a; s.tq()
        a(f"""
        s_mul_i32 s52, s51, 28672
        s_add_u32 s52, s52, s{S_P0}
        s_add_u32 s53, s52, {KA}
        s_add_u32 s52, s52, {QA}
        s_cmp_eq_u32 s51, 0
        s_cselect_b32 s54, 0, 28672
        s_cselect_b32 s55, 0, 1792
        s_sub_u32 s54, s53, s54
        """)
        a.vmem(f"buffer_load_dwordx4 {vr(s.Q,4)}, v6, {WS}, s52 offen sc1", "aq")
        a.vmem(f"buffer_load_dwordx4 {vr(s.Q+4,4)}, v6, {WS}, s52 offen offset:1024 sc1", "aq")
        a.vmem(f"buffer_load_dwordx4 {vr(s.KP,4)}, v5, {WS}, s54 offen sc1", "aq")
        a.vmem(f"buffer_load_dwordx4 {vr(s.KP+4,4)}, v5, {WS}, s54 offen offset:1024 sc1", "aq")
        a.vmem(f"buffer_load_dwordx4 {vr(s.KC,4)}, v5, {WS}, s53 offen sc1", "aq")
        a.vmem(f"buffer_load_dwordx4 {vr(s.KC+4,4)}, v5, {WS}, s53 offen offset:1024 sc1", "aq")
        a(f"""
        s_lshl_b32 s52, s{S_HD}, 6
        s_add_u32 s52, s52, s51
        s_mul_i32 s52, s52, 1792
        s_add_u32 s52, s52, {VA - 256}
        s_sub_u32 s55, s52, s55
        v_and_b32 v7, 31, v3
        s_lshl_b32 s53, s{S_ODD}, 2
        v_subrev_u32 v8, s53, v7
        v_cmp_gt_u32 vcc, 28, v8
        v_mul_u32_u24 v9, 448, v2
        v_lshl_add_u32 v8, v8, 4, v9
        v_add_u32 v8, 256, v8
        """)
        a("s_mov_b64 exec, vcc")
        a.vmem(f"buffer_load_dwordx4 {vr(s.VP,4)}, v8, {WS}, s55 offen offset:896 sc1", "aq")
        a.vmem(f"buffer_load_dwordx4 {vr(s.VC,4)}, v8, {WS}, s52 offen sc1", "aq")
        a.vmem(f"buffer_load_dwordx4 {vr(s.VC+4,4)}, v8, {WS}, s52 offen offset:896 sc1", "aq")
        a("s_mov_b64 exec, -1")
    def qk(s):
        a = s.a
        a.vm_wait("aq")
        zero_qpad(a, s.Q)
        a(f"""
        s_nop 0
        v_mfma_f32_32x32x16_bf16 {vr(s.SP,16)}, {vr(s.KP,4)}, {vr(s.Q,4)}, {vr(s.SP,16)}
        v_mfma_f32_32x32x16_bf16 {vr(s.SC,16)}, {vr(s.KC,4)}, {vr(s.Q,4)}, {vr(s.SC,16)}
        v_mfma_f32_32x32x16_bf16 {vr(s.SP,16)}, {vr(s.KP+4,4)}, {vr(s.Q+4,4)}, {vr(s.SP,16)}
        v_mfma_f32_32x32x16_bf16 {vr(s.SC,16)}, {vr(s.KC+4,4)}, {vr(s.Q+4,4)}, {vr(s.SC,16)}
        """)
        a("s_nop 11")
        s.regs = regs = list(range(s.SP + 8, s.SP + 16)) + list(range(s.SC, s.SC + 16))
        a(f"v_max_f32 v7, v{regs[0]}, v{regs[1]}")
        for k in range(2, 24, 2): a(f"v_max3_f32 v7, v7, v{regs[k]}, v{regs[k+1]}")
        a("v_mov_b32 v8, v7\ns_nop 1\nv_permlane32_swap_b32 v7, v8\nv_max_f32 v7, v7, v8")
        for r in regs: a(f"v_sub_f32 v{r}, v{r}, v7")
    def pv(s):
        a = s.a
        for r in s.regs: a(f"v_exp_f32 v{r}, v{r}")
        a(f"""
        v_smfmac_f32_32x32x32_bf16 {vr(s.OO,16)}, {vr(s.VP,4)}, {vr(s.SP+8,8)}, v{s.IX}
        v_smfmac_f32_32x32x32_bf16 {vr(s.OO,16)}, {vr(s.VC,4)}, {vr(s.SC,8)}, v{s.IX}
        v_smfmac_f32_32x32x32_bf16 {vr(s.OO,16)}, {vr(s.VC+4,4)}, {vr(s.SC+8,8)}, v{s.IX}
        """)
    def fin(s):
        a = s.a; s.tq()
        a(f"""
        s_lshl_b32 s51, s51, 4
        s_add_u32 s51, s51, s{S_HD}
        s_lshl_b32 s51, s51, 11
        s_add_u32 s51, s51, {OA}
        """)
        finish_O(a, s.OO, s.T, 51)
    def pub(s):
        a = s.a; s.tq()
        a(f"""
        s_lshl_b32 s51, s51, 4
        s_add_u32 s51, s51, s{S_HD}
        s_lshl_b32 s51, s51, 7
        s_add_u32 s51, s51, {FOA}
        """)
        a.vm_wait("ost")
        put_flag(a, 51, 8)

def main(out):
    a = Asm()
    setup(a)
    service(a)
    a("s_branch L_end\nL_comp:")
    a.vm_reset()
    gemm_compute(a)
    attn_compute(a)
    a("L_end:")
    stamp_out(a)
    a("L_exit:\ns_endpgm")
    kn = NAME + "_kernel"
    if X("LIST"): hdr = f"; @launch kernel={kn} grid=(256,1,1) block=(768,1,1) lds=163840\n"
    else: hdr = "; @launch grid=(256,1,1) block=(768,1,1) lds=163840\n"
    hdr += f'.amdgcn_target "amdgcn-amd-amdhsa--gfx950"\n.text\n.globl {kn}\n.p2align 8\n.type {kn},@function\n{kn}:\n'
    desc = f""".section .rodata,"a"
.p2align 6
.amdhsa_kernel {kn}
  .amdhsa_next_free_vgpr 168
  .amdhsa_next_free_sgpr 102
  .amdhsa_accum_offset 168
  .amdhsa_group_segment_fixed_size 0
  .amdhsa_kernarg_size 72
  .amdhsa_user_sgpr_count 2
  .amdhsa_user_sgpr_kernarg_segment_ptr 1
  .amdhsa_system_sgpr_workgroup_id_x 1
.end_amdhsa_kernel
"""
    txt = hdr + a.text() + desc
    open(out, "w").write(txt)
    e = lint(txt)
    for x in e: print("HAZARD", x)
    print("written", out, len(txt), "bytes;", len(e), "hazards")

if __name__ == "__main__":
    main(sys.argv[1] if len(sys.argv) > 1 else f"cdna_kernels/{NAME}.s")
```

```python
import sys, math, os, struct
from lint import lint

NAME = "concat_heads__sliding_local_dilated__mha_block__prompt"
def X(k, d=0): return int(os.environ.get(k, str(d)))
SEC = 1835008
QB, KB, VB, QA, KA, VA = [i * SEC for i in range(6)]
OA = 6 * SEC
OB = OA + 0x200000
FB = OB + 0x200000
FA = FB + 42 * 4096
FOA = FA + 42 * 4096
WS_SIZE = FOA + 0x20000
QSCALE = (28 ** -0.5) * math.log2(math.e)
def f2u(x): return struct.unpack('<I', struct.pack('<f', x))[0]
STAMP, TRACE = X("STAMP"), X("TRACE")
TS_OFF = 0x1000000
SPIN_MAX = 400000

class Asm:
    def __init__(self): self.l = []; self.vm = []; self.nlab = 0
    def __call__(self, s):
        for x in s.strip('\n').split('\n'):
            x = x.strip()
            if not x: continue
            self.l.append(x if x.endswith(':') else '    ' + x)
    def text(self): return '\n'.join(self.l) + '\n'
    def lab(self, p):
        self.nlab += 1; return f"{p}_{self.nlab}"
    def vm_reset(self): self.vm = []
    def vmem(self, ins, tag):
        self(ins); self.vm.append(tag)
    def vm_wait(self, tag, extra=""):
        idx = [i for i, t in enumerate(self.vm) if t == tag]
        if not idx:
            if extra: self(f"s_waitcnt {extra}")
            return
        n = len(self.vm) - 1 - idx[-1]
        assert n < 64
        self(f"s_waitcnt vmcnt({n}) {extra}")
        self.vm = self.vm[idx[-1] + 1:]

def vr(a, n): return "v[%d:%d]" % (a, a + n - 1)
def sr(a, n=4): return "s[%d:%d]" % (a, a + n - 1)

SRD_XB, SRD_WB, SRD_XA, SRD_WA, SRD_WS, SRD_OUT, SRD_DBG = 4, 8, 12, 16, 20, 24, 28
SRD_WOA, SRD_WOB = 4, 8
MODD, MA, MB, AVM = 64, 66, 70, 72
NON = 32
S_HD, S_QB, S_ODD, S_P0 = 34, 35, 36, 37
S_RB, S_CB, S_ROW, S_COL, S_ACT = 38, 39, 40, 41, 42
S_RB2, S_CB2, S_ACT2 = 43, 44, 45
VMASK, QPAD = 46, 48
S_W4 = 50
P = 64
WS = sr(SRD_WS)

def srd(a, d, ptr, size):
    a(f"s_mov_b32 s{d}, s{ptr}\ns_mov_b32 s{d+1}, s{ptr+1}\ns_mov_b32 s{d+2}, {size}\ns_mov_b32 s{d+3}, 0x20000")
def common_srds(a):
    srd(a, SRD_WS, P + 16, WS_SIZE); srd(a, SRD_DBG, P + 14, 256); srd(a, SRD_OUT, P + 12, 2048 * 1792)

def stamp(a, i):
    if STAMP: a(f"s_memtime s[{82+4*i}:{83+4*i}]\ns_memrealtime s[{84+4*i}:{85+4*i}]\ns_waitcnt lgkmcnt(0)")
def trace(a, idx, reg=165):
    if TRACE: a(f"s_memtime s[98:99]\ns_waitcnt lgkmcnt(0)\nv_writelane_b32 v{reg + idx // 64}, s98, {idx % 64}")
def stamp_out(a):
    if TRACE:
        a(f"""
        s_mov_b32 s22, 0x2000000
        s_lshl_b32 s4, s2, 4
        s_add_u32 s4, s4, s3
        s_lshl_b32 s4, s4, 9
        s_add_u32 s4, s4, {TS_OFF + 0x100000}
        v_lshlrev_b32 v1, 2, v0
        buffer_store_dword v165, v1, s[20:23], s4 offen
        buffer_store_dword v166, v1, s[20:23], s4 offen offset:256
        """)
    if not STAMP: return
    a("s_waitcnt vmcnt(0)")
    stamp(a, 4)
    a(f"""
    s_mov_b32 s22, 0x2000000
    s_lshl_b32 s4, s2, 4
    s_add_u32 s4, s4, s3
    s_lshl_b32 s4, s4, 6
    s_add_u32 s4, s4, {TS_OFF}
    """)
    for i in range(5):
        a(f"v_mov_b32 v{8+2*i}, s{84+4*i}\nv_mov_b32 v{9+2*i}, s{82+4*i}")
    a(f"""
    v_mov_b32 v1, 0
    s_mov_b64 exec, 1
    buffer_store_dwordx4 v[8:11], v1, s[20:23], s4 offen
    buffer_store_dwordx4 v[12:15], v1, s[20:23], s4 offen offset:16
    buffer_store_dwordx2 v[16:17], v1, s[20:23], s4 offen offset:32
    """)

GNS, GSLOT, ANS = 4, 28672, 6
L_WOB, L_Q, L_RING = 0, 57344, 65536
L_WOA = L_Q
def slot_addr(st): return L_RING + ((st % ANS + 2) % ANS) * 16384
L_COMB = slot_addr(13)
L_RED = slot_addr(15)
L_SYNC = slot_addr(14)
L_RELAY = slot_addr(3)
ABAR = [0, 4, 8, 12, 16, 20, 24, 28]
ONES = 0x3F803F80

def setup(a):
    if TRACE: a("v_mov_b32 v165, 0\nv_mov_b32 v166, 0"); trace(a, 0)
    if STAMP:
        for i in range(86, 98, 2): a(f"s_mov_b64 s[{i}:{i+1}], 0")
        a("s_memtime s[82:83]\ns_memrealtime s[84:85]")
    a(f"""
    s_load_dwordx16 s[64:79], s[0:1], 0
    s_load_dwordx2 s[80:81], s[0:1], 64
    s_cmp_ge_u32 s2, 256
    s_cbranch_scc1 L_exit
    v_lshrrev_b32 v1, 6, v0
    v_and_b32 v0, 63, v0
    v_readfirstlane_b32 s3, v1
    s_and_b32 s51, s2, 7
    s_lshr_b32 s52, s2, 3
    s_mul_i32 s53, s51, 31
    s_add_u32 s53, s53, s52
    s_cmp_lt_u32 s52, 31
    s_cselect_b32 s{S_ACT}, 1, 0
    s_cmp_lt_u32 s53, 242
    s_cselect_b32 s{S_ACT}, s{S_ACT}, 0
    s_mul_i32 s{S_RB}, s53, 171
    s_lshr_b32 s{S_RB}, s{S_RB}, 10
    s_mul_i32 s{S_CB}, s{S_RB}, 6
    s_sub_u32 s{S_CB}, s53, s{S_CB}
    s_sub_u32 s54, s53, 132
    s_mul_i32 s55, s54, 205
    s_lshr_b32 s55, s55, 10
    s_mul_i32 s56, s55, 5
    s_sub_u32 s56, s54, s56
    s_add_u32 s56, s56, 6
    s_cmp_ge_u32 s53, 132
    s_cselect_b32 s{S_RB}, s55, s{S_RB}
    s_cselect_b32 s{S_CB}, s56, s{S_CB}
    s_mul_i32 s{S_ROW}, s{S_RB}, 96
    s_min_u32 s{S_ROW}, s{S_ROW}, 1952
    s_lshl_b32 s{S_COL}, s{S_CB}, 2
    s_min_u32 s{S_COL}, s{S_COL}, 38
    s_and_b32 s{S_W4}, s3, 3
    s_cmp_ge_u32 s3, 8
    s_cbranch_scc0 L_comp
    """)

def setup2(a):
    a(f"""
    s_and_b32 s51, s2, 7
    s_lshl_b32 s{S_HD}, s51, 1
    s_bfe_u32 s{S_ODD}, s2, 0x10003
    s_add_u32 s{S_HD}, s{S_HD}, s{S_ODD}
    s_lshr_b32 s{S_QB}, s2, 4
    s_mul_i32 s{S_P0}, s{S_HD}, 7
    s_lshr_b32 s{S_P0}, s{S_P0}, 1
    s_lshl_b32 s{S_P0}, s{S_P0}, 9
    s_lshr_b32 s52, s2, 3
    s_cmp_lt_u32 s52, 28
    s_cselect_b32 s{S_ACT2}, 1, 0
    s_mul_i32 s{S_RB2}, s52, 37
    s_lshr_b32 s{S_RB2}, s{S_RB2}, 8
    s_mul_i32 s53, s{S_RB2}, 7
    s_sub_u32 s{S_CB2}, s52, s53
    s_lshl_b32 s51, s51, 2
    s_add_u32 s{S_RB2}, s{S_RB2}, s51
    s_min_u32 s{S_RB2}, s{S_RB2}, 31
    s_cmp_eq_u32 s{S_ODD}, 0
    s_cselect_b32 s{VMASK}, 0x0fffffff, -16
    s_mov_b32 s{VMASK+1}, s{VMASK}
    s_cselect_b32 s{QPAD}, 0, -1
    s_cselect_b32 s{QPAD+1}, -1, 0
    v_and_b32 v1, 31, v0
    v_lshrrev_b32 v2, 5, v0
    v_and_b32 v3, 51, v0
    v_bfe_u32 v4, v0, 2, 1
    v_lshl_add_u32 v3, v4, 3, v3
    v_bfe_u32 v4, v0, 3, 1
    v_lshl_add_u32 v3, v4, 2, v3
    v_lshlrev_b32 v5, 4, v3
    v_lshlrev_b32 v6, 4, v0
    """)
def norm_masks(a):
    a(f"""
    s_mov_b32 s{MODD}, s{QPAD}
    s_mov_b32 s{MODD+1}, s{QPAD}
    s_mov_b32 s{MA}, s{QPAD}
    s_mov_b32 s{MA+1}, 0
    s_mov_b32 s{MB}, 0
    s_mov_b32 s{MB+1}, s{QPAD+1}
    """)

def nonce_load(a, vt):
    a.vmem(f"buffer_load_dwordx2 {vr(vt,2)}, v{vt+2}, {sr(SRD_DBG)}, 0 offen sc1", "non")
def nonce_get(a, vt):
    L = a.lab("non")
    a(f"""
    s_mov_b32 s63, 0
    {L}:
    v_readfirstlane_b32 s{NON}, v{vt}
    v_readfirstlane_b32 s{NON+1}, v{vt+1}
    s_add_u32 s63, s63, 1
    s_cmp_lg_u32 s{NON+1}, 0
    s_cbranch_scc1 {L}_ok
    s_cmp_ge_u32 s63, {SPIN_MAX}
    s_cbranch_scc1 {L}_ok
    s_sleep 8
    buffer_load_dwordx2 {vr(vt,2)}, v{vt+2}, {sr(SRD_DBG)}, 0 offen sc1
    s_waitcnt vmcnt(0)
    s_branch {L}
    {L}_ok:
    """)
def put_flag(a, soff, vt):
    a("s_mov_b64 exec, 1")
    a.vmem(f"buffer_store_dwordx2 {vr(vt,2)}, v{vt+2}, {WS}, s{soff} offen sc1", "flag")
    a("s_mov_b64 exec, -1")

def zero_qpad(a, q):
    a(f"""
    v_cndmask_b32 v{q}, v{q}, 0, s[{MA}:{MA+1}]
    v_cndmask_b32 v{q+1}, v{q+1}, 0, s[{MA}:{MA+1}]
    v_cndmask_b32 v{q+6}, v{q+6}, 0, s[{MB}:{MB+1}]
    v_cndmask_b32 v{q+7}, v{q+7}, 0, s[{MB}:{MB+1}]
    """)

def finish_O(a, o, tmp, soff, sanitize, mid=None):
    x, y, r, ra, rb, pk = tmp, tmp + 1, tmp + 2, tmp + 4, tmp + 6, tmp + 8
    a(f"""
    v_cndmask_b32 v{x}, v{o+12}, v{o}, s[{MODD}:{MODD+1}]
    v_cndmask_b32 v{y}, v{o+12}, v{o}, s[{MODD}:{MODD+1}]
    """)
    if mid: mid()
    else: a("s_nop 1")
    a(f"""
    v_permlane32_swap_b32 v{x}, v{y}
    v_cndmask_b32 v{x}, v{y}, v{x}, s[{MODD}:{MODD+1}]
    v_rcp_f32 v{r}, v{x}
    s_nop 0
    v_cndmask_b32 v{ra}, v{r}, 0, s[{MA}:{MA+1}]
    v_cndmask_b32 v{rb}, v{r}, 0, s[{MB}:{MB+1}]
    """)
    for hf in range(2):
        for g in range(2 * hf, 2 * hf + 2):
            m = ra if g == 0 else rb if g == 3 else r
            for j in range(2):
                d = o + 4 * g + 2 * j
                a(f"v_pk_mul_f32 {vr(d,2)}, {vr(d,2)}, {vr(m,2)} op_sel_hi:[1,0]")
        for k in range(4 * hf, 4 * hf + 4):
            a(f"v_cvt_pk_bf16_f32 v{pk+k}, v{o+2*k}, v{o+2*k+1}")
            if sanitize: a(f"v_min_u32 v{pk+k}, -2, v{pk+k}")
        a.vmem(f"buffer_store_dwordx4 {vr(pk+4*hf,4)}, v6, {WS}, s{soff} offen offset:{1024*hf} sc1", "ost")

def w_frag_addr(a, dst, half_expr):
    a(f"""
    v_lshrrev_b32 v7, 5, v0
    v_bfe_u32 v4, v0, 2, 2
    v_lshl_add_u32 v{dst}, v7, 3, v4
    v_lshlrev_b32 v{dst}, 7, v{dst}
    v_lshrrev_b32 v4, 1, v4
    v_xor_b32 v4, {half_expr}, v4
    v_lshl_add_u32 v{dst}, v4, 6, v{dst}
    v_bfe_u32 v4, v0, 4, 1
    v_lshl_add_u32 v{dst}, v4, 5, v{dst}
    v_and_b32 v4, 1, v0
    v_lshl_add_u32 v{dst}, v4, 4, v{dst}
    v_bfe_u32 v4, v0, 1, 1
    v_lshl_add_u32 v{dst}, v4, 3, v{dst}
    """)

GO, NV = 136, 160
def gemm_store(a, m):
    L = a.lab("gs")
    a(f"""
    s_cmp_gt_u32 s55, {m}
    s_cbranch_scc1 {L}
    buffer_store_dwordx4 {vr(GO+8*m,4)}, v13, {WS}, s53 offen sc1
    buffer_store_dwordx4 {vr(GO+8*m+4,4)}, v14, {WS}, s53 offen sc1
    {L}:
    s_add_u32 s53, s53, s57
    """)
    if m == 2: nonce_load(a, NV)
def gemm_publish(a):
    L = a.lab("gp")
    trace(a, 46)
    a("s_waitcnt vmcnt(0)")
    trace(a, 47)
    nonce_get(a, NV)
    a(f"s_cmp_eq_u32 s55, 3\ns_cbranch_scc1 {L}")
    put_flag(a, 59, NV)
    a(f"{L}:")
def ones_pads(a):
    a(f"""
    v_and_b32 v7, 3, v0
    v_cmp_eq_u32 vcc, 0, v7
    v_mov_b32 v12, {hex(ONES)}
    s_lshl_b32 s51, s{S_W4}, 12
    v_cndmask_b32 v8, 0, v12, vcc
    s_cmp_eq_u32 s{S_ODD}, 0
    s_cselect_b32 s60, {28*16}, 0
    s_add_u32 s51, s51, s60
    s_add_u32 s51, s51, {L_RING + 2048}
    v_mov_b32 v9, v8
    v_mov_b32 v10, v8
    v_mov_b32 v11, v8
    v_lshl_add_u32 v7, v7, 4, s51
    v_bfe_u32 v12, v0, 2, 2
    v_lshl_add_u32 v7, v12, 9, v7
    v_lshrrev_b32 v12, 4, v0
    v_lshl_add_u32 v7, v12, 14, v7
    v_add_u32 v12, 0x10000, v7
    ds_write_b128 v7, v[8:11]
    s_mov_b32 exec_hi, 0
    ds_write_b128 v12, v[8:11]
    s_mov_b32 exec_hi, -1
    """)

def gemm_compute(a):
    ACC, FR = 88, 24
    a("s_waitcnt lgkmcnt(0)")
    common_srds(a)
    setup2(a); norm_masks(a)
    a(f"v_mov_b32 v{NV+2}, 0")
    if X("CODEPF", 1):
        a(f"""
        s_cmp_eq_u32 s3, 4
        s_cbranch_scc0 L_nopf
        s_getpc_b64 s[52:53]
        L_pc:
        s_lshr_b32 s51, s2, 3
        s_lshl_b32 s51, s51, 10
        v_add_u32 v7, s51, v6
        s_sub_u32 s52, s52, L_pc - L_begin
        s_subb_u32 s53, s53, 0
        v_cmp_gt_u32 vcc, L_codeend - L_begin - 12, v7
        s_nop 0
        s_and_saveexec_b64 s[54:55], vcc
        s_cbranch_execz L_pfe
        global_load_dwordx4 v[{GO}:{GO+3}], v7, s[52:53]
        L_pfe:
        s_mov_b64 exec, -1
        L_nopf:
        """)
    a(f"""
    s_cmp_eq_u32 s{S_ACT}, 0
    s_cbranch_scc1 L_gidle
    v_lshrrev_b32 v4, 1, v1
    v_and_b32 v4, 7, v4
    v_xor_b32 v4, v4, v2
    v_lshlrev_b32 v4, 4, v4
    v_lshl_add_u32 v8, v1, 7, v4
    v_xor_b32 v9, 32, v8
    v_xor_b32 v10, 64, v8
    v_xor_b32 v11, 96, v8
    s_and_b32 s51, s3, 1
    """)
    w_frag_addr(a, 12, "s51")
    a(f"""
    s_bfe_u32 s51, s3, 0x10001
    s_lshl_b32 s51, s51, 13
    s_add_u32 s51, s51, 12288
    v_add_u32 v12, s51, v12
    s_add_u32 s51, s{S_COL}, s{S_W4}
    s_cmp_eq_u32 s{S_RB}, 21
    s_cselect_b32 s55, 2, 0
    s_cmp_eq_u32 s{S_CB}, 10
    s_cselect_b32 s56, 2, 0
    s_cmp_lt_u32 s{S_W4}, s56
    s_cselect_b32 s55, 3, s55
    s_lshr_b32 s57, s{S_ROW}, 5
    s_cmp_ge_u32 s3, 4
    s_cselect_b32 s58, {3*SEC}, 0
    s_cselect_b32 s59, {FA - FB}, 0
    s_cselect_b32 s52, {(7 % GNS) * GSLOT}, 0
    s_add_u32 s59, s59, {FB}
    s_lshl_b32 s60, s51, 12
    s_add_u32 s59, s59, s60
    s_lshl_b32 s60, s{S_RB}, 7
    s_add_u32 s59, s59, s60
    """)
    for r in range(48): a(f"v_mov_b32 v{ACC+r}, 0")
    a("s_cmp_ge_u32 s51, 28\ns_cbranch_scc1 L_gV")
    def addr_list():
        return [f"v_add_u32 v{16+i}, s52, v{8+i}" for i in range(5)] + [f"s_add_u32 s52, s52, {GSLOT}", f"s_cmp_ge_u32 s52, {GSLOT*GNS}", "s_cselect_b32 s52, 0, s52"]
    def addrs():
        for x in addr_list(): a(x)
    def read_list(ks):
        f = FR + 16 * ks
        return [f"ds_read_b64_tr_b16 {vr(f+12, 2)}, v20 offset:{ks*2048}", f"ds_read_b64_tr_b16 {vr(f+14, 2)}, v20 offset:{ks*2048+512}"] + \
               [f"ds_read_b128 {vr(f + 4*m, 4)}, v{16+ks} offset:{m*4096}" for m in range(3)]
    def reads(ks):
        for x in read_list(ks): a(x)
    for var in ("QK", "V"):
        t = f"L_g{var}"
        a(f"{t}:")
        if var == "QK":
            a(f"""
            v_mov_b32 v13, v6
            v_add_u32 v14, 1024, v6
            s_cmp_ge_u32 s51, 14
            s_cselect_b32 s53, {SEC - 14*2048}, 0
            s_lshl_b32 s60, s51, 11
            s_add_u32 s53, s53, s60
            s_mul_i32 s60, s57, 28672
            s_add_u32 s53, s53, s60
            s_mov_b32 s57, 28672
            v_mov_b32 v22, {hex(f2u(QSCALE))}
            """)
        else:
            a(f"""
            v_and_b32 v4, 31, v3
            s_sub_u32 s60, s51, 28
            s_lshl_b32 s60, s60, 5
            v_add_u32 v4, s60, v4
            v_mul_u32_u24 v7, 2341, v4
            v_lshrrev_b32 v7, 16, v7
            v_mul_u32_u24 v13, 28, v7
            v_sub_u32 v4, v4, v13
            v_mul_u32_u24 v7, {64*1792}, v7
            v_lshl_add_u32 v13, v4, 4, v7
            v_mul_u32_u24 v4, 448, v2
            v_add_u32 v13, v13, v4
            v_add_u32 v14, 896, v13
            s_mul_i32 s53, s57, 1792
            s_add_u32 s53, s53, {2*SEC}
            s_mov_b32 s57, 1792
            """)
        a(f"s_add_u32 s53, s53, s58")
        addrs()
        a(f"s_cmp_ge_u32 s3, 4\ns_cbranch_scc0 {t}_go")
        for i in range(7): a("s_barrier")
        a(f"s_waitcnt vmcnt(0)\n{t}_go:\ns_barrier")
        def mf(ks, fill=((), (), ())):
            f = FR + 16 * ks
            for m in range(3):
                x, w, d = vr(f + 4*m, 4), vr(f + 12, 4), vr(ACC + 16*m, 16)
                if var == "QK": a(f"v_mfma_f32_32x32x16_bf16 {d}, {w}, {x}, {d}")
                else: a(f"v_mfma_f32_32x32x16_bf16 {d}, {x}, {w}, {d}")
                for y in fill[m]: a(y)
        def spread(ks):
            r = read_list(ks); return (r[0:2], r[2:4], r[4:5])
        reads(0); reads(1)
        a(f"s_mov_b32 s56, 6\n{t}_chunk:")
        a("s_waitcnt lgkmcnt(5)"); mf(0, spread(2))
        r3 = read_list(3)
        a("s_waitcnt lgkmcnt(5)"); mf(1, (r3[0:3], r3[3:5], ["s_cmp_eq_u32 s56, 0", f"s_cbranch_scc1 {t}_last"]))
        al = addr_list()
        a("s_waitcnt lgkmcnt(5)")
        mf(2, (al[0:5], al[5:8] + ["s_sub_u32 s56, s56, 1", "s_waitcnt lgkmcnt(0)", "s_barrier"], read_list(0)[0:3]))
        r0, r1 = read_list(0), read_list(1)
        mf(3, (r0[3:5], r1[0:3], r1[3:5]))
        a(f"s_branch {t}_chunk\n{t}_last:\ns_waitcnt lgkmcnt(0)")
        if X("A0EARLY", 1):
            a("s_barrier")
            stamp(a, 2)
        else:
            a(f"s_cmp_ge_u32 s3, 4\ns_cbranch_scc1 {t}_nb0\ns_barrier\n{t}_nb0:")
        mf(2); mf(3)
        if var == "QK":
            a("s_cmp_ge_u32 s51, 14\ns_nop 7\ns_cbranch_scc1 L_gcvt")
            for r in range(0, 48, 2): a(f"v_pk_mul_f32 {vr(ACC+r,2)}, {vr(ACC+r,2)}, v[22:23] op_sel_hi:[1,0]")
            a("s_branch L_gcvt")
        else:
            a("s_nop 9")
    a("L_gcvt:")
    for r in range(24): a(f"v_cvt_pk_bf16_f32 v{GO+r}, v{ACC+2*r}, v{ACC+2*r+1}")
    a(f"s_cmp_ge_u32 s3, 4\ns_cbranch_scc1 L_att")
    sched = {0: {8: [0, 1, 2]}, 1: {9: [0, 1, 2]}, 2: {8: [0], 9: [1, 2]}, 3: {9: [0, 1], 10: [2]}}[X("GSCHED", 0)]
    PUB = X("PUB", 8)
    for g in range(8, 14):
        if g == min(sched): trace(a, 44)
        for m in sched.get(g, []): gemm_store(a, m)
        if g == max(sched): trace(a, 45)
        if g == 13: trace(a, 49); ones_pads(a); trace(a, 50)
        a("s_barrier")
        if g == PUB: gemm_publish(a)
    stamp(a, 1)
    a("s_branch L_att")
    a(f"""
    L_gidle:
    s_mov_b32 s55, 3
    v_mov_b32 v13, 0
    v_mov_b32 v14, 0
    s_barrier
    s_cmp_ge_u32 s3, 4
    s_cbranch_scc1 L_gidle1
    """)
    ones_pads(a)
    a("s_branch L_att\nL_gidle1:")
    if X("A0EARLY", 1): a("s_barrier"); stamp(a, 2)

S0, S1, O_, CM, QF, KF, V0, V1, IDX, AD0, AD1, PART = 16, 32, 48, 64, 80, 88, 96, 100, 104, 105, 106, 108
def attn_compute(a):
    a(f"""
    L_att:
    v_mov_b32 v{IDX}, 0xdddddddd
    s_lshr_b32 s51, s3, 2
    s_lshl_b32 s51, s51, 13
    s_add_u32 s51, s51, {L_RING}
    v_add_u32 v{AD0}, s51, v5
    v_add_u32 v{AD1}, 0x10000, v{AD0}
    v_add_u32 v7, {slot_addr(0)}, v5
    s_lshl_b32 s51, s{S_W4}, 11
    s_add_u32 s51, s51, {L_Q}
    v_add_u32 v8, s51, v6
    """)
    def rd(dst, n, frag):
        st, u = n >> 1, n & 1
        off = slot_addr(st) - L_RING + u * 4096 + frag * 1024
        a(f"ds_read_b128 {vr(dst,4)}, v{AD0 if off < 65536 else AD1} offset:{off & 0xffff}")
    if X("A0EARLY", 1):
        if X("G1B0", 0):
            if X("ASTORE", 4) == 6:
                a("s_cmp_ge_u32 s3, 4\ns_cbranch_scc0 L_att00")
                for m in range(3): gemm_store(a, m)
                a("L_att00:")
            a("s_waitcnt lgkmcnt(0)\ns_barrier")
        else: a("s_cmp_ge_u32 s3, 4\ns_cbranch_scc1 L_att0\ns_waitcnt lgkmcnt(0)\ns_barrier\nL_att0:")
    else:
        a("s_waitcnt lgkmcnt(0)\ns_barrier"); stamp(a, 2)
    a(f"""
    ds_read_b128 {vr(QF,4)}, v8
    ds_read_b128 {vr(QF+4,4)}, v8 offset:1024
    ds_read_b128 {vr(CM,4)}, v7
    ds_read_b128 {vr(CM+4,4)}, v7 offset:1024
    """)
    rd(KF, 0, 0); rd(KF + 4, 0, 1); rd(V0, 0, 2)
    for r in range(8): a(f"v_mov_b32 v{O_+r}, 0")
    a("s_waitcnt lgkmcnt(5)")
    zero_qpad(a, QF)
    a(f"""
    s_waitcnt lgkmcnt(3)
    s_nop 0
    v_mfma_f32_32x32x16_bf16 {vr(S0,16)}, {vr(CM,4)}, {vr(QF,4)}, 0
    v_mfma_f32_32x32x16_bf16 {vr(S0,16)}, {vr(CM+4,4)}, {vr(QF+4,4)}, {vr(S0,16)}
    """)
    for r in range(8, 16): a(f"v_mov_b32 v{O_+r}, 0")
    a(f"""
    s_lshl_b32 s51, s{S_W4}, 12
    s_add_u32 s51, s51, {L_COMB}
    v_add_u32 v107, s51, v6
    s_nop 0
    v_max3_f32 v7, v{S0}, v{S0+1}, v{S0+2}
    """)
    for r in range(3, 15, 2): a(f"v_max3_f32 v7, v7, v{S0+r}, v{S0+r+1}")
    a(f"""
    v_max_f32 v7, v7, v{S0+15}
    v_mov_b32 v8, v7
    s_nop 1
    v_permlane32_swap_b32 v7, v8
    v_max_f32 v7, v7, v8
    v_sub_f32 v{CM}, {hex(f2u(-float(X("BIAS", 16))))}, v7
    v_mov_b32 v{CM+1}, v{CM}
    """)
    for r in range(2, 16, 2): a(f"v_pk_mov_b32 {vr(CM+r,2)}, {vr(CM,2)}, {vr(CM,2)}")
    a(f"""
    s_waitcnt lgkmcnt(1)
    s_nop 0
    v_mfma_f32_32x32x16_bf16 {vr(S0,16)}, {vr(KF,4)}, {vr(QF,4)}, {vr(CM,16)}
    v_mfma_f32_32x32x16_bf16 {vr(S0,16)}, {vr(KF+4,4)}, {vr(QF+4,4)}, {vr(S0,16)}
    """)
    rd(KF, 1, 0); rd(KF + 4, 1, 1)
    a("s_nop 9")
    def step(n, grp=None):
        Sc = S0 if n % 2 == 0 else S1
        Sn = S1 if n % 2 == 0 else S0
        def ex(lo, hi):
            for r in range(lo, hi): a(f"v_exp_f32 v{Sc+r}, v{Sc+r}")
        last = n == 31
        PR = X("PRIO", 1)
        if PR == 1 and n < 29: a(f"s_setprio {[0, 2, 1, 0][n % 4] if X('PTOP', 2) == 2 else [0, 3, 2, 1][n % 4]}")
        ex(0, 2)
        if n > 0:
            a(f"s_waitcnt lgkmcnt({1 if last else 3})")
            a(f"v_smfmac_f32_32x32x32_bf16 {vr(O_,16)}, {vr(V1,4)}, {vr(Sn+8,8)}, v{IDX}")
        rd(V1, n, 3)
        nk = 0
        if last and grp == 1:
            a("s_barrier")
            for i in range(4): a(f"ds_read_b128 {vr(PART+4*i,4)}, v107 offset:{i*1024}")
            nk = 4
        ex(2, 5)
        if not last:
            a(f"s_waitcnt lgkmcnt({2 if n > 0 else 1})")
            a(f"v_mfma_f32_32x32x16_bf16 {vr(Sn,16)}, {vr(KF,4)}, {vr(QF,4)}, {vr(CM,16)}")
        ex(5, 8)
        if not last:
            a(f"v_mfma_f32_32x32x16_bf16 {vr(Sn,16)}, {vr(KF+4,4)}, {vr(QF+4,4)}, {vr(Sn,16)}")
        if n + 2 < 32:
            if n in ABAR:
                if n == 0 and X("G1B0", 0): a("s_cmp_ge_u32 s3, 4\ns_cbranch_scc1 L_nb0\ns_barrier\nL_nb0:")
                else: a("s_barrier")
                if PR == 1 and n < 28: a(f"s_setprio {X('PTOP', 2)}")
            rd(KF, n + 2, 0); rd(KF + 4, n + 2, 1); nk = 2
        ex(8, 12)
        a(f"s_waitcnt lgkmcnt({1 + nk})")
        a(f"v_smfmac_f32_32x32x32_bf16 {vr(O_,16)}, {vr(V0,4)}, {vr(Sc,8)}, v{IDX}")
        if not last: rd(V0, n + 1, 2)
        if n == 30: a("s_nop 1")
        AS = {0: {2: [0, 1], 3: [2]}, 1: {1: [0], 2: [1], 3: [2]}, 2: {3: [0, 1, 2]}, 3: {2: [0, 1, 2]}, 4: {0: [0, 1, 2]}, 5: {0: [0, 1], 1: [2]}, 6: {}}[X("ASTORE", 4)]
        if n in AS or n == X("APUB", 5):
            L = a.lab("g1")
            a(f"s_cmp_ge_u32 s3, 4\ns_cbranch_scc0 {L}")
            if n in AS:
                for m in AS[n]: gemm_store(a, m)
            else: gemm_publish(a)
            a(f"{L}:")
        ex(12, 16)
        if last:
            a("s_waitcnt lgkmcnt(0)")
            a("s_barrier" if grp == 1 else "s_nop 0")
            a(f"v_smfmac_f32_32x32x32_bf16 {vr(O_,16)}, {vr(V1,4)}, {vr(S1+8,8)}, v{IDX}")
    for n in range(31): step(n)
    a("s_cmp_ge_u32 s3, 4\ns_cbranch_scc0 L_g0last")
    step(31, 1)
    stamp(a, 3); trace(a, 112)
    a(f"""
    s_lshl_b32 s51, s{S_QB}, 2
    s_add_u32 s51, s51, s{S_W4}
    s_lshl_b32 s51, s51, 4
    s_add_u32 s51, s51, s{S_HD}
    s_lshl_b32 s51, s51, 11
    s_add_u32 s51, s51, {OB}
    s_nop 5
    """)
    for r in range(0, 16, 2): a(f"v_pk_add_f32 {vr(O_+r,2)}, {vr(O_+r,2)}, {vr(PART+r,2)}")
    def guard():
        a(f"v_maximum3_f32 v8, |v{O_}|, |v{O_+1}|, |v{O_+2}|")
        for r in range(3, 15, 2): a(f"v_maximum3_f32 v8, v8, |v{O_+r}|, |v{O_+r+1}|")
        a(f"v_maximum3_f32 v8, v8, |v{O_+15}|, |v{O_+15}|")
        a(f"v_cmp_ngt_f32 vcc, {'-1.0' if X('FORCEFB') else hex(f2u(2.0**120))}, v8\ns_nop 0\ns_cbranch_vccnz L_fallback")
    a.vm_reset()
    finish_O(a, O_, S1, 51, False, mid=guard)
    trace(a, 114)
    if TRACE: a("s_waitcnt vmcnt(0)")
    trace(a, 115)
    a("s_branch L_end")
    a("L_g0last:")
    step(31, 0)
    trace(a, 112)
    oproj_params(a, "B")
    a("s_nop 1")
    for i in range(4): a(f"ds_write_b128 v107, {vr(O_+4*i,4)} offset:{i*1024}")
    a("s_waitcnt lgkmcnt(0)\ns_barrier")
    a(f"s_barrier\ns_cmp_eq_u32 s{S_ACT2}, 0\ns_cbranch_scc1 L_end")
    trace(a, 113)
    if X("SENT", 0) == 2:
        fl = os.environ.get("SFLAG", "sc1").replace("_", " ")
        ld = f"buffer_load_dword v8, v9, {WS}, s52 offen offset:2044 {fl}" if fl != "atomic" else f"v_mov_b32 v8, 0\nbuffer_atomic_or v8, v9, {WS}, s52 offen offset:2044 sc0 sc1"
        a(f"""
        s_sleep {X('SDELAY', 8)}
        v_lshlrev_b32 v9, 11, v0
        s_mov_b64 exec, 0xff
        {ld}
        s_mov_b64 exec, -1
        """)
        oproj_init(a)
        a(f"""
        s_mov_b32 s63, 0
        s_mov_b64 exec, 0xff
        L_sp:
        s_waitcnt vmcnt(0)
        v_cmp_eq_u32 vcc, -1, v8
        s_add_u32 s63, s63, 1
        s_cbranch_vccz L_spd
        s_cmp_ge_u32 s63, {SPIN_MAX}
        s_cbranch_scc1 L_spd
        s_mov_b64 exec, vcc
        s_sleep {X('OSLEEP', 1)}
        {ld}
        s_branch L_sp
        L_spd:
        s_mov_b64 exec, -1
        """)
        oproj_loads(a)
    elif X("SENT", 0):
        a(f"""
        v_min_u32 v7, 7, v0
        v_lshlrev_b32 v7, 11, v7
        s_sleep {X('SDELAY', 2)}
        buffer_load_dword v4, v7, {WS}, s52 offen offset:2044 sc1
        s_mov_b32 s60, 0
        s_brev_b32 s61, 1
        s_sleep {X('SDELAY2', 4)}
        s_waitcnt vmcnt(0)
        v_cmp_ne_u32 vcc, -1, v4
        """)
        oproj_init(a)
        for k in range(8): a(f"v_mov_b32 v{OF+8*k}, -1")
        for k in range(8):
            a(f"s_bitcmp1_b32 vcc_lo, {k}\ns_cselect_b64 exec, -1, s[60:61]")
            o_load(a, k)
        a("s_mov_b64 exec, -1")
    else:
        a(f"s_sleep {X('ODELAY', 22)}")
        oproj_init(a)
        T0 = X("TOUCH", 44)
        if T0:
            per = (128 - T0 + 6) // 7
            a(f"""
            v_mul_u32_u24 v8, 7, v0
            v_add_u32 v8, s{S_CB2}, v8
            v_add_u32 v8, {T0}, v8
            v_min_u32 v8, 127, v8
            v_lshlrev_b32 v8, 7, v8
            s_mov_b64 exec, {(1 << per) - 1}
            buffer_load_dword v9, v8, {WS}, s52 offen sc1
            s_mov_b64 exec, -1
            """)
        oproj_loads(a)
    a("s_branch L_oproj")
    fallback(a)

def fallback(a):
    a(f"""
    L_fallback:
    v_and_b32 v7, 31, v3
    s_lshl_b32 s54, s{S_ODD}, 2
    v_subrev_u32 v8, s54, v7
    v_cmp_gt_u32 s[60:61], 28, v8
    v_mul_u32_u24 v9, 448, v2
    v_lshl_add_u32 v8, v8, 4, v9
    v_add_u32 v8, 256, v8
    v_mov_b32 v7, 0xff800000
    s_add_u32 s54, s{S_P0}, {KB}
    s_mov_b32 s56, 64
    L_fb1:
    buffer_load_dwordx4 {vr(KF,4)}, v5, {WS}, s54 offen sc1
    buffer_load_dwordx4 {vr(KF+4,4)}, v5, {WS}, s54 offen offset:1024 sc1
    s_add_u32 s54, s54, 28672
    s_waitcnt vmcnt(0)
    v_mfma_f32_32x32x16_bf16 {vr(S0,16)}, {vr(KF,4)}, {vr(QF,4)}, 0
    v_mfma_f32_32x32x16_bf16 {vr(S0,16)}, {vr(KF+4,4)}, {vr(QF+4,4)}, {vr(S0,16)}
    s_nop 11
    """)
    for r in range(0, 16, 2): a(f"v_max3_f32 v7, v7, v{S0+r}, v{S0+r+1}")
    a(f"""
    s_sub_u32 s56, s56, 1
    s_cmp_lg_u32 s56, 0
    s_cbranch_scc1 L_fb1
    v_mov_b32 v9, v7
    s_nop 1
    v_permlane32_swap_b32 v7, v9
    v_max_f32 v7, v7, v9
    """)
    for r in range(16): a(f"v_sub_f32 v{CM+r}, 0, v7\nv_mov_b32 v{O_+r}, 0")
    for r in range(8): a(f"v_mov_b32 v{V0+r}, {hex(ONES)}")
    a(f"""
    s_add_u32 s54, s{S_P0}, {KB}
    s_mul_i32 s57, s{S_HD}, {64*1792}
    s_add_u32 s57, s57, {VB - 256}
    s_mov_b32 s56, 64
    L_fb2:
    buffer_load_dwordx4 {vr(KF,4)}, v5, {WS}, s54 offen sc1
    buffer_load_dwordx4 {vr(KF+4,4)}, v5, {WS}, s54 offen offset:1024 sc1
    s_mov_b64 exec, s[60:61]
    buffer_load_dwordx4 {vr(V0,4)}, v8, {WS}, s57 offen sc1
    buffer_load_dwordx4 {vr(V1,4)}, v8, {WS}, s57 offen offset:896 sc1
    s_mov_b64 exec, -1
    s_add_u32 s54, s54, 28672
    s_add_u32 s57, s57, 1792
    s_waitcnt vmcnt(0)
    v_mfma_f32_32x32x16_bf16 {vr(S0,16)}, {vr(KF,4)}, {vr(QF,4)}, {vr(CM,16)}
    v_mfma_f32_32x32x16_bf16 {vr(S0,16)}, {vr(KF+4,4)}, {vr(QF+4,4)}, {vr(S0,16)}
    s_nop 11
    """)
    for r in range(16): a(f"v_exp_f32 v{S0+r}, v{S0+r}")
    a(f"""
    s_nop 1
    v_smfmac_f32_32x32x32_bf16 {vr(O_,16)}, {vr(V0,4)}, {vr(S0,8)}, v{IDX}
    v_smfmac_f32_32x32x32_bf16 {vr(O_,16)}, {vr(V1,4)}, {vr(S0+8,8)}, v{IDX}
    s_sub_u32 s56, s56, 1
    s_cmp_lg_u32 s56, 0
    s_nop 7
    s_cbranch_scc1 L_fb2
    s_nop 7
    """)
    finish_O(a, O_, S1, 51, True)
    a("s_branch L_end")

OF, OACC, OW, OAD = 16, 80, 112, 144
def oproj_params(a, br):
    Ob, LW, red, fl, oo = (OA, L_WOA, L_RED, 0, 0) if br == "A" else (OB, L_WOB, L_COMB, 16, 896)
    a(f"""
    s_and_b32 s55, s{S_W4}, 1
    s_lshl_b32 s52, s{S_RB2}, 1
    s_add_u32 s55, s55, s52
    s_lshr_b32 s51, s{S_W4}, 1
    s_lshl_b32 s52, s55, 15
    s_lshl_b32 s53, s51, 14
    s_add_u32 s52, s52, s53
    s_add_u32 s52, s52, {Ob}
    s_mul_i32 s55, s55, {32*1792}
    s_lshl_b32 s53, s{S_CB2}, 7
    s_add_u32 s55, s55, s53
    s_lshl_b32 s53, s51, 6
    s_add_u32 s55, s55, s53
    s_add_u32 s55, s55, {oo}
    s_lshl_b32 s53, s{S_W4}, 12
    s_xor_b32 s54, s53, 0x2000
    s_add_u32 s53, s53, {red}
    s_add_u32 s54, s54, {red}
    s_mul_i32 s57, s51, {224*128}
    s_add_u32 s57, s57, {LW}
    s_lshl_b32 s58, s{S_W4}, 2
    s_add_u32 s58, s58, {L_SYNC + fl}
    """)
def oproj_init(a):
    w_frag_addr(a, OAD, "0")
    a(f"""
    v_add_u32 v{OAD}, s57, v{OAD}
    v_xor_b32 v{OAD+1}, 64, v{OAD}
    v_add_u32 v{OAD+2}, s53, v6
    v_add_u32 v{OAD+3}, s54, v6
    v_mov_b32 v{OAD+4}, s58
    v_xor_b32 v{OAD+5}, 8, v{OAD+4}
    v_mov_b32 v{OAD+6}, 1
    v_mul_u32_u24 v{OAD+7}, 1792, v1
    v_lshl_add_u32 v{OAD+7}, v2, 4, v{OAD+7}
    v_add_u32 v{OAD+8}, 0x1000, v6
    v_add_u32 v{OAD+9}, 0x2000, v6
    v_add_u32 v{OAD+10}, 0x3000, v6
    """)
def o_load(a, k):
    for s in range(2):
        f = 2 * k + s
        va = 6 if f < 4 else OAD + 7 + f // 4
        a.vmem(f"buffer_load_dwordx4 {vr(OF+4*f,4)}, v{va}, {WS}, s52 offen offset:{(f&3)*1024} sc1", f"of{k}")
def oproj_loads(a):
    for k in range(8): o_load(a, k)
def oproj_main(a):
    a("L_oproj:")
    trace(a, 114)
    NB = 4
    def wlist(j):
        if j >= 16: return []
        k, st = j >> 1, j & 1
        row = 28 * k - 4 * (k & 1) + 16 * st
        r = []
        for n in range(2):
            f = OW + 8 * (j % NB) + 4 * n
            r.append(f"ds_read_b64_tr_b16 {vr(f,2)}, v{OAD+n} offset:{row*128}")
            r.append(f"ds_read_b64_tr_b16 {vr(f+2,2)}, v{OAD+n} offset:{row*128+512}")
        return r
    def clist(k):
        o = OF + 8 * k
        return [f"v_max3_u32 v7, v{o}, v{o+1}, v{o+2}", f"v_max3_u32 v4, v{o+3}, v{o+4}, v{o+5}", f"v_max3_u32 v7, v7, v{o+6}, v{o+7}",
                "v_max_u32 v7, v7, v4", "v_cmp_eq_u32 vcc, -1, v7"]
    def check(k):
        for x in clist(k): a(x)
    for j in range(NB - 1):
        for x in wlist(j): a(x)
    a("s_mov_b32 s63, 0\ns_movk_i32 s56, 0\ns_waitcnt vmcnt(14)")
    check(0)
    a("s_waitcnt lgkmcnt(8)")
    for j in range(16):
        k = j >> 1
        if j % 2 == 0: a(f"s_cbranch_vccnz L_oretry\nL_ob{k}:")
        w = wlist(j + NB - 1)
        nxt = min(j + NB - 1, 15) - (j + 1)
        fills = [w[0:2], w[2:4]]
        if j % 2 == 1 and k < 7:
            c = clist(k + 1)
            fills = [w[0:4] + [f"s_waitcnt vmcnt({12 - 2*k})"], c + [f"s_movk_i32 s56, {k+1}"]]
        if j < 15: fills[1] = fills[1] + [f"s_waitcnt lgkmcnt({4*nxt})"]
        for n in range(2):
            d = vr(OACC + 16 * n, 16)
            a(f"v_mfma_f32_32x32x16_bf16 {d}, {vr(OW+8*(j%NB)+4*n,4)}, {vr(OF+4*j,4)}, {d if j else 0}")
            for x in fills[n]: a(x)
    a("s_branch L_odone")
    a(f"L_oretry:\ns_mov_b32 s60, 0\ns_brev_b32 s61, 1\ns_waitcnt vmcnt(0)\nL_ore2:\ns_mov_b32 s59, 0")
    for k in range(8):
        a(f"s_cmp_gt_u32 s56, {k}\ns_cbranch_scc1 L_o2_{k}")
        check(k)
        a(f"s_nop 0\ns_cbranch_vccz L_o2_{k}\ns_bitset1_b32 s59, {k}")
        if X("RGATE", 0):
            a(f"v_readlane_b32 s62, v{OF+8*k+7}, 63\ns_nop 0\ns_cmp_lg_u32 s62, -1\ns_cselect_b64 exec, -1, s[60:61]")
        o_load(a, k)
        if X("RGATE", 0): a("s_mov_b64 exec, -1")
        a(f"L_o2_{k}:")
    a(f"""
    s_add_u32 s63, s63, 1
    s_waitcnt vmcnt(0)
    s_cmp_ge_u32 s63, {SPIN_MAX}
    s_cbranch_scc1 L_oret
    s_bitcmp1_b32 s59, s56
    s_cbranch_scc0 L_oret
    """)
    for k in range(8):
        a(f"s_cmp_eq_u32 s56, {k}\ns_cbranch_scc0 L_o4_{k}")
        check(k)
        a(f"s_nop 0\ns_cbranch_vccz L_ob{k}\ns_branch L_osl\nL_o4_{k}:")
    a("L_osl:")
    if X("OSLEEP", 1): a(f"s_sleep {X('OSLEEP', 1)}")
    a("s_branch L_ore2\nL_oret:")
    for k in range(7): a(f"s_cmp_eq_u32 s56, {k}\ns_cbranch_scc1 L_ob{k}")
    a("s_branch L_ob7\nL_odone:")
    if TRACE: a(f"v_writelane_b32 v166, s63, 63")
    trace(a, 116)
    a("s_cmp_eq_u32 s51, 0\ns_nop 7\ns_mov_b32 s63, 0\ns_cbranch_scc1 L_ok0")
    for var in (1, 0):
        keep, send = OACC + 16 * var, OACC + 16 * (1 - var)
        if var == 0: a("L_ok0:")
        for i in range(4): a(f"ds_write_b128 v{OAD+2}, {vr(send+4*i,4)} offset:{i*1024}")
        a(f"ds_write_b32 v{OAD+4}, v{OAD+6}\nL_ow{var}:\nds_read_b32 v7, v{OAD+5}")
        for i in range(4): a(f"ds_read_b128 {vr(OF+4*i,4)}, v{OAD+3} offset:{i*1024}")
        a(f"""
        s_add_u32 s63, s63, 1
        s_waitcnt lgkmcnt(4)
        v_cmp_eq_u32 vcc, 0, v7
        s_cmp_ge_u32 s63, {SPIN_MAX*8}
        s_cbranch_scc1 L_og{var}
        s_cbranch_vccnz L_ow{var}
        L_og{var}:
        """)
        for hf in range(2):
            a(f"s_waitcnt lgkmcnt({2 - 2*hf})")
            for r in range(8*hf, 8*hf+8, 2): a(f"v_pk_add_f32 {vr(keep+r,2)}, {vr(keep+r,2)}, {vr(OF+r,2)}")
            for r in range(4*hf, 4*hf+4): a(f"v_cvt_pk_bf16_f32 v{OF+16+r}, v{keep+2*r}, v{keep+2*r+1}")
            a(f"buffer_store_dwordx4 {vr(OF+16+4*hf,4)}, v{OAD+7}, {sr(SRD_OUT)}, s55 offen offset:{32*hf} {os.environ.get('OUTF', '')}")
        if var == 1: a("s_branch L_oe")
    a("L_oe:")
    trace(a, 117)
    if TRACE: a("s_waitcnt vmcnt(0)")
    trace(a, 118)

FL, SNV = 150, 158
VW, VVA, VVB, VR0, VR1 = 161, 162, 163, 164, 167
def qkv_flag_loads(a, F):
    vt = FL
    a(f"""
    s_lshr_b32 s51, s{S_P0}, 11
    s_add_u32 s52, s{S_P0}, 1536
    s_lshr_b32 s52, s52, 11
    s_sub_u32 s52, s52, s51
    s_lshl_b32 s52, s52, 12
    v_mul_u32_u24 v7, s52, v2
    s_lshl_b32 s51, s51, 12
    s_add_u32 s61, s51, {F}
    s_lshl_b32 s51, s{S_QB}, 2
    """)
    if F == FB: a("s_add_u32 s52, s51, 3")
    else: a(f"s_add_u32 s52, s51, s{S_W4}\ns_max_u32 s51, s52, 1\ns_sub_u32 s51, s51, 1")
    a(f"""
    s_mul_i32 s51, s51, 86
    s_lshr_b32 s51, s51, 8
    s_mul_i32 s52, s52, 86
    s_lshr_b32 s52, s52, 8
    v_max_u32 v4, s51, v1
    v_min_u32 v4, s52, v4
    v_lshl_add_u32 v{vt+7}, v4, 7, v7
    """)
    if F == FB: a(f"v_min_u32 v4, 21, v1")
    a(f"""
    v_lshl_add_u32 v{vt+6}, v4, 7, v7
    v_add_u32 v{vt+6}, {14*4096}, v{vt+6}
    s_add_u32 s62, s61, {14*4096}
    """)
    a.vmem(f"buffer_load_dwordx2 {vr(vt,2)}, v{vt+7}, {WS}, s61 offen sc1", "qf")
    a.vmem(f"buffer_load_dwordx2 {vr(vt+2,2)}, v{vt+6}, {WS}, s61 offen sc1", "qf")
    a.vmem(f"buffer_load_dwordx2 {vr(vt+4,2)}, v{vt+6}, {WS}, s62 offen sc1", "qf")
def qkv_flag_test(a):
    vt = FL
    a(f"""
    v_cmp_ne_u64 vcc, s[{NON}:{NON+1}], {vr(vt,2)}
    v_cmp_ne_u64 s[52:53], s[{NON}:{NON+1}], {vr(vt+2,2)}
    v_cmp_ne_u64 s[54:55], s[{NON}:{NON+1}], {vr(vt+4,2)}
    s_add_u32 s63, s63, 1
    s_or_b64 s[56:57], s[52:53], vcc
    s_or_b64 s[56:57], s[56:57], s[54:55]
    """)
def qkv_flag_check(a):
    vt = FL
    L = a.lab("qf")
    a.vm_wait("qf")
    a(f"s_mov_b32 s63, 0\n{L}:")
    qkv_flag_test(a)
    a(f"""
    s_cbranch_scc0 {L}_ok
    s_cmp_ge_u32 s63, {SPIN_MAX}
    s_cbranch_scc1 {L}_ok
    s_sleep {X("QSLEEP", 1)}
    s_or_b64 exec, vcc, 1
    buffer_load_dwordx2 {vr(vt,2)}, v{vt+7}, {WS}, s61 offen sc1
    s_or_b64 exec, s[52:53], 1
    buffer_load_dwordx2 {vr(vt+2,2)}, v{vt+6}, {WS}, s61 offen sc1
    s_or_b64 exec, s[54:55], 1
    buffer_load_dwordx2 {vr(vt+4,2)}, v{vt+6}, {WS}, s62 offen sc1
    s_mov_b64 exec, -1
    s_waitcnt vmcnt(0)
    s_branch {L}
    {L}_ok:
    """)

def service(a):
    a("s_setprio 3")
    a.vm_reset()
    a(f"""
    v_lshrrev_b32 v1, 3, v0
    v_and_b32 v2, 7, v0
    v_lshrrev_b32 v3, 1, v1
    s_and_b32 s51, s3, 1
    s_lshl_b32 s51, s51, 2
    v_add_u32 v4, s51, v3
    v_xor_b32 v4, v2, v4
    v_lshlrev_b32 v4, 4, v4
    v_mul_u32_u24 v5, 896, v1
    v_add_u32 v8, v4, v5
    v_add_u32 v9, 28672, v8
    v_add_u32 v10, 57344, v8
    v_and_b32 v3, 1, v3
    v_lshlrev_b32 v3, 2, v3
    v_xor_b32 v4, v2, v3
    v_lshlrev_b32 v4, 4, v4
    v_add_u32 v{VW}, v4, v5
    v_mul_u32_u24 v5, 2688, v1
    v_add_u32 v11, v4, v5
    v_add_u32 v12, {32*2688}, v11
    v_add_u32 v13, 128, v11
    v_add_u32 v14, 128, v12
    s_lshl_b32 s51, s{S_W4}, 3
    s_add_u32 s56, s{S_ROW}, s51
    s_mul_i32 s56, s56, 896
    s_mul_i32 s57, s51, 2688
    s_lshl_b32 s52, s{S_COL}, 6
    s_add_u32 s57, s57, s52
    s_lshl_b32 s58, s{S_W4}, 10
    s_add_u32 s59, s{S_RB}, s{S_CB}
    """)
    R = X("ROT", 7)
    if R == 7: a("s_mul_i32 s51, s59, 37\ns_lshr_b32 s51, s51, 8\ns_mul_i32 s51, s51, 7\ns_sub_u32 s59, s59, s51")
    if R == 2: a("s_and_b32 s59, s59, 1\ns_mul_i32 s59, s59, 3")
    if R == 3: a("s_mul_i32 s51, s59, 86\ns_lshr_b32 s51, s51, 8\ns_mul_i32 s51, s51, 3\ns_sub_u32 s59, s59, s51\ns_lshl_b32 s59, s59, 1")
    if R == 0: a("s_mov_b32 s59, 0")
    a("s_waitcnt lgkmcnt(0)")
    srd(a, SRD_XB, P + 6, 1835008); srd(a, SRD_WB, P + 8, 448 * 2688)
    a(f"s_cmp_eq_u32 s{S_ACT}, 0\ns_cbranch_scc1 L_sv_nog")
    def issue(g):
        Xs, W = (SRD_XB, SRD_WB) if g < 7 else (SRD_XA, SRD_WA)
        slot = (g % GNS) * GSLOT
        a(f"""
        s_lshl_b32 s60, s59, 7
        s_add_u32 s60, s60, s56
        s_mul_i32 s61, s59, {64*2688}
        s_add_u32 s61, s61, s57
        """)
        order = [('x', 0), ('w', 0), ('w', 2), ('x', 1), ('w', 1), ('w', 3), ('x', 2)]
        fill = ["s_add_u32 s59, s59, 1", "s_nop 0", "s_nop 0", "s_nop 0", "s_nop 0", "s_nop 0", "s_cmp_ge_u32 s59, 7"]
        for (kind, u), fl in zip(order, fill):
            if kind == 'x':
                a(f"s_add_u32 m0, s58, {slot + u * 4096}\n{fl}")
                a.vmem(f"buffer_load_dwordx4 v{8+u}, {sr(Xs)}, s60 offen lds", f"g{g}")
            else:
                j, v = u >> 1, u & 1
                a(f"s_add_u32 m0, s58, {slot + 12288 + j * 8192 + v * 4096}\n{fl}")
                a.vmem(f"buffer_load_dwordx4 v{11 + 2*j + v}, {sr(W)}, s61 offen lds", f"g{g}")
        a("s_cselect_b32 s59, 0, s59")
    trace(a, 48)
    issue(0)
    srd(a, SRD_XA, P + 0, 1835008); srd(a, SRD_WA, P + 2, 448 * 2688)
    common_srds(a)
    a(f"""
    s_sub_u32 s51, s3, 8
    s_or_b32 s51, s51, s2
    s_cmp_eq_u32 s51, 0
    s_cbranch_scc0 L_nonon
    s_memrealtime s[52:53]
    v_mov_b32 v18, 0
    s_waitcnt lgkmcnt(0)
    s_or_b32 s53, s53, 0x80000000
    v_mov_b32 v16, s52
    v_mov_b32 v17, s53
    s_mov_b64 exec, 1
    buffer_store_dwordx2 v[16:17], v18, {sr(SRD_DBG)}, 0 offen sc1
    s_mov_b64 exec, -1
    L_nonon:
    """)
    A = AttnA(a)
    def sv_setup():
        setup2(a); norm_masks(a)
        a(f"""
        v_mov_b32 v{SNV+2}, 0
        v_mov_b32 v{FL+6}, 0
        v_mov_b32 v{FL+7}, 0
        v_mul_u32_u24 v7, 448, v2
        v_lshl_add_u32 v7, v1, 4, v7
        s_lshl_b32 s51, s{S_ODD}, 6
        s_sub_u32 s51, 256, s51
        v_add_u32 v{VVA}, s51, v7
        v_subrev_u32 v{VVB}, 128, v{VVA}
        v_lshlrev_b32 v{VR0}, 12, v0
        v_add_u32 v{VR0}, {L_RELAY}, v{VR0}
        s_lshl_b32 s51, s{S_W4}, 12
        s_add_u32 s51, s51, {L_RELAY}
        v_mov_b32 v{VR1}, s51
        v_mov_b32 v7, 0
        ds_write_b32 v{VR1}, v7
        """)
        A.masks()
        a("s_waitcnt lgkmcnt(0)")
    def sv_setup_late():
        nonce_load(a, SNV)
        srd(a, SRD_WOA, P + 4, 448 * 896); srd(a, SRD_WOB, P + 10, 448 * 896)
        a(f"""
        s_lshl_b32 s58, s{S_W4}, 12
        s_mul_i32 s59, s{S_W4}, 28672
        s_add_u32 s59, s59, s{S_P0}
        s_add_u32 s59, s59, {KB}
        s_lshl_b32 s60, s{S_HD}, 6
        s_add_u32 s60, s60, s{S_W4}
        s_mul_i32 s60, s60, 1792
        s_add_u32 s60, s60, {VB - 256}
        """)
    def dma(st):
        a(f"s_add_u32 m0, s58, {slot_addr(st)}\ns_add_u32 s56, s59, {st*4*28672}")
        a.vmem(f"buffer_load_dwordx4 v6, {WS}, s56 offen sc1 lds", f"a{st}")
        a.vmem(f"buffer_load_dwordx4 v6, {WS}, s56 offen offset:1024 sc1 lds", f"a{st}")
        a(f"s_add_u32 m0, s58, {slot_addr(st) + 2048}\ns_add_u32 s57, s60, {st*4*1792}\ns_mov_b64 exec, s[{VMASK}:{VMASK+1}]")
        a.vmem(f"buffer_load_dwordx4 v{VVA}, {WS}, s57 offen sc1 lds", f"a{st}")
        a.vmem(f"buffer_load_dwordx4 v{VVB}, {WS}, s57 offen offset:1024 sc1 lds", f"a{st}")
        a("s_mov_b64 exec, -1")
    APRE = X("APRE", 3)
    def relay_set():
        a(f"v_mov_b32 v7, 1\ns_mov_b64 exec, 15\nds_write_b32 v{VR0}, v7\ns_mov_b64 exec, -1")
    def first_dmas():
        a(f"""
        s_mul_i32 s56, s{S_QB}, {4*28672}
        s_add_u32 s56, s56, s59
        s_lshr_b32 s51, s58, 1
        s_add_u32 m0, s51, {L_Q}
        s_sub_u32 s56, s56, {KB}
        """)
        a.vmem(f"buffer_load_dwordx4 v6, {WS}, s56 offen sc1 lds", "a0")
        a.vmem(f"buffer_load_dwordx4 v6, {WS}, s56 offen offset:1024 sc1 lds", "a0")
        for st in range(X('APRE0', 1)): dma(st)
    issued = 1
    while issued < X("PRE", 2): issue(issued); issued += 1
    sv_setup()
    FBAT = X("FBAT", 11)
    KVAT = X("KVAT", 12)
    for c in range(KVAT + 1):
        trace(a, 1 + 3*c)
        if c > FBAT:
            n = len(a.vm) - 1 - max(i for i, t in enumerate(a.vm) if t == f"g{c}")
            L = a.lab("fw")
            a(f"s_cmp_eq_u32 s{S_W4}, 0\ns_cbranch_scc0 {L}\ns_waitcnt vmcnt({n+3})\ns_branch {L}_d\n{L}:")
            a.vm_wait(f"g{c}")
            a(f"{L}_d:")
        else:
            a.vm_wait(f"g{c}")
        trace(a, 2 + 3*c)
        a("s_barrier")
        trace(a, 3 + 3*c)
        if c == 0: stamp(a, 1)
        while issued <= min(13, c + GNS - 1): issue(issued); issued += 1
        if c == 10: sv_setup_late()
        if c == FBAT:
            keep = list(a.vm)
            a(f"s_cmp_eq_u32 s{S_W4}, 0\ns_cbranch_scc0 L_nofb")
            qkv_flag_loads(a, FB)
            a("L_nofb:")
            a.vm = keep
    a("s_branch L_sv_att\nL_sv_nog:")
    common_srds(a)
    sv_setup(); sv_setup_late()
    a("s_sleep 64")
    qkv_flag_loads(a, FB)
    a("s_barrier\nL_sv_att:\ns_waitcnt vmcnt(0)")
    a.vm_reset()
    a(f"s_cmp_eq_u32 s{S_W4}, 0\ns_cbranch_scc0 L_relay")
    nonce_get(a, SNV)
    qkv_flag_check(a)
    relay_set()
    a(f"""
    s_branch L_relay_ok
    L_relay:
    s_mov_b32 s63, 0
    L_relay_w:
    ds_read_b32 v7, v{VR1}
    s_add_u32 s63, s63, 1
    s_waitcnt lgkmcnt(0)
    v_cmp_eq_u32 vcc, 0, v7
    s_cmp_ge_u32 s63, {SPIN_MAX*16}
    s_cbranch_scc1 L_relay_ok
    s_cbranch_vccnz L_relay_w
    L_relay_ok:
    """)
    stamp(a, 2); trace(a, 44)
    first_dmas()
    if KVAT == 12:
        trace(a, 41)
        a(f"s_cmp_eq_u32 s{S_ACT}, 0\ns_cbranch_scc1 L_no13\ns_barrier\nL_no13:")
        trace(a, 42)
    for st in range(X("APRE0", 1), APRE): dma(st)
    nonce_get(a, SNV)
    def wo_dma(W, lds, i0, n, tag):
        a(f"""
        s_mul_i32 s61, s{S_W4}, {8*896}
        s_lshl_b32 s62, s{S_CB2}, 7
        s_add_u32 s61, s61, s62
        s_lshl_b32 s62, s{S_W4}, 10
        """)
        for j in range(i0, i0 + n):
            a(f"s_add_u32 m0, s62, {lds + j*4096}\ns_add_u32 s63, s61, {j*32*896}")
            a.vmem(f"buffer_load_dwordx4 v{VW}, {sr(W)}, s63 offen lds", tag)
    issued = APRE
    bars = [-2] + ABAR
    for i, n in enumerate(bars):
        need = bars[i + 1] // 2 if i + 1 < len(bars) else 15
        trace(a, 64 + 3*i)
        a.vm_wait(f"a{need}", "lgkmcnt(0)" if i == 0 else "")
        trace(a, 65 + 3*i)
        a("s_barrier")
        trace(a, 66 + 3*i)
        if n == 12: qkv_flag_loads(a, FA)
        while issued <= min(15, max(n // 2 - 1, -1) + ANS): dma(issued); issued += 1
        if n == 4: wo_dma(SRD_WOB, L_WOB, 0, 4, "wob")
        if n == 8: wo_dma(SRD_WOB, L_WOB, 4, 6, "wob"); A.poison()
        if n == 16: wo_dma(SRD_WOB, L_WOB, 10, 4, "wob")
        if n == 12: qkv_flag_check(a); A.loads()
        if n == 16: A.qk(); A.pv(); a("s_nop 7"); A.fin()
        if n == 20: A.pub(); wo_dma(SRD_WOA, L_WOA, 0, 2, "woa")
        if n == 24:
            assert issued == 16
            wo_dma(SRD_WOA, L_WOA, 2, 8, "woa")
            oproj_params(a, "A"); oproj_init(a)
            a(f"s_sleep {X('FOADELAY', 4)}")
            A.oflag_load()
        if n == 28:
            wo_dma(SRD_WOA, L_WOA, 10, 4, "woa")
            A.oflag_check()
            oproj_loads(a)
    a.vm_wait("woa")
    a(f"""
    v_mov_b32 v7, {L_SYNC}
    v_lshl_add_u32 v7, v0, 2, v7
    v_mov_b32 v4, 0
    s_barrier
    s_mov_b64 exec, 0xff
    ds_write_b32 v7, v4
    s_mov_b64 exec, -1
    s_waitcnt lgkmcnt(0)
    s_barrier
    """)
    stamp(a, 3); trace(a, 113)
    a(f"s_setprio 0\ns_cmp_eq_u32 s{S_ACT2}, 0\ns_cbranch_scc1 L_end")
    oproj_main(a)

class AttnA:
    Q, KP, KC, VP, VC, SP, SC, OO, T, IX = 80, 88, 96, 112, 116, 16, 32, 48, 64, 124
    def __init__(s, a): s.a = a
    def tq(s): s.a(f"s_lshl_b32 s51, s{S_QB}, 2\ns_add_u32 s51, s51, s{S_W4}")
    def blk(s, sh, base):
        s.tq()
        s.a(f"s_lshl_b32 s51, s51, 4\ns_add_u32 s51, s51, s{S_HD}\ns_lshl_b32 s51, s51, {sh}\ns_add_u32 s51, s51, {base}")
    def masks(s):
        a = s.a; s.tq()
        a(f"""
        v_lshlrev_b32 v7, 3, v2
        v_sub_u32 v7, v1, v7
        v_add_u32 v7, 18, v7
        v_mov_b32 v126, 0x5555
        v_mov_b32 v127, 0
        v_lshlrev_b64 v[126:127], v7, v[126:127]
        s_cmp_eq_u32 s51, 0
        s_cselect_b32 s52, 0, -1
        v_and_b32 v126, s52, v126
        v_not_b32 v126, v126
        v_not_b32 v127, v127
        s_mov_b32 s52, 0xf149f2ca
        v_mov_b32 v{s.IX}, 0xdddddddd
        """)
        for r in range(16):
            g, i = r >> 2, r & 3
            c = 16 * (g >> 1) + 4 * (g & 1) + i
            a(f"v_bfe_i32 v{s.SC+r}, v127, {c}, 1\nv_and_b32 v{s.SC+r}, s52, v{s.SC+r}")
            if r >= 8: a(f"v_bfe_i32 v{s.SP+r}, v126, {c}, 1\nv_and_b32 v{s.SP+r}, s52, v{s.SP+r}")
            else: a(f"v_mov_b32 v{s.SP+r}, 0")
            a(f"v_mov_b32 v{s.OO+r}, 0")
        for r in range(12): a(f"v_mov_b32 v{s.VP+r}, {hex(ONES)}")
        for r in range(4): a(f"v_mov_b32 v{128+r}, -1")
        a(f"""
        v_and_b32 v7, 31, v3
        s_lshl_b32 s53, s{S_ODD}, 2
        v_subrev_u32 v7, s53, v7
        v_cmp_gt_u32 s[{AVM}:{AVM+1}], 28, v7
        v_mul_u32_u24 v125, 448, v2
        v_lshl_add_u32 v125, v7, 4, v125
        v_add_u32 v125, 256, v125
        """)
    def poison(s):
        a = s.a; s.blk(11, OB)
        a.vmem(f"buffer_store_dwordx4 v[128:131], v6, {WS}, s51 offen sc1", "poi")
        a.vmem(f"buffer_store_dwordx4 v[128:131], v6, {WS}, s51 offen offset:1024 sc1", "poi")
    def loads(s):
        a = s.a; s.tq()
        a(f"""
        s_mul_i32 s52, s51, 28672
        s_add_u32 s52, s52, s{S_P0}
        s_add_u32 s53, s52, {KA}
        s_add_u32 s52, s52, {QA}
        s_cmp_eq_u32 s51, 0
        s_cselect_b32 s54, 0, 28672
        s_cselect_b32 s55, 0, 1792
        s_sub_u32 s54, s53, s54
        """)
        a.vmem(f"buffer_load_dwordx4 {vr(s.Q,4)}, v6, {WS}, s52 offen sc1", "aq")
        a.vmem(f"buffer_load_dwordx4 {vr(s.Q+4,4)}, v6, {WS}, s52 offen offset:1024 sc1", "aq")
        a.vmem(f"buffer_load_dwordx4 {vr(s.KP,4)}, v5, {WS}, s54 offen sc1", "aq")
        a.vmem(f"buffer_load_dwordx4 {vr(s.KP+4,4)}, v5, {WS}, s54 offen offset:1024 sc1", "aq")
        a.vmem(f"buffer_load_dwordx4 {vr(s.KC,4)}, v5, {WS}, s53 offen sc1", "aq")
        a.vmem(f"buffer_load_dwordx4 {vr(s.KC+4,4)}, v5, {WS}, s53 offen offset:1024 sc1", "aq")
        a(f"""
        s_lshl_b32 s52, s{S_HD}, 6
        s_add_u32 s52, s52, s51
        s_mul_i32 s52, s52, 1792
        s_add_u32 s52, s52, {VA - 256}
        s_sub_u32 s55, s52, s55
        s_mov_b64 exec, s[{AVM}:{AVM+1}]
        """)
        a.vmem(f"buffer_load_dwordx4 {vr(s.VP,4)}, v125, {WS}, s55 offen offset:896 sc1", "aq")
        a.vmem(f"buffer_load_dwordx4 {vr(s.VC,4)}, v125, {WS}, s52 offen sc1", "aq")
        a.vmem(f"buffer_load_dwordx4 {vr(s.VC+4,4)}, v125, {WS}, s52 offen offset:896 sc1", "aq")
        a("s_mov_b64 exec, -1")
    def qk(s):
        a = s.a
        a.vm_wait("aq")
        zero_qpad(a, s.Q)
        a(f"""
        v_mfma_f32_32x32x16_bf16 {vr(s.SP,16)}, {vr(s.KP,4)}, {vr(s.Q,4)}, {vr(s.SP,16)}
        v_mfma_f32_32x32x16_bf16 {vr(s.SC,16)}, {vr(s.KC,4)}, {vr(s.Q,4)}, {vr(s.SC,16)}
        v_mfma_f32_32x32x16_bf16 {vr(s.SP,16)}, {vr(s.KP+4,4)}, {vr(s.Q+4,4)}, {vr(s.SP,16)}
        v_mfma_f32_32x32x16_bf16 {vr(s.SC,16)}, {vr(s.KC+4,4)}, {vr(s.Q+4,4)}, {vr(s.SC,16)}
        s_nop 11
        """)
        s.regs = regs = list(range(s.SP + 8, s.SP + 16)) + list(range(s.SC, s.SC + 16))
        a(f"v_max_f32 v8, v{regs[0]}, v{regs[1]}")
        for k in range(2, 24, 2): a(f"v_max3_f32 v8, v8, v{regs[k]}, v{regs[k+1]}")
        a("v_mov_b32 v9, v8\ns_nop 1\nv_permlane32_swap_b32 v8, v9\nv_max_f32 v8, v8, v9")
        for r in regs[::2]: a(f"v_pk_add_f32 {vr(r,2)}, {vr(r,2)}, v[8:9] op_sel_hi:[1,0] neg_lo:[0,1] neg_hi:[0,1]")
    def pv(s):
        a = s.a
        for r in s.regs: a(f"v_exp_f32 v{r}, v{r}")
        a(f"""
        v_smfmac_f32_32x32x32_bf16 {vr(s.OO,16)}, {vr(s.VP,4)}, {vr(s.SP+8,8)}, v{s.IX}
        v_smfmac_f32_32x32x32_bf16 {vr(s.OO,16)}, {vr(s.VC,4)}, {vr(s.SC,8)}, v{s.IX}
        v_smfmac_f32_32x32x32_bf16 {vr(s.OO,16)}, {vr(s.VC+4,4)}, {vr(s.SC+8,8)}, v{s.IX}
        """)
    def fin(s):
        s.blk(11, OA)
        finish_O(s.a, s.OO, s.T, 51, True)
    def pub(s):
        s.blk(7, FOA)
        s.a.vm_wait("ost")
        put_flag(s.a, 51, SNV)
    def oflag_load(s):
        a = s.a
        a(f"""
        s_sub_u32 s59, s52, {OA}
        s_lshr_b32 s59, s59, 4
        s_add_u32 s59, s59, {FOA}
        v_min_u32 v10, 7, v0
        v_lshlrev_b32 v10, 7, v10
        """)
        a.vmem(f"buffer_load_dwordx2 v[8:9], v10, {WS}, s59 offen sc1", "oflag")
    def oflag_check(s):
        a = s.a
        a.vm_wait("oflag")
        a(f"""
        s_mov_b32 s63, 0
        L_of:
        v_cmp_ne_u64 vcc, s[{NON}:{NON+1}], v[8:9]
        s_add_u32 s63, s63, 1
        s_cbranch_vccz L_of_ok
        s_cmp_ge_u32 s63, {SPIN_MAX}
        s_cbranch_scc1 L_of_ok
        s_sleep 2
        s_mov_b64 exec, vcc
        buffer_load_dwordx2 v[8:9], v10, {WS}, s59 offen sc1
        s_mov_b64 exec, -1
        s_waitcnt vmcnt(0)
        s_branch L_of
        L_of_ok:
        """)

def main(out):
    a = Asm()
    a("L_begin:")
    setup(a)
    service(a)
    a("s_branch L_end\nL_comp:")
    a.vm_reset()
    gemm_compute(a)
    attn_compute(a)
    a("L_end:")
    stamp_out(a)
    a("L_exit:\ns_endpgm\nL_codeend:")
    kn = NAME + "_kernel"
    if X("LIST"): hdr = f"; @launch kernel={kn} grid=(256,1,1) block=(768,1,1) lds=163840\n"
    else: hdr = "; @launch grid=(256,1,1) block=(768,1,1) lds=163840\n"
    hdr += f'.amdgcn_target "amdgcn-amd-amdhsa--gfx950"\n.text\n.globl {kn}\n.p2align 8\n.type {kn},@function\n{kn}:\n'
    desc = f""".section .rodata,"a"
.p2align 6
.amdhsa_kernel {kn}
  .amdhsa_next_free_vgpr 168
  .amdhsa_next_free_sgpr 102
  .amdhsa_accum_offset 168
  .amdhsa_group_segment_fixed_size 0
  .amdhsa_kernarg_size 72
  .amdhsa_user_sgpr_count 2
  .amdhsa_user_sgpr_kernarg_segment_ptr 1
  .amdhsa_system_sgpr_workgroup_id_x 1
.end_amdhsa_kernel
"""
    txt = hdr + a.text() + desc
    open(out, "w").write(txt)
    e = lint(txt)
    for x in e: print("HAZARD", x)
    print("written", out, len(txt), "bytes;", len(e), "hazards")

if __name__ == "__main__":
    main(sys.argv[1] if len(sys.argv) > 1 else f"cdna_kernels/{NAME}.s")
```

```python
import sys, math, os, struct
from lint import lint

NAME = "concat_heads__sliding_local_dilated__mha_block__prompt"
def X(k, d=0): return int(os.environ.get(k, str(d)))
SEC = 1835008
QB, KB, VB, QA, KA, VA = [i * SEC for i in range(6)]
OA = 6 * SEC
OB = OA + 0x200000
FB = OB + 0x200000
FA = FB + 42 * 4096
FOA = FA + 42 * 4096
WS_SIZE = FOA + 0x20000
QSCALE = (28 ** -0.5) * math.log2(math.e)
def f2u(x): return struct.unpack('<I', struct.pack('<f', x))[0]
STAMP, TRACE = X("STAMP"), X("TRACE")
TS_OFF = 0x1000000
SPIN_MAX = 400000

class Asm:
    def __init__(self): self.l = []; self.vm = []; self.nlab = 0
    def __call__(self, s):
        for x in s.strip('\n').split('\n'):
            x = x.strip()
            if not x: continue
            self.l.append(x if x.endswith(':') else '    ' + x)
    def text(self): return '\n'.join(self.l) + '\n'
    def lab(self, p):
        self.nlab += 1; return f"{p}_{self.nlab}"
    def vm_reset(self): self.vm = []
    def vmem(self, ins, tag):
        self(ins); self.vm.append(tag)
    def vm_wait(self, tag, extra=""):
        idx = [i for i, t in enumerate(self.vm) if t == tag]
        if not idx:
            if extra: self(f"s_waitcnt {extra}")
            return
        n = len(self.vm) - 1 - idx[-1]
        assert n < 64
        self(f"s_waitcnt vmcnt({n}) {extra}")
        self.vm = self.vm[idx[-1] + 1:]

def vr(a, n): return "v[%d:%d]" % (a, a + n - 1)
def sr(a, n=4): return "s[%d:%d]" % (a, a + n - 1)

SRD_XB, SRD_WB, SRD_XA, SRD_WA, SRD_WS, SRD_OUT, SRD_DBG = 4, 8, 12, 16, 20, 24, 28
SRD_WOA, SRD_WOB = 4, 8
MODD, MA, MB, AVM = 64, 66, 70, 72
NON = 32
S_HD, S_QB, S_ODD, S_P0 = 34, 35, 36, 37
S_RB, S_CB, S_ROW, S_COL, S_ACT = 38, 39, 40, 41, 42
S_RB2, S_CB2, S_ACT2 = 43, 44, 45
VMASK, QPAD = 46, 48
S_W4 = 50
P = 64
WS = sr(SRD_WS)

def srd(a, d, ptr, size):
    a(f"s_mov_b32 s{d}, s{ptr}\ns_mov_b32 s{d+1}, s{ptr+1}\ns_mov_b32 s{d+2}, {size}\ns_mov_b32 s{d+3}, 0x20000")
def common_srds(a):
    srd(a, SRD_WS, P + 16, WS_SIZE); srd(a, SRD_DBG, P + 14, 256); srd(a, SRD_OUT, P + 12, 2048 * 1792)

def stamp(a, i):
    if STAMP: a(f"s_memtime s[{82+4*i}:{83+4*i}]\ns_memrealtime s[{84+4*i}:{85+4*i}]\ns_waitcnt lgkmcnt(0)")
def trace(a, idx, reg=165):
    if TRACE: a(f"s_memtime s[98:99]\ns_waitcnt lgkmcnt(0)\nv_writelane_b32 v{reg + idx // 64}, s98, {idx % 64}")
def stamp_out(a):
    if TRACE:
        a(f"""
        s_mov_b32 s22, 0x2000000
        s_lshl_b32 s4, s2, 4
        s_add_u32 s4, s4, s3
        s_lshl_b32 s4, s4, 9
        s_add_u32 s4, s4, {TS_OFF + 0x100000}
        v_lshlrev_b32 v1, 2, v0
        buffer_store_dword v165, v1, s[20:23], s4 offen
        buffer_store_dword v166, v1, s[20:23], s4 offen offset:256
        """)
    if not STAMP: return
    a("s_waitcnt vmcnt(0)")
    stamp(a, 4)
    a(f"""
    s_mov_b32 s22, 0x2000000
    s_lshl_b32 s4, s2, 4
    s_add_u32 s4, s4, s3
    s_lshl_b32 s4, s4, 6
    s_add_u32 s4, s4, {TS_OFF}
    """)
    for i in range(5):
        a(f"v_mov_b32 v{8+2*i}, s{84+4*i}\nv_mov_b32 v{9+2*i}, s{82+4*i}")
    a(f"""
    v_mov_b32 v1, 0
    s_mov_b64 exec, 1
    buffer_store_dwordx4 v[8:11], v1, s[20:23], s4 offen
    buffer_store_dwordx4 v[12:15], v1, s[20:23], s4 offen offset:16
    buffer_store_dwordx2 v[16:17], v1, s[20:23], s4 offen offset:32
    """)

GNS, GSLOT, ANS = 4, 28672, 6
L_WOB, L_Q, L_RING = 0, 57344, 65536
L_WOA = L_Q
def slot_addr(st): return L_RING + ((st % ANS + 2) % ANS) * 16384
L_COMB = slot_addr(13)
L_RED = slot_addr(15)
L_SYNC = slot_addr(14)
L_RELAY = slot_addr(3)
ABAR = [0, 4, 8, 12, 16, 20, 24, 28]
VS = X('VS', 32)
ONES = ((127 + VS) << 7) * 0x10001

def setup(a):
    if TRACE: a("v_mov_b32 v165, 0\nv_mov_b32 v166, 0"); trace(a, 0)
    if STAMP:
        for i in range(86, 98, 2): a(f"s_mov_b64 s[{i}:{i+1}], 0")
        a("s_memtime s[82:83]\ns_memrealtime s[84:85]")
    a(f"""
    s_load_dwordx16 s[64:79], s[0:1], 0
    s_load_dwordx2 s[80:81], s[0:1], 64
    s_cmp_ge_u32 s2, 256
    s_cbranch_scc1 L_exit
    v_lshrrev_b32 v1, 6, v0
    v_and_b32 v0, 63, v0
    v_readfirstlane_b32 s3, v1
    s_and_b32 s51, s2, 7
    s_lshr_b32 s52, s2, 3
    s_mul_i32 s53, s51, 31
    s_add_u32 s53, s53, s52
    s_cmp_lt_u32 s52, 31
    s_cselect_b32 s{S_ACT}, 1, 0
    s_cmp_lt_u32 s53, 242
    s_cselect_b32 s{S_ACT}, s{S_ACT}, 0
    s_mul_i32 s{S_RB}, s53, 171
    s_lshr_b32 s{S_RB}, s{S_RB}, 10
    s_mul_i32 s{S_CB}, s{S_RB}, 6
    s_sub_u32 s{S_CB}, s53, s{S_CB}
    s_sub_u32 s54, s53, 132
    s_mul_i32 s55, s54, 205
    s_lshr_b32 s55, s55, 10
    s_mul_i32 s56, s55, 5
    s_sub_u32 s56, s54, s56
    s_add_u32 s56, s56, 6
    s_cmp_ge_u32 s53, 132
    s_cselect_b32 s{S_RB}, s55, s{S_RB}
    s_cselect_b32 s{S_CB}, s56, s{S_CB}
    s_mul_i32 s{S_ROW}, s{S_RB}, 96
    s_min_u32 s{S_ROW}, s{S_ROW}, 1952
    s_lshl_b32 s{S_COL}, s{S_CB}, 2
    s_min_u32 s{S_COL}, s{S_COL}, 38
    s_and_b32 s{S_W4}, s3, 3
    s_cmp_ge_u32 s3, 8
    s_cbranch_scc0 L_comp
    """)

def setup2(a):
    a(f"""
    s_and_b32 s51, s2, 7
    s_lshl_b32 s{S_HD}, s51, 1
    s_bfe_u32 s{S_ODD}, s2, 0x10003
    s_add_u32 s{S_HD}, s{S_HD}, s{S_ODD}
    s_lshr_b32 s{S_QB}, s2, 4
    s_mul_i32 s{S_P0}, s{S_HD}, 7
    s_lshr_b32 s{S_P0}, s{S_P0}, 1
    s_lshl_b32 s{S_P0}, s{S_P0}, 9
    s_lshr_b32 s52, s2, 3
    s_cmp_lt_u32 s52, 28
    s_cselect_b32 s{S_ACT2}, 1, 0
    s_mul_i32 s{S_RB2}, s52, 37
    s_lshr_b32 s{S_RB2}, s{S_RB2}, 8
    s_mul_i32 s53, s{S_RB2}, 7
    s_sub_u32 s{S_CB2}, s52, s53
    s_lshl_b32 s51, s51, 2
    s_add_u32 s{S_RB2}, s{S_RB2}, s51
    s_min_u32 s{S_RB2}, s{S_RB2}, 31
    s_cmp_eq_u32 s{S_ODD}, 0
    s_cselect_b32 s{VMASK}, 0x0fffffff, -16
    s_mov_b32 s{VMASK+1}, s{VMASK}
    s_cselect_b32 s{QPAD}, 0, -1
    s_cselect_b32 s{QPAD+1}, -1, 0
    v_and_b32 v1, 31, v0
    v_lshrrev_b32 v2, 5, v0
    v_and_b32 v3, 51, v0
    v_bfe_u32 v4, v0, 2, 1
    v_lshl_add_u32 v3, v4, 3, v3
    v_bfe_u32 v4, v0, 3, 1
    v_lshl_add_u32 v3, v4, 2, v3
    v_lshlrev_b32 v5, 4, v3
    v_lshlrev_b32 v6, 4, v0
    """)
def norm_masks(a):
    a(f"""
    s_mov_b32 s{MODD}, s{QPAD}
    s_mov_b32 s{MODD+1}, s{QPAD}
    s_mov_b32 s{MA}, s{QPAD}
    s_mov_b32 s{MA+1}, 0
    s_mov_b32 s{MB}, 0
    s_mov_b32 s{MB+1}, s{QPAD+1}
    """)

def nonce_load(a, vt):
    a.vmem(f"buffer_load_dwordx2 {vr(vt,2)}, v{vt+2}, {sr(SRD_DBG)}, 0 offen sc1", "non")
def nonce_get(a, vt):
    L = a.lab("non")
    a(f"""
    s_mov_b32 s63, 0
    {L}:
    v_readfirstlane_b32 s{NON}, v{vt}
    v_readfirstlane_b32 s{NON+1}, v{vt+1}
    s_add_u32 s63, s63, 1
    s_cmp_lg_u32 s{NON+1}, 0
    s_cbranch_scc1 {L}_ok
    s_cmp_ge_u32 s63, {SPIN_MAX}
    s_cbranch_scc1 {L}_ok
    s_sleep 8
    buffer_load_dwordx2 {vr(vt,2)}, v{vt+2}, {sr(SRD_DBG)}, 0 offen sc1
    s_waitcnt vmcnt(0)
    s_branch {L}
    {L}_ok:
    """)
def put_flag(a, soff, vt):
    a("s_mov_b64 exec, 1")
    a.vmem(f"buffer_store_dwordx2 {vr(vt,2)}, v{vt+2}, {WS}, s{soff} offen sc1", "flag")
    a("s_mov_b64 exec, -1")

def zero_qpad(a, q):
    a(f"""
    v_cndmask_b32 v{q}, v{q}, 0, s[{MA}:{MA+1}]
    v_cndmask_b32 v{q+1}, v{q+1}, 0, s[{MA}:{MA+1}]
    v_cndmask_b32 v{q+6}, v{q+6}, 0, s[{MB}:{MB+1}]
    v_cndmask_b32 v{q+7}, v{q+7}, 0, s[{MB}:{MB+1}]
    """)

def finish_O(a, o, tmp, soff, sanitize, mid=None):
    x, y, r, ra, rb, pk = tmp, tmp + 1, tmp + 2, tmp + 4, tmp + 6, tmp + 8
    a(f"""
    v_cndmask_b32 v{x}, v{o+12}, v{o}, s[{MODD}:{MODD+1}]
    v_cndmask_b32 v{y}, v{o+12}, v{o}, s[{MODD}:{MODD+1}]
    """)
    if mid: mid()
    else: a("s_nop 1")
    a(f"""
    v_permlane32_swap_b32 v{x}, v{y}
    v_cndmask_b32 v{x}, v{y}, v{x}, s[{MODD}:{MODD+1}]
    v_rcp_f32 v{r}, v{x}
    s_nop 0
    v_cndmask_b32 v{ra}, v{r}, 0, s[{MA}:{MA+1}]
    v_cndmask_b32 v{rb}, v{r}, 0, s[{MB}:{MB+1}]
    """)
    for hf in range(2):
        for g in range(2 * hf, 2 * hf + 2):
            m = ra if g == 0 else rb if g == 3 else r
            for j in range(2):
                d = o + 4 * g + 2 * j
                a(f"v_pk_mul_f32 {vr(d,2)}, {vr(d,2)}, {vr(m,2)} op_sel_hi:[1,0]")
        for k in range(4 * hf, 4 * hf + 4):
            a(f"v_cvt_pk_bf16_f32 v{pk+k}, v{o+2*k}, v{o+2*k+1}")
            if sanitize: a(f"v_min_u32 v{pk+k}, -2, v{pk+k}")
        a.vmem(f"buffer_store_dwordx4 {vr(pk+4*hf,4)}, v6, {WS}, s{soff} offen offset:{1024*hf} sc1", "ost")

def w_frag_addr(a, dst, half_expr):
    a(f"""
    v_lshrrev_b32 v7, 5, v0
    v_bfe_u32 v4, v0, 2, 2
    v_lshl_add_u32 v{dst}, v7, 3, v4
    v_lshlrev_b32 v{dst}, 7, v{dst}
    v_lshrrev_b32 v4, 1, v4
    v_xor_b32 v4, {half_expr}, v4
    v_lshl_add_u32 v{dst}, v4, 6, v{dst}
    v_bfe_u32 v4, v0, 4, 1
    v_lshl_add_u32 v{dst}, v4, 5, v{dst}
    v_and_b32 v4, 1, v0
    v_lshl_add_u32 v{dst}, v4, 4, v{dst}
    v_bfe_u32 v4, v0, 1, 1
    v_lshl_add_u32 v{dst}, v4, 3, v{dst}
    """)

GO, NV = 136, 160
def gemm_store(a, m):
    L = a.lab("gs")
    a(f"""
    s_cmp_gt_u32 s55, {m}
    s_cbranch_scc1 {L}
    buffer_store_dwordx4 {vr(GO+8*m,4)}, v13, {WS}, s53 offen sc1
    buffer_store_dwordx4 {vr(GO+8*m+4,4)}, v14, {WS}, s53 offen sc1
    {L}:
    s_add_u32 s53, s53, s57
    """)
    if m == 2: nonce_load(a, NV)
def gemm_publish(a):
    L = a.lab("gp")
    trace(a, 46)
    a("s_waitcnt vmcnt(0)")
    trace(a, 47)
    nonce_get(a, NV)
    a(f"s_cmp_eq_u32 s55, 3\ns_cbranch_scc1 {L}")
    put_flag(a, 59, NV)
    a(f"{L}:")
def ones_pads(a):
    a(f"""
    v_and_b32 v7, 3, v0
    v_cmp_eq_u32 vcc, 0, v7
    v_mov_b32 v12, {hex(ONES)}
    s_lshl_b32 s51, s{S_W4}, 12
    v_cndmask_b32 v8, 0, v12, vcc
    s_cmp_eq_u32 s{S_ODD}, 0
    s_cselect_b32 s60, {28*16}, 0
    s_add_u32 s51, s51, s60
    s_add_u32 s51, s51, {L_RING + 2048}
    v_mov_b32 v9, v8
    v_mov_b32 v10, v8
    v_mov_b32 v11, v8
    v_lshl_add_u32 v7, v7, 4, s51
    v_bfe_u32 v12, v0, 2, 2
    v_lshl_add_u32 v7, v12, 9, v7
    v_lshrrev_b32 v12, 4, v0
    v_lshl_add_u32 v7, v12, 14, v7
    v_add_u32 v12, 0x10000, v7
    ds_write_b128 v7, v[8:11]
    s_mov_b32 exec_hi, 0
    ds_write_b128 v12, v[8:11]
    s_mov_b32 exec_hi, -1
    """)

def gemm_compute(a):
    ACC, FR = 88, 24
    a("s_waitcnt lgkmcnt(0)")
    common_srds(a)
    setup2(a); norm_masks(a)
    a(f"v_mov_b32 v{NV+2}, 0")
    if X("CODEPF", 1):
        a(f"""
        s_cmp_eq_u32 s3, 4
        s_cbranch_scc0 L_nopf
        s_getpc_b64 s[52:53]
        L_pc:
        s_lshr_b32 s51, s2, 3
        s_lshl_b32 s51, s51, 10
        v_add_u32 v7, s51, v6
        s_sub_u32 s52, s52, L_pc - L_begin
        s_subb_u32 s53, s53, 0
        v_cmp_gt_u32 vcc, L_codeend - L_begin - 12, v7
        s_nop 0
        s_and_saveexec_b64 s[54:55], vcc
        s_cbranch_execz L_pfe
        global_load_dwordx4 v[{GO}:{GO+3}], v7, s[52:53]
        L_pfe:
        s_mov_b64 exec, -1
        L_nopf:
        """)
    a(f"""
    s_cmp_eq_u32 s{S_ACT}, 0
    s_cbranch_scc1 L_gidle
    v_lshrrev_b32 v4, 1, v1
    v_and_b32 v4, 7, v4
    v_xor_b32 v4, v4, v2
    v_lshlrev_b32 v4, 4, v4
    v_lshl_add_u32 v8, v1, 7, v4
    v_xor_b32 v9, 32, v8
    v_xor_b32 v10, 64, v8
    v_xor_b32 v11, 96, v8
    s_and_b32 s51, s3, 1
    """)
    w_frag_addr(a, 12, "s51")
    a(f"""
    s_bfe_u32 s51, s3, 0x10001
    s_lshl_b32 s51, s51, 13
    s_add_u32 s51, s51, 12288
    v_add_u32 v12, s51, v12
    s_add_u32 s51, s{S_COL}, s{S_W4}
    s_cmp_eq_u32 s{S_RB}, 21
    s_cselect_b32 s55, 2, 0
    s_cmp_eq_u32 s{S_CB}, 10
    s_cselect_b32 s56, 2, 0
    s_cmp_lt_u32 s{S_W4}, s56
    s_cselect_b32 s55, 3, s55
    s_lshr_b32 s57, s{S_ROW}, 5
    s_cmp_ge_u32 s3, 4
    s_cselect_b32 s58, {3*SEC}, 0
    s_cselect_b32 s59, {FA - FB}, 0
    s_cselect_b32 s52, {(7 % GNS) * GSLOT}, 0
    s_add_u32 s59, s59, {FB}
    s_lshl_b32 s60, s51, 12
    s_add_u32 s59, s59, s60
    s_lshl_b32 s60, s{S_RB}, 7
    s_add_u32 s59, s59, s60
    """)
    for r in range(48): a(f"v_mov_b32 v{ACC+r}, 0")
    a("s_cmp_ge_u32 s51, 28\ns_cbranch_scc1 L_gV")
    def addr_list():
        return [f"v_add_u32 v{16+i}, s52, v{8+i}" for i in range(5)] + [f"s_add_u32 s52, s52, {GSLOT}", f"s_cmp_ge_u32 s52, {GSLOT*GNS}", "s_cselect_b32 s52, 0, s52"]
    def addrs():
        for x in addr_list(): a(x)
    def read_list(ks):
        f = FR + 16 * ks
        return [f"ds_read_b64_tr_b16 {vr(f+12, 2)}, v20 offset:{ks*2048}", f"ds_read_b64_tr_b16 {vr(f+14, 2)}, v20 offset:{ks*2048+512}"] + \
               [f"ds_read_b128 {vr(f + 4*m, 4)}, v{16+ks} offset:{m*4096}" for m in range(3)]
    def reads(ks):
        for x in read_list(ks): a(x)
    for var in ("QK", "V"):
        t = f"L_g{var}"
        a(f"{t}:")
        if var == "QK":
            a(f"""
            v_mov_b32 v13, v6
            v_add_u32 v14, 1024, v6
            s_cmp_ge_u32 s51, 14
            s_cselect_b32 s53, {SEC - 14*2048}, 0
            s_cselect_b32 s54, 1.0, {hex(f2u(QSCALE))}
            s_lshl_b32 s60, s51, 11
            s_add_u32 s53, s53, s60
            s_mul_i32 s60, s57, 28672
            s_add_u32 s53, s53, s60
            s_mov_b32 s57, 28672
            v_mov_b32 v22, s54
            """)
        else:
            a(f"""
            v_and_b32 v4, 31, v3
            s_sub_u32 s60, s51, 28
            s_lshl_b32 s60, s60, 5
            v_add_u32 v4, s60, v4
            v_mul_u32_u24 v7, 2341, v4
            v_lshrrev_b32 v7, 16, v7
            v_mul_u32_u24 v13, 28, v7
            v_sub_u32 v4, v4, v13
            v_mul_u32_u24 v7, {64*1792}, v7
            v_lshl_add_u32 v13, v4, 4, v7
            v_mul_u32_u24 v4, 448, v2
            v_add_u32 v13, v13, v4
            v_add_u32 v14, 896, v13
            s_mul_i32 s53, s57, 1792
            s_add_u32 s53, s53, {2*SEC}
            s_mov_b32 s57, 1792
            v_mov_b32 v22, {hex(f2u(2.0**VS))}
            """)
        a(f"s_add_u32 s53, s53, s58")
        addrs()
        a(f"s_cmp_ge_u32 s3, 4\ns_cbranch_scc0 {t}_go")
        for i in range(7): a("s_barrier")
        a(f"s_waitcnt vmcnt(0)\n{t}_go:\ns_barrier")
        def mf(ks, fill=((), (), ())):
            f = FR + 16 * ks
            for m in range(3):
                x, w, d = vr(f + 4*m, 4), vr(f + 12, 4), vr(ACC + 16*m, 16)
                if var == "QK": a(f"v_mfma_f32_32x32x16_bf16 {d}, {w}, {x}, {d}")
                else: a(f"v_mfma_f32_32x32x16_bf16 {d}, {x}, {w}, {d}")
                for y in fill[m]: a(y)
        def spread(ks):
            r = read_list(ks); return (r[0:2], r[2:4], r[4:5])
        reads(0); reads(1)
        a(f"s_mov_b32 s56, 6\n{t}_chunk:")
        a("s_waitcnt lgkmcnt(5)"); mf(0, spread(2))
        r3 = read_list(3)
        a("s_waitcnt lgkmcnt(5)"); mf(1, (r3[0:3], r3[3:5], ["s_cmp_eq_u32 s56, 0", f"s_cbranch_scc1 {t}_last"]))
        al = addr_list()
        a("s_waitcnt lgkmcnt(5)")
        mf(2, (al[0:5], al[5:8] + ["s_sub_u32 s56, s56, 1", "s_waitcnt lgkmcnt(0)", "s_barrier"], read_list(0)[0:3]))
        r0, r1 = read_list(0), read_list(1)
        mf(3, (r0[3:5], r1[0:3], r1[3:5]))
        a(f"s_branch {t}_chunk\n{t}_last:\ns_waitcnt lgkmcnt(0)")
        if X("A0EARLY", 0):
            a("s_barrier")
            stamp(a, 2)
        else:
            if not X("G7LATE", 1): a(f"s_cmp_ge_u32 s3, 4\ns_cbranch_scc1 {t}_nb0\ns_barrier\n{t}_nb0:")
        for m in range(3):
            for ks in (2, 3):
                f = FR + 16 * ks
                x, w, d = vr(f + 4*m, 4), vr(f + 12, 4), vr(ACC + 16*m, 16)
                if var == "QK": a(f"v_mfma_f32_32x32x16_bf16 {d}, {w}, {x}, {d}")
                else: a(f"v_mfma_f32_32x32x16_bf16 {d}, {x}, {w}, {d}")
        a("s_nop 6\ns_branch L_gcvt" if var == "QK" else "s_nop 7")
    a("L_gcvt:")
    trace(a, 44)
    for m in range(3):
        a(f"s_cmp_ge_u32 s3, 4\ns_cbranch_scc1 L_gnm{m}")
        for r in range(16*m, 16*m+16, 2): a(f"v_pk_mul_f32 {vr(ACC+r,2)}, {vr(ACC+r,2)}, v[22:23] op_sel_hi:[1,0]")
        a(f"L_gnm{m}:")
        for r in range(8*m, 8*m+8): a(f"v_cvt_pk_bf16_f32 v{GO+r}, v{ACC+2*r}, v{ACC+2*r+1}")
        a(f"s_cmp_ge_u32 s3, 4\ns_cbranch_scc1 {'L_att' if m == 2 else 'L_gns%d' % m}")
        gemm_store(a, m)
        a(f"L_gns{m}:")
    trace(a, 45)
    PUB = X("PUB", 7)
    if X("G7LATE", 1): a("s_barrier")
    for g in range(8, 14):
        if g == 8 and PUB == 7: gemm_publish(a)
        if g == 13: trace(a, 49); ones_pads(a); trace(a, 50)
        a("s_barrier")
        if g == PUB: gemm_publish(a)
    stamp(a, 1)
    a("s_branch L_att")
    a(f"""
    L_gidle:
    s_mov_b32 s55, 3
    v_mov_b32 v13, 0
    v_mov_b32 v14, 0
    s_barrier
    s_cmp_ge_u32 s3, 4
    s_cbranch_scc1 L_gidle1
    """)
    ones_pads(a)
    a("s_branch L_att\nL_gidle1:")
    if X("A0EARLY", 0): a("s_barrier"); stamp(a, 2)

S0, S1, O_, CM, QF, KF, V0, V1, IDX, AD0, AD1, PART = 16, 32, 48, 64, 80, 88, 96, 100, 104, 105, 106, 108
def attn_compute(a):
    a(f"""
    L_att:
    v_mov_b32 v{IDX}, 0xdddddddd
    s_lshr_b32 s51, s3, 2
    s_lshl_b32 s51, s51, 13
    s_add_u32 s51, s51, {L_RING}
    v_add_u32 v{AD0}, s51, v5
    v_add_u32 v{AD1}, 0x10000, v{AD0}
    s_lshl_b32 s51, s{S_W4}, 11
    s_add_u32 s51, s51, {L_Q}
    v_add_u32 v8, s51, v6
    """)
    def rd(dst, n, frag):
        st, u = n >> 1, n & 1
        off = slot_addr(st) - L_RING + u * 4096 + frag * 1024
        a(f"ds_read_b128 {vr(dst,4)}, v{AD0 if off < 65536 else AD1} offset:{off & 0xffff}")
    def misc_init():
        a(f"v_mov_b32 v{O_}, 0\nv_mov_b32 v{O_+1}, 0")
        for r in range(2, 16, 2): a(f"v_pk_mov_b32 {vr(O_+r,2)}, {vr(O_,2)}, {vr(O_,2)}")
        a(f"""
        s_lshl_b32 s51, s{S_W4}, 12
        s_add_u32 s51, s51, {L_COMB}
        v_add_u32 v107, s51, v6
        s_lshl_b32 s51, s{S_W4}, 8
        v_lshl_add_u32 v9, v0, 2, s51
        """)
    if X("A0EARLY", 0): a("s_cmp_ge_u32 s3, 4\ns_cbranch_scc1 L_att0")
    misc_init()
    a("s_waitcnt lgkmcnt(0)\ns_barrier\nL_att0:")
    if not X("A0EARLY", 0): stamp(a, 2)
    trace(a, 51)
    a(f"""
    ds_read_b128 {vr(QF,4)}, v8
    ds_read_b128 {vr(QF+4,4)}, v8 offset:1024
    """)
    rd(KF, 0, 0); rd(KF + 4, 0, 1); rd(V0, 0, 2)
    a("s_waitcnt lgkmcnt(3)")
    zero_qpad(a, QF)
    a(f"""
    s_waitcnt lgkmcnt(1)
    s_nop 0
    v_mfma_f32_32x32x16_bf16 {vr(S0,16)}, {vr(KF,4)}, {vr(QF,4)}, 0
    v_mfma_f32_32x32x16_bf16 {vr(S0,16)}, {vr(KF+4,4)}, {vr(QF+4,4)}, {vr(S0,16)}
    """)
    rd(KF, 1, 0); rd(KF + 4, 1, 1)
    a(f"""
    s_cmp_ge_u32 s3, 4
    s_cbranch_scc1 L_g1m
    s_nop 7
    v_max3_f32 v7, v{S0}, v{S0+1}, v{S0+2}
    v_max3_f32 v8, v{S0+3}, v{S0+4}, v{S0+5}
    v_max3_f32 v7, v7, v{S0+6}, v{S0+7}
    v_max3_f32 v8, v8, v{S0+8}, v{S0+9}
    v_max3_f32 v7, v7, v{S0+10}, v{S0+11}
    v_max3_f32 v8, v8, v{S0+12}, v{S0+13}
    v_max3_f32 v7, v7, v{S0+14}, v{S0+15}
    v_max_f32 v7, v7, v8
    v_mov_b32 v8, v7
    s_nop 1
    v_permlane32_swap_b32 v7, v8
    v_max_f32 v7, v7, v8
    v_sub_f32 v{CM}, {hex(f2u(-float(X("BIAS", 102))))}, v7
    ds_write_b32 v9, v{CM}
    s_branch L_havem
    L_g1m:
    """)
    if X("A0EARLY", 0): misc_init()
    else: a("s_setprio 3")
    if X("ASTORE", 6) == 6:
        for m in range(3): gemm_store(a, m)
    trace(a, 52)
    a(f"""
    s_barrier
    ds_read_b32 v{CM}, v9
    s_waitcnt lgkmcnt(0)
    L_havem:
    v_mov_b32 v{CM+1}, v{CM}
    """)
    trace(a, 53)
    for r in range(0, 16, 2): a(f"v_pk_add_f32 {vr(S0+r,2)}, {vr(S0+r,2)}, {vr(CM,2)}")
    for r in range(2, 16, 2): a(f"v_pk_mov_b32 {vr(CM+r,2)}, {vr(CM,2)}, {vr(CM,2)}")
    def step(n, grp=None):
        Sc = S0 if n % 2 == 0 else S1
        Sn = S1 if n % 2 == 0 else S0
        def ex(lo, hi):
            for r in range(lo, hi): a(f"v_exp_f32 v{Sc+r}, v{Sc+r}")
        last = n == 31
        PR = X("PRIO", 1)
        if PR == 1 and 0 < n < 29: a(f"s_setprio {[0, 2, 1, 0][n % 4] if X('PTOP', 2) == 2 else [0, 3, 2, 1][n % 4]}")
        ex(0, 2)
        if n > 0:
            a(f"s_waitcnt lgkmcnt({1 if last else 3})")
            a(f"v_smfmac_f32_32x32x32_bf16 {vr(O_,16)}, {vr(V1,4)}, {vr(Sn+8,8)}, v{IDX}")
        rd(V1, n, 3)
        nk = 0
        if last and grp == 1:
            trace(a, 61)
            a("s_barrier")
            trace(a, 62)
            for i in range(4): a(f"ds_read_b128 {vr(PART+4*i,4)}, v107 offset:{i*1024}")
            nk = 4
        ex(2, 5)
        if not last:
            a(f"s_waitcnt lgkmcnt({2 if n > 0 else 1})")
            a(f"v_mfma_f32_32x32x16_bf16 {vr(Sn,16)}, {vr(KF,4)}, {vr(QF,4)}, {vr(CM,16)}")
        ex(5, 8)
        if not last:
            a(f"v_mfma_f32_32x32x16_bf16 {vr(Sn,16)}, {vr(KF+4,4)}, {vr(QF+4,4)}, {vr(Sn,16)}")
        if n + 2 < 32:
            if n in (0, 1, 2, 3, 4, 28, 29): trace(a, {0: 54, 1: 55, 2: 56, 3: 57, 4: 58, 28: 59, 29: 60}[n])
            if n in ABAR:
                if n == 0: a("s_cmp_ge_u32 s3, 4\ns_cbranch_scc1 L_nb0\ns_barrier\nL_nb0:")
                else: a("s_barrier")
                if PR == 1 and n < 28: a(f"s_setprio {X('PTOP', 2)}")
            rd(KF, n + 2, 0); rd(KF + 4, n + 2, 1); nk = 2
        ex(8, 12)
        a(f"s_waitcnt lgkmcnt({1 + nk})")
        a(f"v_smfmac_f32_32x32x32_bf16 {vr(O_,16)}, {vr(V0,4)}, {vr(Sc,8)}, v{IDX}")
        if not last: rd(V0, n + 1, 2)
        if n == 30: a("s_nop 1")
        AS = {0: {2: [0, 1], 3: [2]}, 1: {1: [0], 2: [1], 3: [2]}, 2: {3: [0, 1, 2]}, 3: {2: [0, 1, 2]}, 4: {0: [0, 1, 2]}, 5: {0: [0, 1], 1: [2]}, 6: {}}[X("ASTORE", 6)]
        if n in AS or n == X("APUB", 5):
            L = a.lab("g1")
            a(f"s_cmp_ge_u32 s3, 4\ns_cbranch_scc0 {L}")
            if n in AS:
                for m in AS[n]: gemm_store(a, m)
            else: gemm_publish(a)
            a(f"{L}:")
        ex(12, 16)
        if last:
            a("s_waitcnt lgkmcnt(0)")
            a("s_barrier" if grp == 1 else "s_nop 0")
            a(f"v_smfmac_f32_32x32x32_bf16 {vr(O_,16)}, {vr(V1,4)}, {vr(S1+8,8)}, v{IDX}")
    for n in range(31): step(n)
    a("s_cmp_ge_u32 s3, 4\ns_cbranch_scc0 L_g0last")
    step(31, 1)
    stamp(a, 3); trace(a, 112)
    a(f"""
    s_lshl_b32 s51, s{S_QB}, 2
    s_add_u32 s51, s51, s{S_W4}
    s_lshl_b32 s51, s51, 4
    s_add_u32 s51, s51, s{S_HD}
    s_lshl_b32 s51, s51, 11
    s_add_u32 s51, s51, {OB}
    s_mov_b32 s62, {hex(f2u(2.0**-90))}
    s_nop 4
    """)
    for r in range(0, 16, 2): a(f"v_pk_add_f32 {vr(O_+r,2)}, {vr(O_+r,2)}, {vr(PART+r,2)}")
    def guard():
        a(f"v_maximum3_f32 v8, |v{O_+4}|, |v{O_+5}|, |v{O_+6}|")
        a(f"v_maximum3_f32 v9, |v{O_}|, |v{O_+1}|, |v{O_+2}|")
        a(f"v_maximum3_f32 v8, v8, |v{O_+7}|, |v{O_+8}|")
        a(f"v_maximum3_f32 v9, v9, |v{O_+3}|, |v{O_+12}|")
        a(f"v_maximum3_f32 v8, v8, |v{O_+9}|, |v{O_+10}|")
        a(f"v_maximum3_f32 v9, v9, |v{O_+13}|, |v{O_+14}|")
        a(f"v_maximum3_f32 v9, v9, |v{O_+15}|, |v{O_+11}|")
        a(f"v_cmp_gt_f32 s[60:61], s62, v8")
        a(f"v_maximum3_f32 v9, v9, v8, v8")
        a(f"v_cmp_ngt_f32 vcc, {'-1.0' if X('FORCEFB') else hex(f2u(2.0**120))}, v9\ns_nop 0\ns_or_b64 vcc, vcc, s[60:61]\ns_cbranch_scc1 L_fallback")
    a.vm_reset()
    finish_O(a, O_, S1, 51, False, mid=guard)
    trace(a, 114)
    if TRACE: a("s_waitcnt vmcnt(0)")
    trace(a, 115)
    a("s_branch L_end")
    a("L_g0last:")
    step(31, 0)
    trace(a, 112)
    oproj_params(a, "B")
    a("s_nop 1")
    for i in range(4): a(f"ds_write_b128 v107, {vr(O_+4*i,4)} offset:{i*1024}")
    a("s_waitcnt lgkmcnt(0)\ns_barrier")
    a(f"s_barrier\ns_cmp_eq_u32 s{S_ACT2}, 0\ns_cbranch_scc1 L_end")
    trace(a, 113)
    if X("SENT", 0) == 2:
        fl = os.environ.get("SFLAG", "sc1").replace("_", " ")
        ld = f"buffer_load_dword v8, v9, {WS}, s52 offen offset:2044 {fl}" if fl != "atomic" else f"v_mov_b32 v8, 0\nbuffer_atomic_or v8, v9, {WS}, s52 offen offset:2044 sc0 sc1"
        a(f"""
        s_sleep {X('SDELAY', 8)}
        v_lshlrev_b32 v9, 11, v0
        s_mov_b64 exec, 0xff
        {ld}
        s_mov_b64 exec, -1
        """)
        oproj_init(a)
        a(f"""
        s_mov_b32 s63, 0
        s_mov_b64 exec, 0xff
        L_sp:
        s_waitcnt vmcnt(0)
        v_cmp_eq_u32 vcc, -1, v8
        s_add_u32 s63, s63, 1
        s_cbranch_vccz L_spd
        s_cmp_ge_u32 s63, {SPIN_MAX}
        s_cbranch_scc1 L_spd
        s_mov_b64 exec, vcc
        s_sleep {X('OSLEEP', 1)}
        {ld}
        s_branch L_sp
        L_spd:
        s_mov_b64 exec, -1
        """)
        oproj_loads(a)
    elif X("SENT", 0):
        a(f"""
        v_min_u32 v7, 7, v0
        v_lshlrev_b32 v7, 11, v7
        s_sleep {X('SDELAY', 2)}
        buffer_load_dword v4, v7, {WS}, s52 offen offset:2044 sc1
        s_mov_b32 s60, 0
        s_brev_b32 s61, 1
        s_sleep {X('SDELAY2', 4)}
        s_waitcnt vmcnt(0)
        v_cmp_ne_u32 vcc, -1, v4
        """)
        oproj_init(a)
        for k in range(8): a(f"v_mov_b32 v{OF+8*k}, -1")
        for k in range(8):
            a(f"s_bitcmp1_b32 vcc_lo, {k}\ns_cselect_b64 exec, -1, s[60:61]")
            o_load(a, k)
        a("s_mov_b64 exec, -1")
    else:
        a(f"s_sleep {X('ODELAY', 24)}")
        oproj_init(a)
        T0 = X("TOUCH", 0)
        if T0:
            per = (128 - T0 + 6) // 7
            a(f"""
            v_mul_u32_u24 v8, 7, v0
            v_add_u32 v8, s{S_CB2}, v8
            v_add_u32 v8, {T0}, v8
            v_min_u32 v8, 127, v8
            v_lshlrev_b32 v8, 7, v8
            s_mov_b64 exec, {(1 << per) - 1}
            buffer_load_dword v9, v8, {WS}, s52 offen sc1
            s_mov_b64 exec, -1
            """)
        oproj_loads(a)
    a("s_branch L_oproj")
    fallback(a)

def fallback(a):
    a(f"""
    L_fallback:
    v_and_b32 v7, 31, v3
    s_lshl_b32 s54, s{S_ODD}, 2
    v_subrev_u32 v8, s54, v7
    v_cmp_gt_u32 s[60:61], 28, v8
    v_mul_u32_u24 v9, 448, v2
    v_lshl_add_u32 v8, v8, 4, v9
    v_add_u32 v8, 256, v8
    v_mov_b32 v7, 0xff800000
    s_add_u32 s54, s{S_P0}, {KB}
    s_mov_b32 s56, 64
    L_fb1:
    buffer_load_dwordx4 {vr(KF,4)}, v5, {WS}, s54 offen sc1
    buffer_load_dwordx4 {vr(KF+4,4)}, v5, {WS}, s54 offen offset:1024 sc1
    s_add_u32 s54, s54, 28672
    s_waitcnt vmcnt(0)
    v_mfma_f32_32x32x16_bf16 {vr(S0,16)}, {vr(KF,4)}, {vr(QF,4)}, 0
    v_mfma_f32_32x32x16_bf16 {vr(S0,16)}, {vr(KF+4,4)}, {vr(QF+4,4)}, {vr(S0,16)}
    s_nop 11
    """)
    for r in range(0, 16, 2): a(f"v_max3_f32 v7, v7, v{S0+r}, v{S0+r+1}")
    a(f"""
    s_sub_u32 s56, s56, 1
    s_cmp_lg_u32 s56, 0
    s_cbranch_scc1 L_fb1
    v_mov_b32 v9, v7
    s_nop 1
    v_permlane32_swap_b32 v7, v9
    v_max_f32 v7, v7, v9
    """)
    for r in range(16): a(f"v_sub_f32 v{CM+r}, 0, v7\nv_mov_b32 v{O_+r}, 0")
    for r in range(8): a(f"v_mov_b32 v{V0+r}, {hex(ONES)}")
    a(f"""
    s_add_u32 s54, s{S_P0}, {KB}
    s_mul_i32 s57, s{S_HD}, {64*1792}
    s_add_u32 s57, s57, {VB - 256}
    s_mov_b32 s56, 64
    L_fb2:
    buffer_load_dwordx4 {vr(KF,4)}, v5, {WS}, s54 offen sc1
    buffer_load_dwordx4 {vr(KF+4,4)}, v5, {WS}, s54 offen offset:1024 sc1
    s_mov_b64 exec, s[60:61]
    buffer_load_dwordx4 {vr(V0,4)}, v8, {WS}, s57 offen sc1
    buffer_load_dwordx4 {vr(V1,4)}, v8, {WS}, s57 offen offset:896 sc1
    s_mov_b64 exec, -1
    s_add_u32 s54, s54, 28672
    s_add_u32 s57, s57, 1792
    s_waitcnt vmcnt(0)
    v_mfma_f32_32x32x16_bf16 {vr(S0,16)}, {vr(KF,4)}, {vr(QF,4)}, {vr(CM,16)}
    v_mfma_f32_32x32x16_bf16 {vr(S0,16)}, {vr(KF+4,4)}, {vr(QF+4,4)}, {vr(S0,16)}
    s_nop 11
    """)
    for r in range(16): a(f"v_exp_f32 v{S0+r}, v{S0+r}")
    a(f"""
    s_nop 1
    v_smfmac_f32_32x32x32_bf16 {vr(O_,16)}, {vr(V0,4)}, {vr(S0,8)}, v{IDX}
    v_smfmac_f32_32x32x32_bf16 {vr(O_,16)}, {vr(V1,4)}, {vr(S0+8,8)}, v{IDX}
    s_sub_u32 s56, s56, 1
    s_cmp_lg_u32 s56, 0
    s_nop 7
    s_cbranch_scc1 L_fb2
    s_nop 7
    """)
    finish_O(a, O_, S1, 51, True)
    a("s_branch L_end")

OF, OACC, OW, OAD = 16, 80, 112, 144
def oproj_params(a, br):
    Ob, LW, red, fl, oo = (OA, L_WOA, L_RED, 0, 0) if br == "A" else (OB, L_WOB, L_COMB, 16, 896)
    a(f"""
    s_and_b32 s55, s{S_W4}, 1
    s_lshl_b32 s52, s{S_RB2}, 1
    s_add_u32 s55, s55, s52
    s_lshr_b32 s51, s{S_W4}, 1
    s_lshl_b32 s52, s55, 15
    s_lshl_b32 s53, s51, 14
    s_add_u32 s52, s52, s53
    s_add_u32 s52, s52, {Ob}
    s_mul_i32 s55, s55, {32*1792}
    s_lshl_b32 s53, s{S_CB2}, 7
    s_add_u32 s55, s55, s53
    s_lshl_b32 s53, s51, 6
    s_add_u32 s55, s55, s53
    s_add_u32 s55, s55, {oo}
    s_lshl_b32 s53, s{S_W4}, 12
    s_xor_b32 s54, s53, 0x2000
    s_add_u32 s53, s53, {red}
    s_add_u32 s54, s54, {red}
    s_mul_i32 s57, s51, {224*128}
    s_add_u32 s57, s57, {LW}
    s_lshl_b32 s58, s{S_W4}, 2
    s_add_u32 s58, s58, {L_SYNC + fl}
    """)
def oproj_init(a):
    w_frag_addr(a, OAD, "0")
    a(f"""
    v_add_u32 v{OAD}, s57, v{OAD}
    v_xor_b32 v{OAD+1}, 64, v{OAD}
    v_add_u32 v{OAD+2}, s53, v6
    v_add_u32 v{OAD+3}, s54, v6
    v_mov_b32 v{OAD+4}, s58
    v_xor_b32 v{OAD+5}, 8, v{OAD+4}
    v_mov_b32 v{OAD+6}, 1
    v_mul_u32_u24 v{OAD+7}, 1792, v1
    v_lshl_add_u32 v{OAD+7}, v2, 4, v{OAD+7}
    v_add_u32 v{OAD+8}, 0x1000, v6
    v_add_u32 v{OAD+9}, 0x2000, v6
    v_add_u32 v{OAD+10}, 0x3000, v6
    """)
def o_load(a, k):
    for s in range(2):
        f = 2 * k + s
        va = 6 if f < 4 else OAD + 7 + f // 4
        a.vmem(f"buffer_load_dwordx4 {vr(OF+4*f,4)}, v{va}, {WS}, s52 offen offset:{(f&3)*1024} sc1", f"of{k}")
def oproj_loads(a):
    for k in range(8): o_load(a, k)
def oproj_main(a):
    a("L_oproj:")
    trace(a, 114)
    NB = 4
    def wlist(j):
        if j >= 16: return []
        k, st = j >> 1, j & 1
        row = 28 * k - 4 * (k & 1) + 16 * st
        r = []
        for n in range(2):
            f = OW + 8 * (j % NB) + 4 * n
            r.append(f"ds_read_b64_tr_b16 {vr(f,2)}, v{OAD+n} offset:{row*128}")
            r.append(f"ds_read_b64_tr_b16 {vr(f+2,2)}, v{OAD+n} offset:{row*128+512}")
        return r
    def clist(k):
        o = OF + 8 * k
        return [f"v_max3_u32 v7, v{o}, v{o+1}, v{o+2}", f"v_max3_u32 v4, v{o+3}, v{o+4}, v{o+5}", f"v_max3_u32 v7, v7, v{o+6}, v{o+7}",
                "v_max_u32 v7, v7, v4", "v_cmp_eq_u32 vcc, -1, v7"]
    def check(k):
        for x in clist(k): a(x)
    for j in range(NB - 1):
        for x in wlist(j): a(x)
    a("s_mov_b32 s63, 0\ns_movk_i32 s56, 0\ns_waitcnt vmcnt(14)")
    check(0)
    a("s_waitcnt lgkmcnt(8)")
    for j in range(16):
        k = j >> 1
        if j % 2 == 0: a(f"s_cbranch_vccnz L_oretry\nL_ob{k}:")
        w = wlist(j + NB - 1)
        nxt = min(j + NB - 1, 15) - (j + 1)
        fills = [w[0:2], w[2:4]]
        if j % 2 == 1 and k < 7:
            c = clist(k + 1)
            fills = [w[0:4] + [f"s_waitcnt vmcnt({12 - 2*k})"], c + [f"s_movk_i32 s56, {k+1}"]]
        if j < 15: fills[1] = fills[1] + [f"s_waitcnt lgkmcnt({4*nxt})"]
        for n in range(2):
            d = vr(OACC + 16 * n, 16)
            a(f"v_mfma_f32_32x32x16_bf16 {d}, {vr(OW+8*(j%NB)+4*n,4)}, {vr(OF+4*j,4)}, {d if j else 0}")
            for x in fills[n]: a(x)
    a("s_branch L_odone")
    a(f"L_oretry:\ns_mov_b32 s60, 0\ns_brev_b32 s61, 1\ns_waitcnt vmcnt(0)\nL_ore2:\ns_mov_b32 s59, 0")
    for k in range(8):
        a(f"s_cmp_gt_u32 s56, {k}\ns_cbranch_scc1 L_o2_{k}")
        check(k)
        a(f"s_nop 0\ns_cbranch_vccz L_o2_{k}\ns_bitset1_b32 s59, {k}")
        if X("RGATE", 0):
            a(f"v_readlane_b32 s62, v{OF+8*k+7}, 63\ns_nop 0\ns_cmp_lg_u32 s62, -1\ns_cselect_b64 exec, -1, s[60:61]")
        o_load(a, k)
        if X("RGATE", 0): a("s_mov_b64 exec, -1")
        a(f"L_o2_{k}:")
    a(f"""
    s_add_u32 s63, s63, 1
    s_waitcnt vmcnt(0)
    s_cmp_ge_u32 s63, {SPIN_MAX}
    s_cbranch_scc1 L_oret
    s_bitcmp1_b32 s59, s56
    s_cbranch_scc0 L_oret
    """)
    for k in range(8):
        a(f"s_cmp_eq_u32 s56, {k}\ns_cbranch_scc0 L_o4_{k}")
        check(k)
        a(f"s_nop 0\ns_cbranch_vccz L_ob{k}\ns_branch L_osl\nL_o4_{k}:")
    a("L_osl:")
    if X("OSLEEP", 1): a(f"s_sleep {X('OSLEEP', 1)}")
    a("s_branch L_ore2\nL_oret:")
    for k in range(7): a(f"s_cmp_eq_u32 s56, {k}\ns_cbranch_scc1 L_ob{k}")
    a("s_branch L_ob7\nL_odone:")
    if TRACE: a(f"v_writelane_b32 v166, s63, 63")
    trace(a, 116)
    a("s_cmp_eq_u32 s51, 0\ns_nop 7\ns_mov_b32 s63, 0\ns_cbranch_scc1 L_ok0")
    for var in (1, 0):
        keep, send = OACC + 16 * var, OACC + 16 * (1 - var)
        if var == 0: a("L_ok0:")
        for i in range(4): a(f"ds_write_b128 v{OAD+2}, {vr(send+4*i,4)} offset:{i*1024}")
        a(f"ds_write_b32 v{OAD+4}, v{OAD+6}\nL_ow{var}:\nds_read_b32 v7, v{OAD+5}")
        for i in range(4): a(f"ds_read_b128 {vr(OF+4*i,4)}, v{OAD+3} offset:{i*1024}")
        a(f"""
        s_add_u32 s63, s63, 1
        s_waitcnt lgkmcnt(4)
        v_cmp_eq_u32 vcc, 0, v7
        s_cmp_ge_u32 s63, {SPIN_MAX*8}
        s_cbranch_scc1 L_og{var}
        s_cbranch_vccnz L_ow{var}
        L_og{var}:
        """)
        for hf in range(2):
            a(f"s_waitcnt lgkmcnt({2 - 2*hf})")
            for r in range(8*hf, 8*hf+8, 2): a(f"v_pk_add_f32 {vr(keep+r,2)}, {vr(keep+r,2)}, {vr(OF+r,2)}")
            for r in range(4*hf, 4*hf+4): a(f"v_cvt_pk_bf16_f32 v{OF+16+r}, v{keep+2*r}, v{keep+2*r+1}")
            a(f"buffer_store_dwordx4 {vr(OF+16+4*hf,4)}, v{OAD+7}, {sr(SRD_OUT)}, s55 offen offset:{32*hf} {os.environ.get('OUTF', '')}")
        if var == 1: a("s_branch L_oe")
    a("L_oe:")
    trace(a, 117)
    if TRACE: a("s_waitcnt vmcnt(0)")
    trace(a, 118)

FL, SNV = 132, 158
VW, VVA, VVB, VR0, VR1 = 161, 162, 163, 164, 167
def qkv_flag_loads(a, F):
    vt = FL
    a(f"""
    s_lshr_b32 s51, s{S_P0}, 11
    s_add_u32 s52, s{S_P0}, 1536
    s_lshr_b32 s52, s52, 11
    s_sub_u32 s52, s52, s51
    s_lshl_b32 s52, s52, 12
    v_mul_u32_u24 v7, s52, v2
    s_lshl_b32 s51, s51, 12
    s_add_u32 s79, s51, {F}
    s_lshl_b32 s51, s{S_QB}, 2
    """)
    if F == FB: a("s_add_u32 s52, s51, 3")
    else: a(f"s_add_u32 s52, s51, s{S_W4}\ns_max_u32 s51, s52, 1\ns_sub_u32 s51, s51, 1")
    a(f"""
    s_mul_i32 s51, s51, 86
    s_lshr_b32 s51, s51, 8
    s_mul_i32 s52, s52, 86
    s_lshr_b32 s52, s52, 8
    v_max_u32 v4, s51, v1
    v_min_u32 v4, s52, v4
    v_lshl_add_u32 v{vt+7}, v4, 7, v7
    """)
    if F == FB: a(f"v_min_u32 v4, 21, v1")
    a(f"""
    v_lshl_add_u32 v{vt+6}, v4, 7, v7
    v_add_u32 v{vt+6}, {14*4096}, v{vt+6}
    s_add_u32 s80, s79, {14*4096}
    """)
    a.vmem(f"buffer_load_dwordx2 {vr(vt,2)}, v{vt+7}, {WS}, s79 offen sc1", "qf")
    a.vmem(f"buffer_load_dwordx2 {vr(vt+2,2)}, v{vt+6}, {WS}, s79 offen sc1", "qf")
    a.vmem(f"buffer_load_dwordx2 {vr(vt+4,2)}, v{vt+6}, {WS}, s80 offen sc1", "qf")
def qkv_flag_test(a):
    vt = FL
    a(f"""
    v_cmp_ne_u64 vcc, s[{NON}:{NON+1}], {vr(vt,2)}
    v_cmp_ne_u64 s[52:53], s[{NON}:{NON+1}], {vr(vt+2,2)}
    v_cmp_ne_u64 s[54:55], s[{NON}:{NON+1}], {vr(vt+4,2)}
    s_add_u32 s63, s63, 1
    s_or_b64 s[56:57], s[52:53], vcc
    s_or_b64 s[56:57], s[56:57], s[54:55]
    """)
def qkv_flag_check(a):
    vt = FL
    L = a.lab("qf")
    a.vm_wait("qf")
    a(f"s_mov_b32 s63, 0\n{L}:")
    qkv_flag_test(a)
    a(f"""
    s_cbranch_scc0 {L}_ok
    s_cmp_ge_u32 s63, {SPIN_MAX}
    s_cbranch_scc1 {L}_ok
    s_sleep {X("QSLEEP", 1)}
    s_or_b64 exec, vcc, 1
    buffer_load_dwordx2 {vr(vt,2)}, v{vt+7}, {WS}, s79 offen sc1
    s_or_b64 exec, s[52:53], 1
    buffer_load_dwordx2 {vr(vt+2,2)}, v{vt+6}, {WS}, s79 offen sc1
    s_or_b64 exec, s[54:55], 1
    buffer_load_dwordx2 {vr(vt+4,2)}, v{vt+6}, {WS}, s80 offen sc1
    s_mov_b64 exec, -1
    s_waitcnt vmcnt(0)
    s_branch {L}
    {L}_ok:
    """)

def service(a):
    a("s_setprio 3")
    a.vm_reset()
    a(f"""
    v_lshrrev_b32 v1, 3, v0
    v_and_b32 v2, 7, v0
    v_lshrrev_b32 v3, 1, v1
    s_and_b32 s51, s3, 1
    s_lshl_b32 s51, s51, 2
    v_add_u32 v4, s51, v3
    v_xor_b32 v4, v2, v4
    v_lshlrev_b32 v4, 4, v4
    v_mul_u32_u24 v5, 896, v1
    v_add_u32 v8, v4, v5
    v_add_u32 v9, 28672, v8
    v_add_u32 v10, 57344, v8
    v_and_b32 v3, 1, v3
    v_lshlrev_b32 v3, 2, v3
    v_xor_b32 v4, v2, v3
    v_lshlrev_b32 v4, 4, v4
    v_add_u32 v{VW}, v4, v5
    v_mul_u32_u24 v5, 2688, v1
    v_add_u32 v11, v4, v5
    v_add_u32 v12, {32*2688}, v11
    v_add_u32 v13, 128, v11
    v_add_u32 v14, 128, v12
    s_lshl_b32 s51, s{S_W4}, 3
    s_add_u32 s56, s{S_ROW}, s51
    s_mul_i32 s56, s56, 896
    s_mul_i32 s57, s51, 2688
    s_lshl_b32 s52, s{S_COL}, 6
    s_add_u32 s57, s57, s52
    s_lshl_b32 s58, s{S_W4}, 10
    s_add_u32 s59, s{S_RB}, s{S_CB}
    """)
    R = X("ROT", 7)
    if R == 7: a("s_mul_i32 s51, s59, 37\ns_lshr_b32 s51, s51, 8\ns_mul_i32 s51, s51, 7\ns_sub_u32 s59, s59, s51")
    if R == 2: a("s_and_b32 s59, s59, 1\ns_mul_i32 s59, s59, 3")
    if R == 3: a("s_mul_i32 s51, s59, 86\ns_lshr_b32 s51, s51, 8\ns_mul_i32 s51, s51, 3\ns_sub_u32 s59, s59, s51\ns_lshl_b32 s59, s59, 1")
    if R == 0: a("s_mov_b32 s59, 0")
    a("s_waitcnt lgkmcnt(0)")
    srd(a, SRD_XB, P + 6, 1835008); srd(a, SRD_WB, P + 8, 448 * 2688)
    a(f"s_cmp_eq_u32 s{S_ACT}, 0\ns_cbranch_scc1 L_sv_nog")
    def issue(g):
        Xs, W = (SRD_XB, SRD_WB) if g < 7 or X('FAKEA') else (SRD_XA, SRD_WA)
        slot = (g % GNS) * GSLOT
        a(f"""
        s_lshl_b32 s60, s59, 7
        s_add_u32 s60, s60, s56
        s_mul_i32 s61, s59, {64*2688}
        s_add_u32 s61, s61, s57
        """)
        order = [('x', 0), ('w', 0), ('w', 2), ('x', 1), ('w', 1), ('w', 3), ('x', 2)]
        fill = ["s_add_u32 s59, s59, 1", "s_nop 0", "s_nop 0", "s_nop 0", "s_nop 0", "s_nop 0", "s_cmp_ge_u32 s59, 7"]
        for (kind, u), fl in zip(order, fill):
            if kind == 'x':
                a(f"s_add_u32 m0, s58, {slot + u * 4096}\n{fl}")
                a.vmem(f"buffer_load_dwordx4 v{8+u}, {sr(Xs)}, s60 offen lds", f"g{g}")
            else:
                j, v = u >> 1, u & 1
                a(f"s_add_u32 m0, s58, {slot + 12288 + j * 8192 + v * 4096}\n{fl}")
                a.vmem(f"buffer_load_dwordx4 v{11 + 2*j + v}, {sr(W)}, s61 offen lds", f"g{g}")
        a("s_cselect_b32 s59, 0, s59")
    trace(a, 48)
    issue(0)
    srd(a, SRD_XA, P + 0, 1835008); srd(a, SRD_WA, P + 2, 448 * 2688)
    common_srds(a)
    a(f"""
    s_sub_u32 s51, s3, 8
    s_or_b32 s51, s51, s2
    s_cmp_eq_u32 s51, 0
    s_cbranch_scc0 L_nonon
    s_memrealtime s[52:53]
    v_mov_b32 v18, 0
    s_waitcnt lgkmcnt(0)
    s_or_b32 s53, s53, 0x80000000
    v_mov_b32 v16, s52
    v_mov_b32 v17, s53
    s_mov_b64 exec, 1
    buffer_store_dwordx2 v[16:17], v18, {sr(SRD_DBG)}, 0 offen sc1
    s_mov_b64 exec, -1
    L_nonon:
    """)
    A = AttnA(a)
    def sv_setup():
        setup2(a); norm_masks(a)
        a(f"""
        v_mov_b32 v{SNV+2}, 0
        v_mov_b32 v{FL+6}, 0
        v_mov_b32 v{FL+7}, 0
        v_mul_u32_u24 v7, 448, v2
        v_lshl_add_u32 v7, v1, 4, v7
        s_lshl_b32 s51, s{S_ODD}, 6
        s_sub_u32 s51, 256, s51
        v_add_u32 v{VVA}, s51, v7
        v_subrev_u32 v{VVB}, 128, v{VVA}
        v_lshlrev_b32 v{VR0}, 12, v0
        v_add_u32 v{VR0}, {L_RELAY}, v{VR0}
        s_lshl_b32 s51, s{S_W4}, 12
        s_add_u32 s51, s51, {L_RELAY}
        v_mov_b32 v{VR1}, s51
        v_mov_b32 v7, 0
        ds_write_b32 v{VR1}, v7
        """)
        A.masks()
        a("s_mov_b64 s[76:77], s[56:57]\ns_mov_b32 s78, s58")
        oproj_params(a, "A"); oproj_init(a)
        a("s_mov_b64 s[56:57], s[76:77]\ns_mov_b32 s58, s78")
        a("s_waitcnt lgkmcnt(0)")
    def sv_setup_late():
        srd(a, SRD_WOA, P + 4, 448 * 896); srd(a, SRD_WOB, P + 10, 448 * 896)
        a(f"""
        s_lshl_b32 s58, s{S_W4}, 12
        s_mul_i32 s59, s{S_W4}, 28672
        s_add_u32 s59, s59, s{S_P0}
        s_add_u32 s59, s59, {KB}
        s_lshl_b32 s60, s{S_HD}, 6
        s_add_u32 s60, s60, s{S_W4}
        s_mul_i32 s60, s60, 1792
        s_add_u32 s60, s60, {VB - 256}
        """)
    def dma(st):
        a(f"s_add_u32 m0, s58, {slot_addr(st)}\ns_add_u32 s56, s59, {st*4*28672}")
        a.vmem(f"buffer_load_dwordx4 v6, {WS}, s56 offen sc1 lds", f"a{st}")
        a.vmem(f"buffer_load_dwordx4 v6, {WS}, s56 offen offset:1024 sc1 lds", f"a{st}")
        a(f"s_add_u32 m0, s58, {slot_addr(st) + 2048}\ns_add_u32 s57, s60, {st*4*1792}\ns_mov_b64 exec, s[{VMASK}:{VMASK+1}]")
        a.vmem(f"buffer_load_dwordx4 v{VVA}, {WS}, s57 offen sc1 lds", f"a{st}")
        a.vmem(f"buffer_load_dwordx4 v{VVB}, {WS}, s57 offen offset:1024 sc1 lds", f"a{st}")
        a("s_mov_b64 exec, -1")
    APRE = X("APRE", 3)
    def relay_set():
        a(f"v_mov_b32 v7, 1\ns_mov_b64 exec, 14\nds_write_b32 v{VR0}, v7\ns_mov_b64 exec, -1")
    def first_dmas():
        a(f"""
        s_mul_i32 s56, s{S_QB}, {4*28672}
        s_add_u32 s56, s56, s59
        s_lshr_b32 s51, s58, 1
        s_add_u32 m0, s51, {L_Q}
        s_sub_u32 s56, s56, {KB}
        """)
        a.vmem(f"buffer_load_dwordx4 v6, {WS}, s56 offen sc1 lds", "a0")
        a.vmem(f"buffer_load_dwordx4 v6, {WS}, s56 offen offset:1024 sc1 lds", "a0")
        for st in range(X('APRE0', 1)): dma(st)
    issued = 1
    while issued < X("PRE", 2): issue(issued); issued += 1
    sv_setup()
    FBAT = X("FBAT", 10)
    KVAT = X("KVAT", 12)
    def flags_uniform(tag):
        nonce_load(a, SNV)
        keep = list(a.vm)
        a(f"s_cmp_eq_u32 s{S_W4}, 0\ns_cbranch_scc1 L_fu{tag}")
        for i in range(3): nonce_load(a, SNV)
        a(f"s_branch L_fud{tag}\nL_fu{tag}:")
        a.vm = keep
        qkv_flag_loads(a, FB)
        a(f"L_fud{tag}:")
    for c in range(KVAT + 1):
        trace(a, 1 + 3*c)
        a.vm_wait(f"g{c}")
        trace(a, 2 + 3*c)
        a("s_barrier")
        trace(a, 3 + 3*c)
        if c == 0: stamp(a, 1)
        if c == FBAT and X("FBPRE", 1): flags_uniform(0)
        lim = min(13, c + GNS - 1)
        if c < 7: lim = min(lim, X("HOLD", 7))
        while issued <= lim: issue(issued); issued += 1
        if c == 10: sv_setup_late()
        if c == FBAT and not X("FBPRE", 1): flags_uniform(0)
    a.vm_wait("qf")
    keep2 = list(a.vm)
    a("s_branch L_sv_att\nL_sv_nog:")
    common_srds(a)
    sv_setup(); sv_setup_late()
    for i in range(X("IDLEW", 1)): a("s_sleep 64")
    flags_uniform(1)
    a("s_barrier\ns_waitcnt vmcnt(0)\nL_sv_att:")
    a.vm = keep2
    a(f"s_cmp_eq_u32 s{S_W4}, 0\ns_cbranch_scc0 L_relay")
    nonce_get(a, SNV)
    qkv_flag_check(a)
    relay_set()
    a(f"""
    s_branch L_relay_ok
    L_relay:
    s_mov_b32 s63, 0
    L_relay_w:
    ds_read_b32 v7, v{VR1}
    s_add_u32 s63, s63, 1
    s_waitcnt lgkmcnt(0)
    v_cmp_eq_u32 vcc, 0, v7
    s_cmp_ge_u32 s63, {SPIN_MAX*16}
    s_cbranch_scc1 L_relay_ok
    s_cbranch_vccnz L_relay_w
    L_relay_ok:
    """)
    stamp(a, 2); trace(a, 44)
    first_dmas()
    if KVAT == 12:
        a.vm_wait("g13")
        trace(a, 41)
        a(f"s_cmp_eq_u32 s{S_ACT}, 0\ns_cbranch_scc1 L_no13\ns_barrier\nL_no13:")
        trace(a, 42)
    for st in range(X("APRE0", 1), APRE): dma(st)
    nonce_get(a, SNV)
    def wo_dma(W, lds, i0, n, tag):
        a(f"""
        s_mul_i32 s61, s{S_W4}, {8*896}
        s_lshl_b32 s62, s{S_CB2}, 7
        s_add_u32 s61, s61, s62
        s_lshl_b32 s62, s{S_W4}, 10
        """)
        for j in range(i0, i0 + n):
            a(f"s_add_u32 m0, s62, {lds + j*4096}\ns_add_u32 s63, s61, {j*32*896}")
            a.vmem(f"buffer_load_dwordx4 v{VW}, {sr(W)}, s63 offen lds", tag)
    issued = APRE
    bars = [-2] + ABAR
    for i, n in enumerate(bars):
        need = bars[i + 1] // 2 if i + 1 < len(bars) else 15
        trace(a, 64 + 3*i)
        a.vm_wait(f"a{need}", "lgkmcnt(0)" if i == 0 else "")
        trace(a, 65 + 3*i)
        a("s_barrier")
        trace(a, 66 + 3*i)
        if n == 12: qkv_flag_loads(a, FA)
        while issued <= min(15, max(n // 2 - 1, -1) + ANS) and (n >= 0 or X('A0ISS', 0)): dma(issued); issued += 1
        if n == 4: wo_dma(SRD_WOB, L_WOB, 0, 4, "wob")
        if n == 8: wo_dma(SRD_WOB, L_WOB, 4, 6, "wob"); A.poison()
        if n == 16: wo_dma(SRD_WOB, L_WOB, 10, 4, "wob")
        if n == 12: qkv_flag_check(a); A.loads()
        if n == 16: A.qk(); A.pv(); a("s_nop 7"); A.fin()
        if n == 20: A.pub(); wo_dma(SRD_WOA, L_WOA, 0, 2, "woa")
        if n == 24:
            assert issued == 16
            wo_dma(SRD_WOA, L_WOA, 2, 8, "woa")
            oproj_params(a, "A")
            a(f"s_sleep {X('FOADELAY', 6)}")
            A.oflag_load()
        if n == 28:
            wo_dma(SRD_WOA, L_WOA, 10, 4, "woa")
            A.oflag_check()
            for k in range(X("OAK", 4)): o_load(a, k)
    a.vm_wait("woa")
    a(f"""
    v_mov_b32 v7, {L_SYNC}
    v_lshl_add_u32 v7, v0, 2, v7
    v_mov_b32 v4, 0
    s_barrier
    s_mov_b64 exec, 0xff
    ds_write_b32 v7, v4
    s_mov_b64 exec, -1
    s_waitcnt lgkmcnt(0)
    s_barrier
    """)
    stamp(a, 3); trace(a, 113)
    a(f"s_setprio 0\ns_cmp_eq_u32 s{S_ACT2}, 0\ns_cbranch_scc1 L_end")
    if X("OAK", 4) < 8:
        a(f"s_sleep {X('OADELAY', 9)}")
        for k in range(X("OAK", 4), 8): o_load(a, k)
    oproj_main(a)

class AttnA:
    Q, KP, KC, VP, VC, SP, SC, OO, T, IX = 80, 88, 96, 112, 116, 16, 32, 48, 64, 124
    def __init__(s, a): s.a = a
    def tq(s): s.a(f"s_lshl_b32 s51, s{S_QB}, 2\ns_add_u32 s51, s51, s{S_W4}")
    def blk(s, sh, base):
        s.tq()
        s.a(f"s_lshl_b32 s51, s51, 4\ns_add_u32 s51, s51, s{S_HD}\ns_lshl_b32 s51, s51, {sh}\ns_add_u32 s51, s51, {base}")
    def masks(s):
        a = s.a; s.tq()
        a(f"""
        v_lshlrev_b32 v7, 3, v2
        v_sub_u32 v7, v1, v7
        v_add_u32 v7, 18, v7
        v_mov_b32 v126, 0x5555
        v_mov_b32 v127, 0
        v_lshlrev_b64 v[126:127], v7, v[126:127]
        s_cmp_eq_u32 s51, 0
        s_cselect_b32 s52, 0, -1
        v_and_b32 v126, s52, v126
        v_not_b32 v126, v126
        v_not_b32 v127, v127
        s_mov_b32 s52, 0xf149f2ca
        v_mov_b32 v{s.IX}, 0xdddddddd
        """)
        for r in range(16):
            g, i = r >> 2, r & 3
            c = 16 * (g >> 1) + 4 * (g & 1) + i
            a(f"v_bfe_i32 v{s.SC+r}, v127, {c}, 1\nv_and_b32 v{s.SC+r}, s52, v{s.SC+r}")
            if r >= 8: a(f"v_bfe_i32 v{s.SP+r}, v126, {c}, 1\nv_and_b32 v{s.SP+r}, s52, v{s.SP+r}")
            else: a(f"v_mov_b32 v{s.SP+r}, 0")
            a(f"v_mov_b32 v{s.OO+r}, 0")
        for r in range(12): a(f"v_mov_b32 v{s.VP+r}, 0x3f803f80")
        a(f"v_mov_b32 v140, {hex(f2u(QSCALE))}")
        for r in range(4): a(f"v_mov_b32 v{128+r}, -1")
        a(f"""
        v_and_b32 v7, 31, v3
        s_lshl_b32 s53, s{S_ODD}, 2
        v_subrev_u32 v7, s53, v7
        v_cmp_gt_u32 s[{AVM}:{AVM+1}], 28, v7
        v_mul_u32_u24 v125, 448, v2
        v_lshl_add_u32 v125, v7, 4, v125
        v_add_u32 v125, 256, v125
        """)
    def poison(s):
        a = s.a; s.blk(11, OB)
        a.vmem(f"buffer_store_dwordx4 v[128:131], v6, {WS}, s51 offen sc1", "poi")
        a.vmem(f"buffer_store_dwordx4 v[128:131], v6, {WS}, s51 offen offset:1024 sc1", "poi")
    def loads(s):
        a = s.a; s.tq()
        a(f"""
        s_mul_i32 s52, s51, 28672
        s_add_u32 s52, s52, s{S_P0}
        s_add_u32 s53, s52, {KA}
        s_add_u32 s52, s52, {QA}
        s_cmp_eq_u32 s51, 0
        s_cselect_b32 s54, 0, 28672
        s_cselect_b32 s55, 0, 1792
        s_sub_u32 s54, s53, s54
        """)
        a.vmem(f"buffer_load_dwordx4 {vr(s.Q,4)}, v6, {WS}, s52 offen sc1", "aq")
        a.vmem(f"buffer_load_dwordx4 {vr(s.Q+4,4)}, v6, {WS}, s52 offen offset:1024 sc1", "aq")
        a.vmem(f"buffer_load_dwordx4 {vr(s.KP,4)}, v5, {WS}, s54 offen sc1", "aq")
        a.vmem(f"buffer_load_dwordx4 {vr(s.KP+4,4)}, v5, {WS}, s54 offen offset:1024 sc1", "aq")
        a.vmem(f"buffer_load_dwordx4 {vr(s.KC,4)}, v5, {WS}, s53 offen sc1", "aq")
        a.vmem(f"buffer_load_dwordx4 {vr(s.KC+4,4)}, v5, {WS}, s53 offen offset:1024 sc1", "aq")
        a(f"""
        s_lshl_b32 s52, s{S_HD}, 6
        s_add_u32 s52, s52, s51
        s_mul_i32 s52, s52, 1792
        s_add_u32 s52, s52, {VA - 256}
        s_sub_u32 s55, s52, s55
        s_mov_b64 exec, s[{AVM}:{AVM+1}]
        """)
        a.vmem(f"buffer_load_dwordx4 {vr(s.VP,4)}, v125, {WS}, s55 offen offset:896 sc1", "aq")
        a.vmem(f"buffer_load_dwordx4 {vr(s.VC,4)}, v125, {WS}, s52 offen sc1", "aq")
        a.vmem(f"buffer_load_dwordx4 {vr(s.VC+4,4)}, v125, {WS}, s52 offen offset:896 sc1", "aq")
        a("s_mov_b64 exec, -1")
    def qk(s):
        a = s.a
        a.vm_wait("aq")
        zero_qpad(a, s.Q)
        a(f"""
        v_mfma_f32_32x32x16_bf16 {vr(s.SP,16)}, {vr(s.KP,4)}, {vr(s.Q,4)}, {vr(s.SP,16)}
        v_mfma_f32_32x32x16_bf16 {vr(s.SC,16)}, {vr(s.KC,4)}, {vr(s.Q,4)}, {vr(s.SC,16)}
        v_mfma_f32_32x32x16_bf16 {vr(s.SP,16)}, {vr(s.KP+4,4)}, {vr(s.Q+4,4)}, {vr(s.SP,16)}
        v_mfma_f32_32x32x16_bf16 {vr(s.SC,16)}, {vr(s.KC+4,4)}, {vr(s.Q+4,4)}, {vr(s.SC,16)}
        s_nop 11
        """)
        s.regs = regs = list(range(s.SP + 8, s.SP + 16)) + list(range(s.SC, s.SC + 16))
        a(f"v_max_f32 v8, v{regs[0]}, v{regs[1]}")
        for k in range(2, 24, 2): a(f"v_max3_f32 v8, v8, v{regs[k]}, v{regs[k+1]}")
        a("v_mov_b32 v9, v8\ns_nop 1\nv_permlane32_swap_b32 v8, v9\nv_max_f32 v8, v8, v9\nv_mul_f32 v8, v140, v8")
        for r in regs[::2]: a(f"v_pk_fma_f32 {vr(r,2)}, {vr(r,2)}, v[140:141], v[8:9] op_sel_hi:[1,0,0] neg_lo:[0,0,1] neg_hi:[0,0,1]")
    def pv(s):
        a = s.a
        for r in s.regs: a(f"v_exp_f32 v{r}, v{r}")
        a(f"""
        v_smfmac_f32_32x32x32_bf16 {vr(s.OO,16)}, {vr(s.VP,4)}, {vr(s.SP+8,8)}, v{s.IX}
        v_smfmac_f32_32x32x32_bf16 {vr(s.OO,16)}, {vr(s.VC,4)}, {vr(s.SC,8)}, v{s.IX}
        v_smfmac_f32_32x32x32_bf16 {vr(s.OO,16)}, {vr(s.VC+4,4)}, {vr(s.SC+8,8)}, v{s.IX}
        """)
    def fin(s):
        s.blk(11, OA)
        finish_O(s.a, s.OO, s.T, 51, True)
    def pub(s):
        s.blk(7, FOA)
        s.a.vm_wait("ost")
        put_flag(s.a, 51, SNV)
    def oflag_load(s):
        a = s.a
        a(f"""
        s_sub_u32 s59, s52, {OA}
        s_lshr_b32 s59, s59, 4
        s_add_u32 s59, s59, {FOA}
        v_min_u32 v10, 7, v0
        v_lshlrev_b32 v10, 7, v10
        """)
        a.vmem(f"buffer_load_dwordx2 v[8:9], v10, {WS}, s59 offen sc1", "oflag")
    def oflag_check(s):
        a = s.a
        a.vm_wait("oflag")
        a(f"""
        s_mov_b32 s63, 0
        L_of:
        v_cmp_ne_u64 vcc, s[{NON}:{NON+1}], v[8:9]
        s_add_u32 s63, s63, 1
        s_cbranch_vccz L_of_ok
        s_cmp_ge_u32 s63, {SPIN_MAX}
        s_cbranch_scc1 L_of_ok
        s_sleep 2
        s_mov_b64 exec, vcc
        buffer_load_dwordx2 v[8:9], v10, {WS}, s59 offen sc1
        s_mov_b64 exec, -1
        s_waitcnt vmcnt(0)
        s_branch L_of
        L_of_ok:
        """)

def main(out):
    a = Asm()
    a("L_begin:")
    setup(a)
    service(a)
    a("s_branch L_end\nL_comp:")
    a.vm_reset()
    gemm_compute(a)
    attn_compute(a)
    a("L_end:")
    stamp_out(a)
    a("L_exit:\ns_endpgm\nL_codeend:")
    kn = NAME + "_kernel"
    if X("LIST"): hdr = f"; @launch kernel={kn} grid=(256,1,1) block=(768,1,1) lds=163840\n"
    else: hdr = "; @launch grid=(256,1,1) block=(768,1,1) lds=163840\n"
    hdr += f'.amdgcn_target "amdgcn-amd-amdhsa--gfx950"\n.text\n.globl {kn}\n.p2align 8\n.type {kn},@function\n{kn}:\n'
    desc = f""".section .rodata,"a"
.p2align 6
.amdhsa_kernel {kn}
  .amdhsa_next_free_vgpr 168
  .amdhsa_next_free_sgpr 102
  .amdhsa_accum_offset 168
  .amdhsa_group_segment_fixed_size 0
  .amdhsa_kernarg_size 72
  .amdhsa_user_sgpr_count 2
  .amdhsa_user_sgpr_kernarg_segment_ptr 1
  .amdhsa_system_sgpr_workgroup_id_x 1
.end_amdhsa_kernel
"""
    txt = hdr + a.text() + desc
    open(out, "w").write(txt)
    e = lint(txt)
    for x in e: print("HAZARD", x)
    print("written", out, len(txt), "bytes;", len(e), "hazards")

if __name__ == "__main__":
    main(sys.argv[1] if len(sys.argv) > 1 else f"cdna_kernels/{NAME}.s")
```

```python
import sys, math, os, struct
from lint import lint

NAME = "concat_heads__sliding_local_dilated__mha_block__prompt"
def X(k, d=0): return int(os.environ.get(k, str(d)))
SEC = 1835008
QB, KB, VB, QA, KA, VA = [i * SEC for i in range(6)]
OA = 6 * SEC
OB = OA + 0x200000
FB = OB + 0x200000
FA = FB + 42 * 4096
FOA = FA + 42 * 4096
WS_SIZE = FOA + 0x20000
QSCALE = (28 ** -0.5) * math.log2(math.e)
def f2u(x): return struct.unpack('<I', struct.pack('<f', x))[0]
STAMP, TRACE = X("STAMP"), X("TRACE")
TS_OFF = 0x1000000
SPIN_MAX = 400000

class Asm:
    def __init__(self): self.l = []; self.vm = []; self.nlab = 0
    def __call__(self, s):
        for x in s.strip('\n').split('\n'):
            x = x.strip()
            if not x: continue
            self.l.append(x if x.endswith(':') else '    ' + x)
    def text(self): return '\n'.join(self.l) + '\n'
    def lab(self, p):
        self.nlab += 1; return f"{p}_{self.nlab}"
    def vm_reset(self): self.vm = []
    def vmem(self, ins, tag):
        self(ins); self.vm.append(tag)
    def vm_wait(self, tag, extra=""):
        idx = [i for i, t in enumerate(self.vm) if t == tag]
        if not idx:
            if extra: self(f"s_waitcnt {extra}")
            return
        n = len(self.vm) - 1 - idx[-1]
        assert n < 64
        self(f"s_waitcnt vmcnt({n}) {extra}")
        self.vm = self.vm[idx[-1] + 1:]

def vr(a, n): return "v[%d:%d]" % (a, a + n - 1)
def sr(a, n=4): return "s[%d:%d]" % (a, a + n - 1)

SRD_XB, SRD_WB, SRD_XA, SRD_WA, SRD_WS, SRD_OUT, SRD_DBG = 4, 8, 12, 16, 20, 24, 28
SRD_WOA, SRD_WOB = 4, 8
MODD, MA, MB, AVM = 64, 66, 70, 72
NON = 32
S_HD, S_QB, S_ODD, S_P0 = 34, 35, 36, 37
S_RB, S_CB, S_ROW, S_COL, S_ACT = 38, 39, 40, 41, 42
S_RB2, S_CB2, S_ACT2 = 43, 44, 45
VMASK, QPAD = 46, 48
S_W4 = 50
P = 64
WS = sr(SRD_WS)

def srd(a, d, ptr, size):
    a(f"s_mov_b32 s{d}, s{ptr}\ns_mov_b32 s{d+1}, s{ptr+1}\ns_mov_b32 s{d+2}, {size}\ns_mov_b32 s{d+3}, 0x20000")
def common_srds(a):
    srd(a, SRD_WS, P + 16, WS_SIZE); srd(a, SRD_DBG, P + 14, 256); srd(a, SRD_OUT, P + 12, 2048 * 1792)

def stamp(a, i):
    if STAMP: a(f"s_memtime s[{82+4*i}:{83+4*i}]\ns_memrealtime s[{84+4*i}:{85+4*i}]\ns_waitcnt lgkmcnt(0)")
def trace(a, idx, reg=165):
    if TRACE: a(f"s_memtime s[98:99]\ns_waitcnt lgkmcnt(0)\nv_writelane_b32 v{reg + idx // 64}, s98, {idx % 64}")
def stamp_out(a):
    if TRACE:
        a(f"""
        s_mov_b32 s22, 0x2000000
        s_lshl_b32 s4, s2, 4
        s_add_u32 s4, s4, s3
        s_lshl_b32 s4, s4, 9
        s_add_u32 s4, s4, {TS_OFF + 0x100000}
        v_lshlrev_b32 v1, 2, v0
        buffer_store_dword v165, v1, s[20:23], s4 offen
        buffer_store_dword v166, v1, s[20:23], s4 offen offset:256
        """)
    if not STAMP: return
    a("s_waitcnt vmcnt(0)")
    stamp(a, 4)
    a(f"""
    s_mov_b32 s22, 0x2000000
    s_lshl_b32 s4, s2, 4
    s_add_u32 s4, s4, s3
    s_lshl_b32 s4, s4, 6
    s_add_u32 s4, s4, {TS_OFF}
    """)
    for i in range(5):
        a(f"v_mov_b32 v{8+2*i}, s{84+4*i}\nv_mov_b32 v{9+2*i}, s{82+4*i}")
    a(f"""
    v_mov_b32 v1, 0
    s_mov_b64 exec, 1
    buffer_store_dwordx4 v[8:11], v1, s[20:23], s4 offen
    buffer_store_dwordx4 v[12:15], v1, s[20:23], s4 offen offset:16
    buffer_store_dwordx2 v[16:17], v1, s[20:23], s4 offen offset:32
    """)

GNS, GSLOT, ANS = 4, 28672, 6
L_WOB, L_Q, L_RING = 0, 57344, 65536
L_WOA = L_Q
def slot_addr(st): return L_RING + ((st % ANS + 2) % ANS) * 16384
L_COMB = slot_addr(13)
L_RED = slot_addr(15)
L_SYNC = slot_addr(14)
L_RELAY = slot_addr(3)
ABAR = [0, 4, 8, 12, 16, 20, 24, 28]
VS = X('VS', 32)
ONES = ((127 + VS) << 7) * 0x10001

def setup(a):
    if TRACE: a("v_mov_b32 v165, 0\nv_mov_b32 v166, 0"); trace(a, 0)
    if STAMP:
        for i in range(86, 98, 2): a(f"s_mov_b64 s[{i}:{i+1}], 0")
        a("s_memtime s[82:83]\ns_memrealtime s[84:85]")
    a(f"""
    s_load_dwordx16 s[64:79], s[0:1], 0
    s_load_dwordx2 s[80:81], s[0:1], 64
    s_cmp_ge_u32 s2, 256
    s_cbranch_scc1 L_exit
    v_lshrrev_b32 v1, 6, v0
    v_and_b32 v0, 63, v0
    v_readfirstlane_b32 s3, v1
    s_and_b32 s51, s2, 7
    s_lshr_b32 s52, s2, 3
    s_mul_i32 s53, s51, 31
    s_add_u32 s53, s53, s52
    s_cmp_lt_u32 s52, 31
    s_cselect_b32 s{S_ACT}, 1, 0
    s_cmp_lt_u32 s53, 242
    s_cselect_b32 s{S_ACT}, s{S_ACT}, 0
    s_mul_i32 s{S_RB}, s53, 171
    s_lshr_b32 s{S_RB}, s{S_RB}, 10
    s_mul_i32 s{S_CB}, s{S_RB}, 6
    s_sub_u32 s{S_CB}, s53, s{S_CB}
    s_sub_u32 s54, s53, 132
    s_mul_i32 s55, s54, 205
    s_lshr_b32 s55, s55, 10
    s_mul_i32 s56, s55, 5
    s_sub_u32 s56, s54, s56
    s_add_u32 s56, s56, 6
    s_cmp_ge_u32 s53, 132
    s_cselect_b32 s{S_RB}, s55, s{S_RB}
    s_cselect_b32 s{S_CB}, s56, s{S_CB}
    s_mul_i32 s{S_ROW}, s{S_RB}, 96
    s_min_u32 s{S_ROW}, s{S_ROW}, 1952
    s_lshl_b32 s{S_COL}, s{S_CB}, 2
    s_min_u32 s{S_COL}, s{S_COL}, 38
    {"s_sub_u32 s3, s3, 4" if X("SVF", 1) else ""}
    {"s_cselect_b32 s51, 12, 0" if X("SVF", 1) else ""}
    {"s_add_u32 s3, s3, s51" if X("SVF", 1) else ""}
    s_and_b32 s{S_W4}, s3, 3
    s_cmp_ge_u32 s3, 8
    s_cbranch_scc0 L_comp
    """)

def setup2(a):
    a(f"""
    s_and_b32 s51, s2, 7
    s_lshl_b32 s{S_HD}, s51, 1
    s_bfe_u32 s{S_ODD}, s2, 0x10003
    s_add_u32 s{S_HD}, s{S_HD}, s{S_ODD}
    s_lshr_b32 s{S_QB}, s2, 4
    s_mul_i32 s{S_P0}, s{S_HD}, 7
    s_lshr_b32 s{S_P0}, s{S_P0}, 1
    s_lshl_b32 s{S_P0}, s{S_P0}, 9
    s_lshr_b32 s52, s2, 3
    s_cmp_lt_u32 s52, 28
    s_cselect_b32 s{S_ACT2}, 1, 0
    s_mul_i32 s{S_RB2}, s52, 37
    s_lshr_b32 s{S_RB2}, s{S_RB2}, 8
    s_mul_i32 s53, s{S_RB2}, 7
    s_sub_u32 s{S_CB2}, s52, s53
    s_lshl_b32 s51, s51, 2
    s_add_u32 s{S_RB2}, s{S_RB2}, s51
    s_min_u32 s{S_RB2}, s{S_RB2}, 31
    s_cmp_eq_u32 s{S_ODD}, 0
    s_cselect_b32 s{VMASK}, 0x0fffffff, -16
    s_mov_b32 s{VMASK+1}, s{VMASK}
    s_cselect_b32 s{QPAD}, 0, -1
    s_cselect_b32 s{QPAD+1}, -1, 0
    v_and_b32 v1, 31, v0
    v_lshrrev_b32 v2, 5, v0
    v_and_b32 v3, 51, v0
    v_bfe_u32 v4, v0, 2, 1
    v_lshl_add_u32 v3, v4, 3, v3
    v_bfe_u32 v4, v0, 3, 1
    v_lshl_add_u32 v3, v4, 2, v3
    v_lshlrev_b32 v5, 4, v3
    v_lshlrev_b32 v6, 4, v0
    """)
def norm_masks(a):
    a(f"""
    s_mov_b32 s{MODD}, s{QPAD}
    s_mov_b32 s{MODD+1}, s{QPAD}
    s_mov_b32 s{MA}, s{QPAD}
    s_mov_b32 s{MA+1}, 0
    s_mov_b32 s{MB}, 0
    s_mov_b32 s{MB+1}, s{QPAD+1}
    """)

def nonce_load(a, vt):
    a.vmem(f"buffer_load_dwordx2 {vr(vt,2)}, v{vt+2}, {sr(SRD_DBG)}, 0 offen sc1", "non")
def nonce_get(a, vt):
    L = a.lab("non")
    a(f"""
    s_mov_b32 s63, 0
    {L}:
    v_readfirstlane_b32 s{NON}, v{vt}
    v_readfirstlane_b32 s{NON+1}, v{vt+1}
    s_add_u32 s63, s63, 1
    s_cmp_lg_u32 s{NON+1}, 0
    s_cbranch_scc1 {L}_ok
    s_cmp_ge_u32 s63, {SPIN_MAX}
    s_cbranch_scc1 {L}_ok
    s_sleep 8
    buffer_load_dwordx2 {vr(vt,2)}, v{vt+2}, {sr(SRD_DBG)}, 0 offen sc1
    s_waitcnt vmcnt(0)
    s_branch {L}
    {L}_ok:
    """)
def put_flag(a, soff, vt):
    a("s_mov_b64 exec, 1")
    a.vmem(f"buffer_store_dwordx2 {vr(vt,2)}, v{vt+2}, {WS}, s{soff} offen sc1", "flag")
    a("s_mov_b64 exec, -1")

def zero_qpad(a, q):
    a(f"""
    v_cndmask_b32 v{q}, v{q}, 0, s[{MA}:{MA+1}]
    v_cndmask_b32 v{q+1}, v{q+1}, 0, s[{MA}:{MA+1}]
    v_cndmask_b32 v{q+6}, v{q+6}, 0, s[{MB}:{MB+1}]
    v_cndmask_b32 v{q+7}, v{q+7}, 0, s[{MB}:{MB+1}]
    """)

def finish_O(a, o, tmp, soff, sanitize, mid=None):
    x, y, r, ra, rb, pk = tmp, tmp + 1, tmp + 2, tmp + 4, tmp + 6, tmp + 8
    a(f"""
    v_cndmask_b32 v{x}, v{o+12}, v{o}, s[{MODD}:{MODD+1}]
    v_cndmask_b32 v{y}, v{o+12}, v{o}, s[{MODD}:{MODD+1}]
    """)
    if mid: mid()
    else: a("s_nop 1")
    a(f"""
    v_permlane32_swap_b32 v{x}, v{y}
    v_cndmask_b32 v{x}, v{y}, v{x}, s[{MODD}:{MODD+1}]
    v_rcp_f32 v{r}, v{x}
    s_nop 0
    v_cndmask_b32 v{ra}, v{r}, 0, s[{MA}:{MA+1}]
    v_cndmask_b32 v{rb}, v{r}, 0, s[{MB}:{MB+1}]
    """)
    for hf in range(2):
        for g in range(2 * hf, 2 * hf + 2):
            m = ra if g == 0 else rb if g == 3 else r
            for j in range(2):
                d = o + 4 * g + 2 * j
                a(f"v_pk_mul_f32 {vr(d,2)}, {vr(d,2)}, {vr(m,2)} op_sel_hi:[1,0]")
        for k in range(4 * hf, 4 * hf + 4):
            a(f"v_cvt_pk_bf16_f32 v{pk+k}, v{o+2*k}, v{o+2*k+1}")
            if sanitize: a(f"v_min_u32 v{pk+k}, -2, v{pk+k}")
        a.vmem(f"buffer_store_dwordx4 {vr(pk+4*hf,4)}, v6, {WS}, s{soff} offen offset:{1024*hf} sc1", "ost")

def w_frag_addr(a, dst, half_expr):
    a(f"""
    v_lshrrev_b32 v7, 5, v0
    v_bfe_u32 v4, v0, 2, 2
    v_lshl_add_u32 v{dst}, v7, 3, v4
    v_lshlrev_b32 v{dst}, 7, v{dst}
    v_lshrrev_b32 v4, 1, v4
    v_xor_b32 v4, {half_expr}, v4
    v_lshl_add_u32 v{dst}, v4, 6, v{dst}
    v_bfe_u32 v4, v0, 4, 1
    v_lshl_add_u32 v{dst}, v4, 5, v{dst}
    v_and_b32 v4, 1, v0
    v_lshl_add_u32 v{dst}, v4, 4, v{dst}
    v_bfe_u32 v4, v0, 1, 1
    v_lshl_add_u32 v{dst}, v4, 3, v{dst}
    """)

GO, NV = 136, 160
def gemm_store(a, m):
    L = a.lab("gs")
    a(f"""
    s_cmp_gt_u32 s55, {m}
    s_cbranch_scc1 {L}
    buffer_store_dwordx4 {vr(GO+8*m,4)}, v13, {WS}, s53 offen sc1
    buffer_store_dwordx4 {vr(GO+8*m+4,4)}, v14, {WS}, s53 offen sc1
    {L}:
    s_add_u32 s53, s53, s57
    """)
    if m == 2: nonce_load(a, NV)
def gemm_publish(a):
    L = a.lab("gp")
    trace(a, 46)
    a("s_waitcnt vmcnt(0)")
    trace(a, 47)
    nonce_get(a, NV)
    a(f"s_cmp_eq_u32 s55, 3\ns_cbranch_scc1 {L}")
    put_flag(a, 59, NV)
    a(f"{L}:")
def ones_pads(a):
    a(f"""
    v_and_b32 v7, 3, v0
    v_cmp_eq_u32 vcc, 0, v7
    v_mov_b32 v12, {hex(ONES)}
    s_lshl_b32 s51, s{S_W4}, 12
    v_cndmask_b32 v8, 0, v12, vcc
    s_cmp_eq_u32 s{S_ODD}, 0
    s_cselect_b32 s60, {28*16}, 0
    s_add_u32 s51, s51, s60
    s_add_u32 s51, s51, {L_RING + 2048}
    v_mov_b32 v9, v8
    v_mov_b32 v10, v8
    v_mov_b32 v11, v8
    v_lshl_add_u32 v7, v7, 4, s51
    v_bfe_u32 v12, v0, 2, 2
    v_lshl_add_u32 v7, v12, 9, v7
    v_lshrrev_b32 v12, 4, v0
    v_lshl_add_u32 v7, v12, 14, v7
    v_add_u32 v12, 0x10000, v7
    ds_write_b128 v7, v[8:11]
    s_mov_b32 exec_hi, 0
    ds_write_b128 v12, v[8:11]
    s_mov_b32 exec_hi, -1
    """)

def gemm_compute(a):
    ACC, FR = 88, 24
    a("s_waitcnt lgkmcnt(0)")
    PF = X("IDLEPF", 0)
    if PF:
        srd(a, SRD_XA, P + 0, 1835008); srd(a, SRD_WA, P + 2, 448 * 2688)
        srd(a, SRD_WOA, P + 4, 448 * 896); srd(a, SRD_WOB, P + 10, 448 * 896)
        a(f"""
        s_cmp_eq_u32 s{S_ACT}, 0
        s_cbranch_scc0 L_nipf
        s_and_b32 s51, s2, 7
        s_lshr_b32 s52, s2, 3
        s_sub_u32 s52, 31, s52
        s_add_u32 s51, s51, s52
        s_lshl_b32 s51, s51, 3
        s_add_u32 s51, s51, s3
        s_lshl_b32 s51, s51, 13
        v_lshlrev_b32 v7, 7, v0
        buffer_load_dword v16, v7, {sr(SRD_WA)}, s51 offen
        buffer_load_dword v17, v7, {sr(SRD_XA)}, s51 offen
        """)
        if PF >= 3: a(f"s_add_u32 s52, s51, {112*8192}\nbuffer_load_dword v18, v7, {sr(SRD_WA)}, s52 offen\nbuffer_load_dword v19, v7, {sr(SRD_XA)}, s52 offen")
        if PF >= 2: a(f"s_lshr_b32 s52, s51, 1\ns_mov_b32 exec_hi, 0\nbuffer_load_dword v20, v7, {sr(SRD_WOB)}, s52 offen\nbuffer_load_dword v21, v7, {sr(SRD_WOA)}, s52 offen\ns_mov_b32 exec_hi, -1")
        a("s_waitcnt vmcnt(0)\nL_nipf:")
    common_srds(a)
    setup2(a); norm_masks(a)
    a(f"v_mov_b32 v{NV+2}, 0")
    if X("TLBW", 1):
        st = X("TLBS", 18)
        srd(a, SRD_WOA, P + 4, 448 * 896); srd(a, SRD_WOB, P + 10, 448 * 896)
        a(f"""
        s_cmp_eq_u32 s3, 5
        s_cbranch_scc0 L_notl
        v_lshlrev_b32 v7, {st}, v0
        s_lshl_b32 s51, s2, 7
        s_add_u32 s51, s51, 64
        buffer_load_dword v{GO+4}, v7, {WS}, s51 offen
        s_mul_i32 s51, s{S_RB2}, {64*1792}
        s_lshl_b32 s52, s{S_CB2}, 7
        s_add_u32 s51, s51, s52
        v_mul_u32_u24 v8, {32*1792}, v2
        buffer_load_dword v{GO+5}, v8, {sr(SRD_OUT)}, s51 offen
        buffer_load_dword v{GO+6}, v7, {sr(SRD_WOA)}, s52 offen
        buffer_load_dword v{GO+7}, v7, {sr(SRD_WOB)}, s52 offen
        L_notl:
        """)
    if X("CODEPF", 1):
        a(f"""
        s_cmp_eq_u32 s3, 4
        s_cbranch_scc0 L_nopf
        s_getpc_b64 s[52:53]
        L_pc:
        s_lshr_b32 s51, s2, 3
        s_lshl_b32 s51, s51, 10
        v_add_u32 v7, s51, v6
        s_sub_u32 s52, s52, L_pc - L_begin
        s_subb_u32 s53, s53, 0
        v_cmp_gt_u32 vcc, L_codeend - L_begin - 12, v7
        s_nop 0
        s_and_saveexec_b64 s[54:55], vcc
        s_cbranch_execz L_pfe
        global_load_dwordx4 v[{GO}:{GO+3}], v7, s[52:53]
        L_pfe:
        s_mov_b64 exec, -1
        L_nopf:
        """)
    a(f"""
    s_cmp_eq_u32 s{S_ACT}, 0
    s_cbranch_scc1 L_gidle
    v_lshrrev_b32 v4, 1, v1
    v_and_b32 v4, 7, v4
    v_xor_b32 v4, v4, v2
    v_lshlrev_b32 v4, 4, v4
    v_lshl_add_u32 v8, v1, 7, v4
    v_xor_b32 v9, 32, v8
    v_xor_b32 v10, 64, v8
    v_xor_b32 v11, 96, v8
    s_and_b32 s51, s3, 1
    """)
    w_frag_addr(a, 12, "s51")
    a(f"""
    s_bfe_u32 s51, s3, 0x10001
    s_lshl_b32 s51, s51, 13
    s_add_u32 s51, s51, 12288
    v_add_u32 v12, s51, v12
    s_add_u32 s51, s{S_COL}, s{S_W4}
    s_cmp_eq_u32 s{S_RB}, 21
    s_cselect_b32 s55, 2, 0
    s_cmp_eq_u32 s{S_CB}, 10
    s_cselect_b32 s56, 2, 0
    s_cmp_lt_u32 s{S_W4}, s56
    s_cselect_b32 s55, 3, s55
    s_lshr_b32 s57, s{S_ROW}, 5
    s_cmp_ge_u32 s3, 4
    s_cselect_b32 s58, {3*SEC}, 0
    s_cselect_b32 s59, {FA - FB}, 0
    s_cselect_b32 s52, {(7 % GNS) * GSLOT}, 0
    s_add_u32 s59, s59, {FB}
    s_lshl_b32 s60, s51, 12
    s_add_u32 s59, s59, s60
    s_lshl_b32 s60, s{S_RB}, 7
    s_add_u32 s59, s59, s60
    """)
    a(f"v_mov_b32 v{ACC}, 0\nv_mov_b32 v{ACC+1}, 0")
    for r in range(2, 48, 2): a(f"v_pk_mov_b32 {vr(ACC+r,2)}, {vr(ACC,2)}, {vr(ACC,2)}")
    a("s_cmp_ge_u32 s51, 28\ns_cbranch_scc1 L_gV")
    def addr_list():
        return [f"v_add_u32 v{16+i}, s52, v{8+i}" for i in range(5)] + [f"s_add_u32 s52, s52, {GSLOT}", f"s_cmp_ge_u32 s52, {GSLOT*GNS}", "s_cselect_b32 s52, 0, s52"]
    def addrs():
        for x in addr_list(): a(x)
    def read_list(ks):
        f = FR + 16 * ks
        return [f"ds_read_b64_tr_b16 {vr(f+12, 2)}, v20 offset:{ks*2048}", f"ds_read_b64_tr_b16 {vr(f+14, 2)}, v20 offset:{ks*2048+512}"] + \
               [f"ds_read_b128 {vr(f + 4*m, 4)}, v{16+ks} offset:{m*4096}" for m in range(3)]
    def reads(ks):
        for x in read_list(ks): a(x)
    for var in ("QK", "V"):
        t = f"L_g{var}"
        a(f"{t}:")
        if var == "QK":
            a(f"""
            v_mov_b32 v13, v6
            v_add_u32 v14, 1024, v6
            s_cmp_ge_u32 s51, 14
            s_cselect_b32 s53, {SEC - 14*2048}, 0
            s_cselect_b32 s54, 1.0, {hex(f2u(QSCALE))}
            s_lshl_b32 s60, s51, 11
            s_add_u32 s53, s53, s60
            s_mul_i32 s60, s57, 28672
            s_add_u32 s53, s53, s60
            s_mov_b32 s57, 28672
            v_mov_b32 v22, s54
            """)
        else:
            a(f"""
            v_and_b32 v4, 31, v3
            s_sub_u32 s60, s51, 28
            s_lshl_b32 s60, s60, 5
            v_add_u32 v4, s60, v4
            v_mul_u32_u24 v7, 2341, v4
            v_lshrrev_b32 v7, 16, v7
            v_mul_u32_u24 v13, 28, v7
            v_sub_u32 v4, v4, v13
            v_mul_u32_u24 v7, {64*1792}, v7
            v_lshl_add_u32 v13, v4, 4, v7
            v_mul_u32_u24 v4, 448, v2
            v_add_u32 v13, v13, v4
            v_add_u32 v14, 896, v13
            s_mul_i32 s53, s57, 1792
            s_add_u32 s53, s53, {2*SEC}
            s_mov_b32 s57, 1792
            v_mov_b32 v22, {hex(f2u(2.0**VS))}
            """)
        a(f"s_add_u32 s53, s53, s58")
        addrs()
        a(f"s_cmp_ge_u32 s3, 4\ns_cbranch_scc0 {t}_go")
        for i in range(7): a("s_barrier")
        a(f"s_waitcnt vmcnt(0)\n{t}_go:\ns_barrier")
        def mf(ks, fill=((), (), ())):
            f = FR + 16 * ks
            for m in range(3):
                x, w, d = vr(f + 4*m, 4), vr(f + 12, 4), vr(ACC + 16*m, 16)
                if var == "QK": a(f"v_mfma_f32_32x32x16_bf16 {d}, {w}, {x}, {d}")
                else: a(f"v_mfma_f32_32x32x16_bf16 {d}, {x}, {w}, {d}")
                for y in fill[m]: a(y)
        def spread(ks):
            r = read_list(ks); return (r[0:2], r[2:4], r[4:5])
        reads(0); reads(1)
        a(f"s_mov_b32 s56, 6\n{t}_chunk:")
        a("s_waitcnt lgkmcnt(5)"); mf(0, spread(2))
        r3 = read_list(3)
        a("s_waitcnt lgkmcnt(5)"); mf(1, (r3[0:3], r3[3:5], ["s_cmp_eq_u32 s56, 0", f"s_cbranch_scc1 {t}_last"]))
        al = addr_list()
        a("s_waitcnt lgkmcnt(5)")
        mf(2, (al[0:5], al[5:8] + ["s_sub_u32 s56, s56, 1", "s_waitcnt lgkmcnt(0)", "s_barrier"], read_list(0)[0:3]))
        r0, r1 = read_list(0), read_list(1)
        mf(3, (r0[3:5], r1[0:3], r1[3:5]))
        a(f"s_branch {t}_chunk\n{t}_last:\ns_waitcnt lgkmcnt(0)")
        if X("A0EARLY", 0):
            a("s_barrier")
            stamp(a, 2)
        else:
            if not X("G7LATE", 1): a(f"s_cmp_ge_u32 s3, 4\ns_cbranch_scc1 {t}_nb0\ns_barrier\n{t}_nb0:")
        for m in range(3):
            for ks in (2, 3):
                f = FR + 16 * ks
                x, w, d = vr(f + 4*m, 4), vr(f + 12, 4), vr(ACC + 16*m, 16)
                if var == "QK": a(f"v_mfma_f32_32x32x16_bf16 {d}, {w}, {x}, {d}")
                else: a(f"v_mfma_f32_32x32x16_bf16 {d}, {x}, {w}, {d}")
        a("s_nop 6\ns_branch L_gcvt" if var == "QK" else "s_nop 7")
    a("L_gcvt:")
    trace(a, 44)
    for m in range(3):
        a(f"s_cmp_ge_u32 s3, 4\ns_cbranch_scc1 L_gnm{m}")
        for r in range(16*m, 16*m+16, 2): a(f"v_pk_mul_f32 {vr(ACC+r,2)}, {vr(ACC+r,2)}, v[22:23] op_sel_hi:[1,0]")
        a(f"L_gnm{m}:")
        for r in range(8*m, 8*m+8): a(f"v_cvt_pk_bf16_f32 v{GO+r}, v{ACC+2*r}, v{ACC+2*r+1}")
        a(f"s_cmp_ge_u32 s3, 4\ns_cbranch_scc1 {'L_att' if m == 2 else 'L_gns%d' % m}")
        gemm_store(a, m)
        a(f"L_gns{m}:")
    trace(a, 45)
    PUB = X("PUB", 7)
    if X("G7LATE", 1): a("s_barrier")
    for g in range(8, 14):
        if g == 8 and PUB == 7: gemm_publish(a)
        if g == 13: trace(a, 49); ones_pads(a); trace(a, 50)
        a("s_barrier")
        if g == PUB: gemm_publish(a)
    stamp(a, 1)
    a("s_branch L_att")
    a(f"""
    L_gidle:
    s_mov_b32 s55, 3
    v_mov_b32 v13, 0
    v_mov_b32 v14, 0
    s_barrier
    s_cmp_ge_u32 s3, 4
    s_cbranch_scc1 L_gidle1
    """)
    ones_pads(a)
    a("s_branch L_att\nL_gidle1:")
    if X("A0EARLY", 0): a("s_barrier"); stamp(a, 2)

S0, S1, O_, CM, QF, KF, V0, V1, IDX, AD0, AD1, PART = 16, 32, 48, 64, 80, 88, 96, 100, 104, 105, 106, 108
def attn_compute(a):
    a(f"""
    L_att:
    v_mov_b32 v{IDX}, 0xdddddddd
    s_lshr_b32 s51, s3, 2
    s_lshl_b32 s51, s51, 13
    s_add_u32 s51, s51, {L_RING}
    v_add_u32 v{AD0}, s51, v5
    v_add_u32 v{AD1}, 0x10000, v{AD0}
    s_lshl_b32 s51, s{S_W4}, 11
    s_add_u32 s51, s51, {L_Q}
    v_add_u32 v8, s51, v6
    """)
    def rd(dst, n, frag):
        st, u = n >> 1, n & 1
        off = slot_addr(st) - L_RING + u * 4096 + frag * 1024
        if X("HALFRD") and n % 2 == 1 and 1 < n < 30:
            if frag == 0 and X("HALFRD") == 1: a("s_nop 1")
            return
        a(f"ds_read_b128 {vr(dst,4)}, v{AD0 if off < 65536 else AD1} offset:{off & 0xffff}")
    def misc_init():
        a(f"v_mov_b32 v{O_}, 0\nv_mov_b32 v{O_+1}, 0")
        for r in range(2, 16, 2): a(f"v_pk_mov_b32 {vr(O_+r,2)}, {vr(O_,2)}, {vr(O_,2)}")
        a(f"""
        s_lshl_b32 s51, s{S_W4}, 12
        s_add_u32 s51, s51, {L_COMB}
        v_add_u32 v107, s51, v6
        s_lshl_b32 s51, s{S_W4}, 8
        v_lshl_add_u32 v9, v0, 2, s51
        """)
    if X("A0EARLY", 0): a("s_cmp_ge_u32 s3, 4\ns_cbranch_scc1 L_att0")
    misc_init()
    if X("ASTORE", 6) in (7, 8):
        a("s_cmp_ge_u32 s3, 4\ns_cbranch_scc0 L_att00")
        for m in range(3 if X("ASTORE", 6) == 7 else 1): gemm_store(a, m)
        a("L_att00:")
    a("s_waitcnt lgkmcnt(0)\ns_barrier\nL_att0:")
    if not X("A0EARLY", 0): stamp(a, 2)
    trace(a, 51)
    a(f"""
    ds_read_b128 {vr(QF,4)}, v8
    ds_read_b128 {vr(QF+4,4)}, v8 offset:1024
    """)
    rd(KF, 0, 0); rd(KF + 4, 0, 1); rd(V0, 0, 2)
    a("s_waitcnt lgkmcnt(3)")
    zero_qpad(a, QF)
    a(f"""
    s_waitcnt lgkmcnt(1)
    s_nop 0
    v_mfma_f32_32x32x16_bf16 {vr(S0,16)}, {vr(KF,4)}, {vr(QF,4)}, 0
    v_mfma_f32_32x32x16_bf16 {vr(S0,16)}, {vr(KF+4,4)}, {vr(QF+4,4)}, {vr(S0,16)}
    """)
    rd(KF, 1, 0); rd(KF + 4, 1, 1)
    a(f"""
    s_cmp_ge_u32 s3, 4
    s_cbranch_scc1 L_g1m
    s_nop 7
    v_max3_f32 v7, v{S0}, v{S0+1}, v{S0+2}
    v_max3_f32 v8, v{S0+3}, v{S0+4}, v{S0+5}
    v_max3_f32 v7, v7, v{S0+6}, v{S0+7}
    v_max3_f32 v8, v8, v{S0+8}, v{S0+9}
    v_max3_f32 v7, v7, v{S0+10}, v{S0+11}
    v_max3_f32 v8, v8, v{S0+12}, v{S0+13}
    v_max3_f32 v7, v7, v{S0+14}, v{S0+15}
    v_max_f32 v7, v7, v8
    v_mov_b32 v8, v7
    s_nop 1
    v_permlane32_swap_b32 v7, v8
    v_max_f32 v7, v7, v8
    v_sub_f32 v{CM}, {hex(f2u(-float(X("BIAS", 104))))}, v7
    ds_write_b32 v9, v{CM}
    s_branch L_havem
    L_g1m:
    """)
    if X("A0EARLY", 0): misc_init()
    else: a("s_setprio 3")
    if X("ASTORE", 6) == 6:
        for m in range(3): gemm_store(a, m)
    if X("ASTORE", 6) == 8:
        for m in range(1, 3): gemm_store(a, m)
    if X("ASTORE", 6) == 9:
        for m in range(2): gemm_store(a, m)
    trace(a, 52)
    a(f"""
    s_barrier
    ds_read_b32 v{CM}, v9
    s_waitcnt lgkmcnt(0)
    L_havem:
    v_mov_b32 v{CM+1}, v{CM}
    """)
    trace(a, 53)
    for r in range(0, 16, 2): a(f"v_pk_add_f32 {vr(S0+r,2)}, {vr(S0+r,2)}, {vr(CM,2)}")
    for r in range(2, 16, 2): a(f"v_pk_mov_b32 {vr(CM+r,2)}, {vr(CM,2)}, {vr(CM,2)}")
    def step(n, grp=None):
        Sc = S0 if n % 2 == 0 else S1
        Sn = S1 if n % 2 == 0 else S0
        def ex(lo, hi):
            for r in range(lo, hi): a(f"v_exp_f32 v{Sc+r}, v{Sc+r}")
        last = n == 31
        PR = X("PRIO", 1)
        if PR == 1 and 0 < n < 29: a(f"s_setprio {[0, 2, 1, 0][n % 4] if X('PTOP', 2) == 2 else [0, 3, 2, 1][n % 4]}")
        ex(0, 2)
        if n > 0:
            a(f"s_waitcnt lgkmcnt({1 if last else 3})")
            a(f"v_smfmac_f32_32x32x32_bf16 {vr(O_,16)}, {vr(V1,4)}, {vr(Sn+8,8)}, v{IDX}")
        rd(V1, n, 3)
        nk = 0
        if last and grp == 1:
            trace(a, 61)
            a("s_barrier")
            trace(a, 62)
            for i in range(4): a(f"ds_read_b128 {vr(PART+4*i,4)}, v107 offset:{i*1024}")
            nk = 4
        ex(2, 5)
        if not last:
            a(f"s_waitcnt lgkmcnt({2 if n > 0 else 1})")
            a(f"v_mfma_f32_32x32x16_bf16 {vr(Sn,16)}, {vr(KF,4)}, {vr(QF,4)}, {vr(CM,16)}")
        ex(5, 8)
        if not last:
            a(f"v_mfma_f32_32x32x16_bf16 {vr(Sn,16)}, {vr(KF+4,4)}, {vr(QF+4,4)}, {vr(Sn,16)}")
        if n + 2 < 32:
            if n in (0, 1, 2, 3, 4, 28, 29): trace(a, {0: 54, 1: 55, 2: 56, 3: 57, 4: 58, 28: 59, 29: 60}[n])
            if n in ABAR:
                if n == 0: a("s_cmp_ge_u32 s3, 4\ns_cbranch_scc1 L_nb0\ns_barrier\nL_nb0:")
                else: a("s_barrier")
                if PR == 1 and n < 28: a(f"s_setprio {X('PTOP', 2)}")
                if n == 28 and X("ENDP", 0): a("s_cmp_ge_u32 s3, 4\ns_cbranch_scc1 L_ep\ns_setprio 2\nL_ep:")
            rd(KF, n + 2, 0); rd(KF + 4, n + 2, 1); nk = 2
        ex(8, 12)
        a(f"s_waitcnt lgkmcnt({1 + nk})")
        a(f"v_smfmac_f32_32x32x32_bf16 {vr(O_,16)}, {vr(V0,4)}, {vr(Sc,8)}, v{IDX}")
        if not last: rd(V0, n + 1, 2)
        if n == 30: a("s_nop 1")
        AS = {0: {2: [0, 1], 3: [2]}, 1: {1: [0], 2: [1], 3: [2]}, 2: {3: [0, 1, 2]}, 3: {2: [0, 1, 2]}, 4: {0: [0, 1, 2]}, 5: {0: [0, 1], 1: [2]}, 6: {}, 7: {}, 8: {}, 9: {4: [2]}}[X("ASTORE", 6)]
        if n in AS or n == X("APUB", 5):
            L = a.lab("g1")
            a(f"s_cmp_ge_u32 s3, 4\ns_cbranch_scc0 {L}")
            if n in AS:
                for m in AS[n]: gemm_store(a, m)
            else: gemm_publish(a)
            a(f"{L}:")
        ex(12, 16)
        if last:
            a("s_waitcnt lgkmcnt(0)")
            a("s_barrier" if grp == 1 else "s_nop 0")
            a(f"v_smfmac_f32_32x32x32_bf16 {vr(O_,16)}, {vr(V1,4)}, {vr(S1+8,8)}, v{IDX}")
    for n in range(31): step(n)
    a("s_cmp_ge_u32 s3, 4\ns_cbranch_scc0 L_g0last")
    step(31, 1)
    stamp(a, 3); trace(a, 112)
    a(f"""
    s_lshl_b32 s51, s{S_QB}, 2
    s_add_u32 s51, s51, s{S_W4}
    s_lshl_b32 s51, s51, 4
    s_add_u32 s51, s51, s{S_HD}
    s_lshl_b32 s51, s51, 11
    s_add_u32 s51, s51, {OB}
    s_mov_b32 s62, {hex(f2u(2.0**-90))}
    s_nop 4
    """)
    for r in range(0, 16, 2): a(f"v_pk_add_f32 {vr(O_+r,2)}, {vr(O_+r,2)}, {vr(PART+r,2)}")
    def guard():
        a(f"v_maximum3_f32 v8, |v{O_+4}|, |v{O_+5}|, |v{O_+6}|")
        a(f"v_maximum3_f32 v9, |v{O_}|, |v{O_+1}|, |v{O_+2}|")
        a(f"v_maximum3_f32 v8, v8, |v{O_+7}|, |v{O_+8}|")
        a(f"v_maximum3_f32 v9, v9, |v{O_+3}|, |v{O_+12}|")
        a(f"v_maximum3_f32 v8, v8, |v{O_+9}|, |v{O_+10}|")
        a(f"v_maximum3_f32 v9, v9, |v{O_+13}|, |v{O_+14}|")
        a(f"v_maximum3_f32 v9, v9, |v{O_+15}|, |v{O_+11}|")
        a(f"v_cmp_gt_f32 s[60:61], s62, v8")
        a(f"v_maximum3_f32 v9, v9, v8, v8")
        a(f"v_cmp_ngt_f32 vcc, {'-1.0' if X('FORCEFB') else hex(f2u(2.0**120))}, v9\ns_nop 0\ns_or_b64 vcc, vcc, s[60:61]\ns_cbranch_scc1 L_fallback")
    a.vm_reset()
    finish_O(a, O_, S1, 51, False, mid=guard)
    trace(a, 114)
    if TRACE: a("s_waitcnt vmcnt(0)")
    trace(a, 115)
    a("s_branch L_end")
    a("L_g0last:")
    step(31, 0)
    trace(a, 112)
    oproj_params(a, "B")
    a("s_nop 1")
    for i in range(4): a(f"ds_write_b128 v107, {vr(O_+4*i,4)} offset:{i*1024}")
    a("s_waitcnt lgkmcnt(0)\ns_setprio 0\ns_barrier")
    a(f"s_barrier\ns_cmp_eq_u32 s{S_ACT2}, 0\ns_cbranch_scc1 L_end")
    trace(a, 113)
    if X("SENT", 0) == 2:
        fl = os.environ.get("SFLAG", "sc1").replace("_", " ")
        ld = f"buffer_load_dword v8, v9, {WS}, s52 offen offset:2044 {fl}" if fl != "atomic" else f"v_mov_b32 v8, 0\nbuffer_atomic_or v8, v9, {WS}, s52 offen offset:2044 sc0 sc1"
        a(f"""
        s_sleep {X('SDELAY', 8)}
        v_lshlrev_b32 v9, 11, v0
        s_mov_b64 exec, 0xff
        {ld}
        s_mov_b64 exec, -1
        """)
        oproj_init(a)
        a(f"""
        s_mov_b32 s63, 0
        s_mov_b64 exec, 0xff
        L_sp:
        s_waitcnt vmcnt(0)
        v_cmp_eq_u32 vcc, -1, v8
        s_add_u32 s63, s63, 1
        s_cbranch_vccz L_spd
        s_cmp_ge_u32 s63, {SPIN_MAX}
        s_cbranch_scc1 L_spd
        s_mov_b64 exec, vcc
        s_sleep {X('OSLEEP', 1)}
        {ld}
        s_branch L_sp
        L_spd:
        s_mov_b64 exec, -1
        """)
        oproj_loads(a)
    elif X("SENT", 0):
        a(f"""
        v_min_u32 v7, 7, v0
        v_lshlrev_b32 v7, 11, v7
        s_sleep {X('SDELAY', 2)}
        buffer_load_dword v4, v7, {WS}, s52 offen offset:2044 sc1
        s_mov_b32 s60, 0
        s_brev_b32 s61, 1
        s_sleep {X('SDELAY2', 4)}
        s_waitcnt vmcnt(0)
        v_cmp_ne_u32 vcc, -1, v4
        """)
        oproj_init(a)
        for k in range(8): a(f"v_mov_b32 v{OF+8*k}, -1")
        for k in range(8):
            a(f"s_bitcmp1_b32 vcc_lo, {k}\ns_cselect_b64 exec, -1, s[60:61]")
            o_load(a, k)
        a("s_mov_b64 exec, -1")
    else:
        a(f"s_sleep {X('ODELAY', 24)}")
        oproj_init(a)
        T0 = X("TOUCH", 0)
        if T0:
            per = (128 - T0 + 6) // 7
            a(f"""
            v_mul_u32_u24 v8, 7, v0
            v_add_u32 v8, s{S_CB2}, v8
            v_add_u32 v8, {T0}, v8
            v_min_u32 v8, 127, v8
            v_lshlrev_b32 v8, 7, v8
            s_mov_b64 exec, {(1 << per) - 1}
            buffer_load_dword v9, v8, {WS}, s52 offen sc1
            s_mov_b64 exec, -1
            """)
        oproj_loads(a)
    a("s_branch L_oproj")
    fallback(a)

def fallback(a):
    a(f"""
    L_fallback:
    v_and_b32 v7, 31, v3
    s_lshl_b32 s54, s{S_ODD}, 2
    v_subrev_u32 v8, s54, v7
    v_cmp_gt_u32 s[60:61], 28, v8
    v_mul_u32_u24 v9, 448, v2
    v_lshl_add_u32 v8, v8, 4, v9
    v_add_u32 v8, 256, v8
    v_mov_b32 v7, 0xff800000
    s_add_u32 s54, s{S_P0}, {KB}
    s_mov_b32 s56, 64
    L_fb1:
    buffer_load_dwordx4 {vr(KF,4)}, v5, {WS}, s54 offen sc1
    buffer_load_dwordx4 {vr(KF+4,4)}, v5, {WS}, s54 offen offset:1024 sc1
    s_add_u32 s54, s54, 28672
    s_waitcnt vmcnt(0)
    v_mfma_f32_32x32x16_bf16 {vr(S0,16)}, {vr(KF,4)}, {vr(QF,4)}, 0
    v_mfma_f32_32x32x16_bf16 {vr(S0,16)}, {vr(KF+4,4)}, {vr(QF+4,4)}, {vr(S0,16)}
    s_nop 11
    """)
    for r in range(0, 16, 2): a(f"v_max3_f32 v7, v7, v{S0+r}, v{S0+r+1}")
    a(f"""
    s_sub_u32 s56, s56, 1
    s_cmp_lg_u32 s56, 0
    s_cbranch_scc1 L_fb1
    v_mov_b32 v9, v7
    s_nop 1
    v_permlane32_swap_b32 v7, v9
    v_max_f32 v7, v7, v9
    """)
    for r in range(16): a(f"v_sub_f32 v{CM+r}, 0, v7\nv_mov_b32 v{O_+r}, 0")
    for r in range(8): a(f"v_mov_b32 v{V0+r}, {hex(ONES)}")
    a(f"""
    s_add_u32 s54, s{S_P0}, {KB}
    s_mul_i32 s57, s{S_HD}, {64*1792}
    s_add_u32 s57, s57, {VB - 256}
    s_mov_b32 s56, 64
    L_fb2:
    buffer_load_dwordx4 {vr(KF,4)}, v5, {WS}, s54 offen sc1
    buffer_load_dwordx4 {vr(KF+4,4)}, v5, {WS}, s54 offen offset:1024 sc1
    s_mov_b64 exec, s[60:61]
    buffer_load_dwordx4 {vr(V0,4)}, v8, {WS}, s57 offen sc1
    buffer_load_dwordx4 {vr(V1,4)}, v8, {WS}, s57 offen offset:896 sc1
    s_mov_b64 exec, -1
    s_add_u32 s54, s54, 28672
    s_add_u32 s57, s57, 1792
    s_waitcnt vmcnt(0)
    v_mfma_f32_32x32x16_bf16 {vr(S0,16)}, {vr(KF,4)}, {vr(QF,4)}, {vr(CM,16)}
    v_mfma_f32_32x32x16_bf16 {vr(S0,16)}, {vr(KF+4,4)}, {vr(QF+4,4)}, {vr(S0,16)}
    s_nop 11
    """)
    for r in range(16): a(f"v_exp_f32 v{S0+r}, v{S0+r}")
    a(f"""
    s_nop 1
    v_smfmac_f32_32x32x32_bf16 {vr(O_,16)}, {vr(V0,4)}, {vr(S0,8)}, v{IDX}
    v_smfmac_f32_32x32x32_bf16 {vr(O_,16)}, {vr(V1,4)}, {vr(S0+8,8)}, v{IDX}
    s_sub_u32 s56, s56, 1
    s_cmp_lg_u32 s56, 0
    s_nop 7
    s_cbranch_scc1 L_fb2
    s_nop 7
    """)
    finish_O(a, O_, S1, 51, True)
    a("s_branch L_end")

OF, OACC, OW, OAD = 16, 80, 112, 144
def oproj_params(a, br):
    Ob, LW, red, fl, oo = (OA, L_WOA, L_RED, 0, 0) if br == "A" else (OB, L_WOB, L_COMB, 16, 896)
    a(f"""
    s_and_b32 s55, s{S_W4}, 1
    s_lshl_b32 s52, s{S_RB2}, 1
    s_add_u32 s55, s55, s52
    s_lshr_b32 s51, s{S_W4}, 1
    s_lshl_b32 s52, s55, 15
    s_lshl_b32 s53, s51, 14
    s_add_u32 s52, s52, s53
    s_add_u32 s52, s52, {Ob}
    s_mul_i32 s55, s55, {32*1792}
    s_lshl_b32 s53, s{S_CB2}, 7
    s_add_u32 s55, s55, s53
    s_lshl_b32 s53, s51, 6
    s_add_u32 s55, s55, s53
    s_add_u32 s55, s55, {oo}
    s_lshl_b32 s53, s{S_W4}, 12
    s_xor_b32 s54, s53, 0x2000
    s_add_u32 s53, s53, {red}
    s_add_u32 s54, s54, {red}
    s_mul_i32 s57, s51, {224*128}
    s_add_u32 s57, s57, {LW}
    s_lshl_b32 s58, s{S_W4}, 2
    s_add_u32 s58, s58, {L_SYNC + fl}
    """)
def oproj_init(a):
    w_frag_addr(a, OAD, "0")
    a(f"""
    v_add_u32 v{OAD}, s57, v{OAD}
    v_xor_b32 v{OAD+1}, 64, v{OAD}
    v_add_u32 v{OAD+2}, s53, v6
    v_add_u32 v{OAD+3}, s54, v6
    v_mov_b32 v{OAD+4}, s58
    v_xor_b32 v{OAD+5}, 8, v{OAD+4}
    v_mov_b32 v{OAD+6}, 1
    v_mul_u32_u24 v{OAD+7}, 1792, v1
    v_lshl_add_u32 v{OAD+7}, v2, 4, v{OAD+7}
    v_add_u32 v{OAD+8}, 0x1000, v6
    v_add_u32 v{OAD+9}, 0x2000, v6
    v_add_u32 v{OAD+10}, 0x3000, v6
    """)
def o_load(a, k):
    for s in range(2):
        f = 2 * k + s
        va = 6 if f < 4 else OAD + 7 + f // 4
        a.vmem(f"buffer_load_dwordx4 {vr(OF+4*f,4)}, v{va}, {WS}, s52 offen offset:{(f&3)*1024} sc1", f"of{k}")
def oproj_loads(a):
    for k in range(8): o_load(a, k)
def oproj_main(a):
    a("L_oproj:")
    if X("TSTAMP"): stamp(a, 2)
    trace(a, 114)
    NB = 4
    def wlist(j):
        if j >= 16: return []
        k, st = j >> 1, j & 1
        row = 28 * k - 4 * (k & 1) + 16 * st
        r = []
        for n in range(2):
            f = OW + 8 * (j % NB) + 4 * n
            r.append(f"ds_read_b64_tr_b16 {vr(f,2)}, v{OAD+n} offset:{row*128}")
            r.append(f"ds_read_b64_tr_b16 {vr(f+2,2)}, v{OAD+n} offset:{row*128+512}")
        return r
    def clist(k):
        o = OF + 8 * k
        return [f"v_max3_u32 v7, v{o}, v{o+1}, v{o+2}", f"v_max3_u32 v4, v{o+3}, v{o+4}, v{o+5}", f"v_max3_u32 v7, v7, v{o+6}, v{o+7}",
                "v_max_u32 v7, v7, v4", "v_cmp_eq_u32 vcc, -1, v7"]
    def check(k):
        for x in clist(k): a(x)
    for j in range(NB - 1):
        for x in wlist(j): a(x)
    a("s_mov_b32 s63, 0\ns_movk_i32 s56, 0\ns_waitcnt vmcnt(14)")
    check(0)
    a("s_waitcnt lgkmcnt(8)")
    for j in range(16):
        k = j >> 1
        if j % 2 == 0: a(f"s_cbranch_vccnz L_oretry\nL_ob{k}:")
        w = wlist(j + NB - 1)
        nxt = min(j + NB - 1, 15) - (j + 1)
        fills = [w[0:2], w[2:4]]
        if j % 2 == 1 and k < 7:
            c = clist(k + 1)
            fills = [w[0:4] + [f"s_waitcnt vmcnt({12 - 2*k})"], c + [f"s_movk_i32 s56, {k+1}"]]
        if j < 15: fills[1] = fills[1] + [f"s_waitcnt lgkmcnt({4*nxt})"]
        for n in range(2):
            d = vr(OACC + 16 * n, 16)
            a(f"v_mfma_f32_32x32x16_bf16 {d}, {vr(OW+8*(j%NB)+4*n,4)}, {vr(OF+4*j,4)}, {d if j else 0}")
            for x in fills[n]: a(x)
    a("s_branch L_odone")
    a(f"L_oretry:\ns_mov_b32 s60, 0\ns_brev_b32 s61, 1\ns_waitcnt vmcnt(0)\nL_ore2:\ns_mov_b32 s59, 0")
    for k in range(8):
        a(f"s_cmp_gt_u32 s56, {k}\ns_cbranch_scc1 L_o2_{k}")
        check(k)
        a(f"s_nop 0\ns_cbranch_vccz L_o2_{k}\ns_bitset1_b32 s59, {k}")
        if X("RGATE", 0):
            a(f"v_readlane_b32 s62, v{OF+8*k+7}, 63\ns_nop 0\ns_cmp_lg_u32 s62, -1\ns_cselect_b64 exec, -1, s[60:61]")
        o_load(a, k)
        if X("RGATE", 0): a("s_mov_b64 exec, -1")
        a(f"L_o2_{k}:")
    a(f"""
    s_add_u32 s63, s63, 1
    s_waitcnt vmcnt(0)
    s_cmp_ge_u32 s63, {SPIN_MAX}
    s_cbranch_scc1 L_oret
    s_bitcmp1_b32 s59, s56
    s_cbranch_scc0 L_oret
    """)
    for k in range(8):
        a(f"s_cmp_eq_u32 s56, {k}\ns_cbranch_scc0 L_o4_{k}")
        check(k)
        a(f"s_nop 0\ns_cbranch_vccz L_ob{k}\ns_branch L_osl\nL_o4_{k}:")
    a("L_osl:")
    if X("OSLEEP", 1): a(f"s_sleep {X('OSLEEP', 1)}")
    a("s_branch L_ore2\nL_oret:")
    for k in range(7): a(f"s_cmp_eq_u32 s56, {k}\ns_cbranch_scc1 L_ob{k}")
    a("s_branch L_ob7\nL_odone:")
    if TRACE: a(f"v_writelane_b32 v166, s63, 63")
    trace(a, 116)
    if X("TSTAMP"): stamp(a, 3)
    a("s_cmp_eq_u32 s51, 0\ns_nop 7\ns_mov_b32 s63, 0\ns_cbranch_scc1 L_ok0")
    for var in (1, 0):
        keep, send = OACC + 16 * var, OACC + 16 * (1 - var)
        if var == 0: a("L_ok0:")
        for i in range(4): a(f"ds_write_b128 v{OAD+2}, {vr(send+4*i,4)} offset:{i*1024}")
        a(f"ds_write_b32 v{OAD+4}, v{OAD+6}\nL_ow{var}:\nds_read_b32 v7, v{OAD+5}")
        for i in range(4): a(f"ds_read_b128 {vr(OF+4*i,4)}, v{OAD+3} offset:{i*1024}")
        a(f"""
        s_add_u32 s63, s63, 1
        s_waitcnt lgkmcnt(4)
        v_cmp_eq_u32 vcc, 0, v7
        s_cmp_ge_u32 s63, {SPIN_MAX*8}
        s_cbranch_scc1 L_og{var}
        s_cbranch_vccnz L_ow{var}
        L_og{var}:
        """)
        for hf in range(2):
            a(f"s_waitcnt lgkmcnt({2 - 2*hf})")
            for r in range(8*hf, 8*hf+8, 2): a(f"v_pk_add_f32 {vr(keep+r,2)}, {vr(keep+r,2)}, {vr(OF+r,2)}")
            for r in range(4*hf, 4*hf+4): a(f"v_cvt_pk_bf16_f32 v{OF+16+r}, v{keep+2*r}, v{keep+2*r+1}")
            a(f"buffer_store_dwordx4 {vr(OF+16+4*hf,4)}, v{OAD+7}, {sr(SRD_OUT)}, s55 offen offset:{32*hf} {os.environ.get('OUTF', '')}")
        if var == 1: a("s_branch L_oe")
    a("L_oe:")
    if X("TSTAMP"): stamp(a, 1)
    trace(a, 117)
    if TRACE: a("s_waitcnt vmcnt(0)")
    trace(a, 118)

FL, SNV = 132, 158
VW, VVA, VVB, VR0, VR1 = 161, 162, 163, 164, 167
def qkv_flag_loads(a, F):
    vt = FL
    a(f"""
    s_lshr_b32 s51, s{S_P0}, 11
    s_add_u32 s52, s{S_P0}, 1536
    s_lshr_b32 s52, s52, 11
    s_sub_u32 s52, s52, s51
    s_lshl_b32 s52, s52, 12
    v_mul_u32_u24 v7, s52, v2
    s_lshl_b32 s51, s51, 12
    s_add_u32 s79, s51, {F}
    s_lshl_b32 s51, s{S_QB}, 2
    """)
    if F == FB: a("s_add_u32 s52, s51, 3")
    else: a(f"s_add_u32 s52, s51, s{S_W4}\ns_max_u32 s51, s52, 1\ns_sub_u32 s51, s51, 1")
    a(f"""
    s_mul_i32 s51, s51, 86
    s_lshr_b32 s51, s51, 8
    s_mul_i32 s52, s52, 86
    s_lshr_b32 s52, s52, 8
    v_max_u32 v4, s51, v1
    v_min_u32 v4, s52, v4
    v_lshl_add_u32 v{vt+7}, v4, 7, v7
    """)
    if F == FB: a(f"v_min_u32 v4, 21, v1")
    a(f"""
    v_lshl_add_u32 v{vt+6}, v4, 7, v7
    v_add_u32 v{vt+6}, {14*4096}, v{vt+6}
    s_add_u32 s80, s79, {14*4096}
    """)
    a.vmem(f"buffer_load_dwordx2 {vr(vt,2)}, v{vt+7}, {WS}, s79 offen sc1", "qf")
    a.vmem(f"buffer_load_dwordx2 {vr(vt+2,2)}, v{vt+6}, {WS}, s79 offen sc1", "qf")
    a.vmem(f"buffer_load_dwordx2 {vr(vt+4,2)}, v{vt+6}, {WS}, s80 offen sc1", "qf")
def qkv_flag_test(a):
    vt = FL
    a(f"""
    v_cmp_ne_u64 vcc, s[{NON}:{NON+1}], {vr(vt,2)}
    v_cmp_ne_u64 s[52:53], s[{NON}:{NON+1}], {vr(vt+2,2)}
    v_cmp_ne_u64 s[54:55], s[{NON}:{NON+1}], {vr(vt+4,2)}
    s_add_u32 s63, s63, 1
    s_or_b64 s[56:57], s[52:53], vcc
    s_or_b64 s[56:57], s[56:57], s[54:55]
    """)
def qkv_flag_check(a):
    vt = FL
    L = a.lab("qf")
    a.vm_wait("qf")
    a(f"s_mov_b32 s63, 0\n{L}:")
    qkv_flag_test(a)
    a(f"""
    s_cbranch_scc0 {L}_ok
    s_cmp_ge_u32 s63, {SPIN_MAX}
    s_cbranch_scc1 {L}_ok
    s_sleep {X("QSLEEP", 1)}
    s_or_b64 exec, vcc, 1
    buffer_load_dwordx2 {vr(vt,2)}, v{vt+7}, {WS}, s79 offen sc1
    s_or_b64 exec, s[52:53], 1
    buffer_load_dwordx2 {vr(vt+2,2)}, v{vt+6}, {WS}, s79 offen sc1
    s_or_b64 exec, s[54:55], 1
    buffer_load_dwordx2 {vr(vt+4,2)}, v{vt+6}, {WS}, s80 offen sc1
    s_mov_b64 exec, -1
    s_waitcnt vmcnt(0)
    s_branch {L}
    {L}_ok:
    """)

def service(a):
    a("s_setprio 3")
    a.vm_reset()
    a(f"""
    v_lshrrev_b32 v1, 3, v0
    v_and_b32 v2, 7, v0
    v_lshrrev_b32 v3, 1, v1
    s_and_b32 s51, s3, 1
    s_lshl_b32 s51, s51, 2
    v_add_u32 v4, s51, v3
    v_xor_b32 v4, v2, v4
    v_lshlrev_b32 v4, 4, v4
    v_mul_u32_u24 v5, 896, v1
    v_add_u32 v8, v4, v5
    v_add_u32 v9, 28672, v8
    v_add_u32 v10, 57344, v8
    v_and_b32 v3, 1, v3
    v_lshlrev_b32 v3, 2, v3
    v_xor_b32 v4, v2, v3
    v_lshlrev_b32 v4, 4, v4
    v_add_u32 v{VW}, v4, v5
    v_mul_u32_u24 v5, 2688, v1
    v_add_u32 v11, v4, v5
    v_add_u32 v12, {32*2688}, v11
    v_add_u32 v13, 128, v11
    v_add_u32 v14, 128, v12
    s_lshl_b32 s51, s{S_W4}, 3
    s_add_u32 s56, s{S_ROW}, s51
    s_mul_i32 s56, s56, 896
    s_mul_i32 s57, s51, 2688
    s_lshl_b32 s52, s{S_COL}, 6
    s_add_u32 s57, s57, s52
    s_lshl_b32 s58, s{S_W4}, 10
    s_add_u32 s59, s{S_RB}, s{S_CB}
    """)
    R = X("ROT", 7)
    if R == 7: a("s_mul_i32 s51, s59, 37\ns_lshr_b32 s51, s51, 8\ns_mul_i32 s51, s51, 7\ns_sub_u32 s59, s59, s51")
    if R == 2: a("s_and_b32 s59, s59, 1\ns_mul_i32 s59, s59, 3")
    if R == 3: a("s_mul_i32 s51, s59, 86\ns_lshr_b32 s51, s51, 8\ns_mul_i32 s51, s51, 3\ns_sub_u32 s59, s59, s51\ns_lshl_b32 s59, s59, 1")
    if R == 0: a("s_mov_b32 s59, 0")
    a("s_waitcnt lgkmcnt(0)")
    srd(a, SRD_XB, P + 6, 1835008); srd(a, SRD_WB, P + 8, 448 * 2688)
    a(f"s_cmp_eq_u32 s{S_ACT}, 0\ns_cbranch_scc1 L_sv_nog")
    def issue(g):
        Xs, W = (SRD_XB, SRD_WB) if g < 7 or X('FAKEA') else (SRD_XA, SRD_WA)
        slot = (g % GNS) * GSLOT
        a(f"""
        s_lshl_b32 s60, s59, 7
        s_add_u32 s60, s60, s56
        s_mul_i32 s61, s59, {64*2688}
        s_add_u32 s61, s61, s57
        """)
        order = [('x', 0), ('w', 0), ('w', 2), ('x', 1), ('w', 1), ('w', 3), ('x', 2)]
        fill = ["s_add_u32 s59, s59, 1", "s_nop 0", "s_nop 0", "s_nop 0", "s_nop 0", "s_nop 0", "s_cmp_ge_u32 s59, 7"]
        for (kind, u), fl in zip(order, fill):
            if kind == 'x':
                a(f"s_add_u32 m0, s58, {slot + u * 4096}\n{fl}")
                a.vmem(f"buffer_load_dwordx4 v{8+u}, {sr(Xs)}, s60 offen lds", f"g{g}")
            else:
                j, v = u >> 1, u & 1
                a(f"s_add_u32 m0, s58, {slot + 12288 + j * 8192 + v * 4096}\n{fl}")
                a.vmem(f"buffer_load_dwordx4 v{11 + 2*j + v}, {sr(W)}, s61 offen lds", f"g{g}")
        a("s_cselect_b32 s59, 0, s59")
    trace(a, 48)
    issue(0)
    srd(a, SRD_XA, P + 0, 1835008); srd(a, SRD_WA, P + 2, 448 * 2688)
    common_srds(a)
    a(f"""
    s_sub_u32 s51, s3, 8
    s_or_b32 s51, s51, s2
    s_cmp_eq_u32 s51, 0
    s_cbranch_scc0 L_nonon
    s_memrealtime s[52:53]
    v_mov_b32 v18, 0
    s_waitcnt lgkmcnt(0)
    s_or_b32 s53, s53, 0x80000000
    v_mov_b32 v16, s52
    v_mov_b32 v17, s53
    s_mov_b64 exec, 1
    buffer_store_dwordx2 v[16:17], v18, {sr(SRD_DBG)}, 0 offen sc1
    s_mov_b64 exec, -1
    L_nonon:
    """)
    A = AttnA(a)
    def sv_setup():
        setup2(a); norm_masks(a)
        a(f"""
        v_mov_b32 v{SNV+2}, 0
        v_mov_b32 v{FL+6}, 0
        v_mov_b32 v{FL+7}, 0
        v_mul_u32_u24 v7, 448, v2
        v_lshl_add_u32 v7, v1, 4, v7
        s_lshl_b32 s51, s{S_ODD}, 6
        s_sub_u32 s51, 256, s51
        v_add_u32 v{VVA}, s51, v7
        v_subrev_u32 v{VVB}, 128, v{VVA}
        v_lshlrev_b32 v{VR0}, 12, v0
        v_add_u32 v{VR0}, {L_RELAY}, v{VR0}
        s_lshl_b32 s51, s{S_W4}, 12
        s_add_u32 s51, s51, {L_RELAY}
        v_mov_b32 v{VR1}, s51
        v_mov_b32 v7, 0
        ds_write_b32 v{VR1}, v7
        """)
        A.masks()
        a("s_mov_b64 s[76:77], s[56:57]\ns_mov_b32 s78, s58")
        oproj_params(a, "A"); oproj_init(a)
        a("s_mov_b64 s[56:57], s[76:77]\ns_mov_b32 s58, s78")
        a("s_waitcnt lgkmcnt(0)")
    def sv_setup_late():
        srd(a, SRD_WOA, P + 4, 448 * 896); srd(a, SRD_WOB, P + 10, 448 * 896)
        a(f"""
        s_lshl_b32 s58, s{S_W4}, 12
        s_mul_i32 s59, s{S_W4}, 28672
        s_add_u32 s59, s59, s{S_P0}
        s_add_u32 s59, s59, {KB}
        s_lshl_b32 s60, s{S_HD}, 6
        s_add_u32 s60, s60, s{S_W4}
        s_mul_i32 s60, s60, 1792
        s_add_u32 s60, s60, {VB - 256}
        """)
    def dma(st):
        a(f"s_add_u32 m0, s58, {slot_addr(st)}\ns_add_u32 s56, s59, {st*4*28672}")
        a.vmem(f"buffer_load_dwordx4 v6, {WS}, s56 offen sc1 lds", f"a{st}")
        a.vmem(f"buffer_load_dwordx4 v6, {WS}, s56 offen offset:1024 sc1 lds", f"a{st}")
        a(f"s_add_u32 m0, s58, {slot_addr(st) + 2048}\ns_add_u32 s57, s60, {st*4*1792}\ns_mov_b64 exec, s[{VMASK}:{VMASK+1}]")
        a.vmem(f"buffer_load_dwordx4 v{VVA}, {WS}, s57 offen sc1 lds", f"a{st}")
        a.vmem(f"buffer_load_dwordx4 v{VVB}, {WS}, s57 offen offset:1024 sc1 lds", f"a{st}")
        a("s_mov_b64 exec, -1")
    APRE = X("APRE", 3)
    def relay_set():
        a(f"v_mov_b32 v7, 1\ns_mov_b64 exec, 14\nds_write_b32 v{VR0}, v7\ns_mov_b64 exec, -1")
    def first_dmas():
        a(f"""
        s_mul_i32 s56, s{S_QB}, {4*28672}
        s_add_u32 s56, s56, s59
        s_lshr_b32 s51, s58, 1
        s_add_u32 m0, s51, {L_Q}
        s_sub_u32 s56, s56, {KB}
        """)
        a.vmem(f"buffer_load_dwordx4 v6, {WS}, s56 offen sc1 lds", "a0")
        a.vmem(f"buffer_load_dwordx4 v6, {WS}, s56 offen offset:1024 sc1 lds", "a0")
        for st in range(X('APRE0', 1)): dma(st)
    issued = 1
    while issued < X("PRE", 2): issue(issued); issued += 1
    SVAT = X("SVAT", -1)
    if SVAT < 0: sv_setup()
    FBAT = X("FBAT", 11)
    KVAT = X("KVAT", 13)
    def flags_uniform(tag):
        nonce_load(a, SNV)
        keep = list(a.vm)
        a(f"s_cmp_eq_u32 s{S_W4}, 0\ns_cbranch_scc1 L_fu{tag}")
        for i in range(3): nonce_load(a, SNV)
        a(f"s_branch L_fud{tag}\nL_fu{tag}:")
        a.vm = keep
        qkv_flag_loads(a, FB)
        a(f"L_fud{tag}:")
    for c in range(KVAT + 1):
        trace(a, 1 + 3*c)
        a.vm_wait(f"g{c}")
        trace(a, 2 + 3*c)
        a("s_barrier")
        trace(a, 3 + 3*c)
        if c == 0: stamp(a, 1)
        if c == FBAT and X("FBPRE", 1): flags_uniform(0)
        lim = min(13, c + GNS - 1)
        if c < 7: lim = min(lim, X("HOLD", 9))
        while issued <= lim: issue(issued); issued += 1
        if c == SVAT: sv_setup()
        if c == 10: sv_setup_late()
        if c == FBAT and not X("FBPRE", 1): flags_uniform(0)
    a.vm_wait("qf")
    keep2 = list(a.vm)
    a("s_branch L_sv_att\nL_sv_nog:")
    common_srds(a)
    sv_setup(); sv_setup_late()
    for i in range(X("IDLEW", 1)): a("s_sleep 64")
    flags_uniform(1)
    a("s_barrier\ns_waitcnt vmcnt(0)\nL_sv_att:")
    a.vm = keep2
    a(f"s_cmp_eq_u32 s{S_W4}, 0\ns_cbranch_scc0 L_relay")
    nonce_get(a, SNV)
    qkv_flag_check(a)
    relay_set()
    a(f"""
    s_branch L_relay_ok
    L_relay:
    s_mov_b32 s63, 0
    L_relay_w:
    ds_read_b32 v7, v{VR1}
    s_add_u32 s63, s63, 1
    s_waitcnt lgkmcnt(0)
    v_cmp_eq_u32 vcc, 0, v7
    s_cmp_ge_u32 s63, {SPIN_MAX*16}
    s_cbranch_scc1 L_relay_ok
    s_cbranch_vccnz L_relay_w
    L_relay_ok:
    """)
    stamp(a, 2); trace(a, 44)
    first_dmas()
    if KVAT == 12:
        a.vm_wait("g13")
        trace(a, 41)
        a(f"s_cmp_eq_u32 s{S_ACT}, 0\ns_cbranch_scc1 L_no13\ns_barrier\nL_no13:")
        trace(a, 42)
    for st in range(X("APRE0", 1), APRE): dma(st)
    nonce_get(a, SNV)
    def wo_dma(W, lds, i0, n, tag):
        a(f"""
        s_mul_i32 s61, s{S_W4}, {8*896}
        s_lshl_b32 s62, s{S_CB2}, 7
        s_add_u32 s61, s61, s62
        s_lshl_b32 s62, s{S_W4}, 10
        """)
        for j in range(i0, i0 + n):
            a(f"s_add_u32 m0, s62, {lds + j*4096}\ns_add_u32 s63, s61, {j*32*896}")
            a.vmem(f"buffer_load_dwordx4 v{VW}, {sr(W)}, s63 offen lds", tag)
    issued = APRE
    bars = [-2] + ABAR
    for i, n in enumerate(bars):
        need = bars[i + 1] // 2 if i + 1 < len(bars) else 15
        trace(a, 64 + 3*i)
        a.vm_wait(f"a{need}", "lgkmcnt(0)" if i == 0 else "")
        trace(a, 65 + 3*i)
        a("s_barrier")
        trace(a, 66 + 3*i)
        if X("PSTAMP") and n == 20: stamp(a, 1)
        if X("PSTAMP") and n == 8: stamp(a, 2)
        if n == 12: qkv_flag_loads(a, FA)
        while issued <= min(15, max(n // 2 - 1, -1) + ANS) and (n >= 0 or issued <= X('A0ISS', 0)): dma(issued); issued += 1
        if n == 4: wo_dma(SRD_WOB, L_WOB, 0, 4, "wob")
        if n == 8: wo_dma(SRD_WOB, L_WOB, 4, 6, "wob"); A.poison()
        if n == 16: wo_dma(SRD_WOB, L_WOB, 10, 4, "wob")
        if n == 12: qkv_flag_check(a); A.loads()
        if n == 16:
            if not X("NOAA"): A.qk(); A.pv(); a("s_nop 7")
            A.fin()
        if n == 20: A.pub(); wo_dma(SRD_WOA, L_WOA, 0, 2, "woa")
        if n == 24:
            assert issued == 16
            wo_dma(SRD_WOA, L_WOA, 2, 8, "woa")
            oproj_params(a, "A")
            a(f"s_sleep {X('FOADELAY', 6)}")
            A.oflag_load()
        if n == 28:
            wo_dma(SRD_WOA, L_WOA, 10, 4, "woa")
            A.oflag_check()
            for k in range(X("OAK", 6)): o_load(a, k)
    a.vm_wait("woa")
    a(f"""
    v_mov_b32 v7, {L_SYNC}
    v_lshl_add_u32 v7, v0, 2, v7
    v_mov_b32 v4, 0
    s_barrier
    s_mov_b64 exec, 0xff
    ds_write_b32 v7, v4
    s_mov_b64 exec, -1
    s_waitcnt lgkmcnt(0)
    s_barrier
    """)
    stamp(a, 3); trace(a, 113)
    a(f"s_setprio 0\ns_cmp_eq_u32 s{S_ACT2}, 0\ns_cbranch_scc1 L_end")
    if X("OAK", 6) < 8:
        a(f"s_sleep {X('OADELAY', 9)}")
        for k in range(X("OAK", 6), 8): o_load(a, k)
    oproj_main(a)

class AttnA:
    Q, KP, KC, VP, VC, SP, SC, OO, T, IX = 80, 88, 96, 112, 116, 16, 32, 48, 64, 124
    def __init__(s, a): s.a = a
    def tq(s): s.a(f"s_lshl_b32 s51, s{S_QB}, 2\ns_add_u32 s51, s51, s{S_W4}")
    def blk(s, sh, base):
        s.tq()
        s.a(f"s_lshl_b32 s51, s51, 4\ns_add_u32 s51, s51, s{S_HD}\ns_lshl_b32 s51, s51, {sh}\ns_add_u32 s51, s51, {base}")
    def masks(s):
        a = s.a; s.tq()
        a(f"""
        v_lshlrev_b32 v7, 3, v2
        v_sub_u32 v7, v1, v7
        v_add_u32 v7, 18, v7
        v_mov_b32 v126, 0x5555
        v_mov_b32 v127, 0
        v_lshlrev_b64 v[126:127], v7, v[126:127]
        s_cmp_eq_u32 s51, 0
        s_cselect_b32 s52, 0, -1
        v_and_b32 v126, s52, v126
        v_not_b32 v126, v126
        v_not_b32 v127, v127
        s_mov_b32 s52, 0xf149f2ca
        v_mov_b32 v{s.IX}, 0xdddddddd
        """)
        for r in range(16):
            g, i = r >> 2, r & 3
            c = 16 * (g >> 1) + 4 * (g & 1) + i
            a(f"v_bfe_i32 v{s.SC+r}, v127, {c}, 1\nv_and_b32 v{s.SC+r}, s52, v{s.SC+r}")
            if r >= 8: a(f"v_bfe_i32 v{s.SP+r}, v126, {c}, 1\nv_and_b32 v{s.SP+r}, s52, v{s.SP+r}")
            else: a(f"v_mov_b32 v{s.SP+r}, 0")
            a(f"v_mov_b32 v{s.OO+r}, 0")
        for r in range(12): a(f"v_mov_b32 v{s.VP+r}, 0x3f803f80")
        a(f"v_mov_b32 v140, {hex(f2u(QSCALE))}")
        for r in range(4): a(f"v_mov_b32 v{128+r}, -1")
        a(f"""
        v_and_b32 v7, 31, v3
        s_lshl_b32 s53, s{S_ODD}, 2
        v_subrev_u32 v7, s53, v7
        v_cmp_gt_u32 s[{AVM}:{AVM+1}], 28, v7
        v_mul_u32_u24 v125, 448, v2
        v_lshl_add_u32 v125, v7, 4, v125
        v_add_u32 v125, 256, v125
        """)
    def poison(s):
        a = s.a; s.blk(11, OB)
        a.vmem(f"buffer_store_dwordx4 v[128:131], v6, {WS}, s51 offen sc1", "poi")
        a.vmem(f"buffer_store_dwordx4 v[128:131], v6, {WS}, s51 offen offset:1024 sc1", "poi")
    def loads(s):
        a = s.a; s.tq()
        a(f"""
        s_mul_i32 s52, s51, 28672
        s_add_u32 s52, s52, s{S_P0}
        s_add_u32 s53, s52, {KA}
        s_add_u32 s52, s52, {QA}
        s_cmp_eq_u32 s51, 0
        s_cselect_b32 s54, 0, 28672
        s_cselect_b32 s55, 0, 1792
        s_sub_u32 s54, s53, s54
        """)
        a.vmem(f"buffer_load_dwordx4 {vr(s.Q,4)}, v6, {WS}, s52 offen sc1", "aq")
        a.vmem(f"buffer_load_dwordx4 {vr(s.Q+4,4)}, v6, {WS}, s52 offen offset:1024 sc1", "aq")
        a.vmem(f"buffer_load_dwordx4 {vr(s.KP,4)}, v5, {WS}, s54 offen sc1", "aq")
        a.vmem(f"buffer_load_dwordx4 {vr(s.KP+4,4)}, v5, {WS}, s54 offen offset:1024 sc1", "aq")
        a.vmem(f"buffer_load_dwordx4 {vr(s.KC,4)}, v5, {WS}, s53 offen sc1", "aq")
        a.vmem(f"buffer_load_dwordx4 {vr(s.KC+4,4)}, v5, {WS}, s53 offen offset:1024 sc1", "aq")
        a(f"""
        s_lshl_b32 s52, s{S_HD}, 6
        s_add_u32 s52, s52, s51
        s_mul_i32 s52, s52, 1792
        s_add_u32 s52, s52, {VA - 256}
        s_sub_u32 s55, s52, s55
        s_mov_b64 exec, s[{AVM}:{AVM+1}]
        """)
        a.vmem(f"buffer_load_dwordx4 {vr(s.VP,4)}, v125, {WS}, s55 offen offset:896 sc1", "aq")
        a.vmem(f"buffer_load_dwordx4 {vr(s.VC,4)}, v125, {WS}, s52 offen sc1", "aq")
        a.vmem(f"buffer_load_dwordx4 {vr(s.VC+4,4)}, v125, {WS}, s52 offen offset:896 sc1", "aq")
        a("s_mov_b64 exec, -1")
    def qk(s):
        a = s.a
        a.vm_wait("aq")
        zero_qpad(a, s.Q)
        a(f"""
        v_mfma_f32_32x32x16_bf16 {vr(s.SP,16)}, {vr(s.KP,4)}, {vr(s.Q,4)}, {vr(s.SP,16)}
        v_mfma_f32_32x32x16_bf16 {vr(s.SC,16)}, {vr(s.KC,4)}, {vr(s.Q,4)}, {vr(s.SC,16)}
        v_mfma_f32_32x32x16_bf16 {vr(s.SP,16)}, {vr(s.KP+4,4)}, {vr(s.Q+4,4)}, {vr(s.SP,16)}
        v_mfma_f32_32x32x16_bf16 {vr(s.SC,16)}, {vr(s.KC+4,4)}, {vr(s.Q+4,4)}, {vr(s.SC,16)}
        s_nop 11
        """)
        s.regs = regs = list(range(s.SP + 8, s.SP + 16)) + list(range(s.SC, s.SC + 16))
        a(f"v_max_f32 v8, v{regs[0]}, v{regs[1]}")
        for k in range(2, 24, 2): a(f"v_max3_f32 v8, v8, v{regs[k]}, v{regs[k+1]}")
        a("v_mov_b32 v9, v8\ns_nop 1\nv_permlane32_swap_b32 v8, v9\nv_max_f32 v8, v8, v9\nv_mul_f32 v8, v140, v8")
        for r in regs[::2]: a(f"v_pk_fma_f32 {vr(r,2)}, {vr(r,2)}, v[140:141], v[8:9] op_sel_hi:[1,0,0] neg_lo:[0,0,1] neg_hi:[0,0,1]")
    def pv(s):
        a = s.a
        for r in s.regs: a(f"v_exp_f32 v{r}, v{r}")
        a(f"""
        v_smfmac_f32_32x32x32_bf16 {vr(s.OO,16)}, {vr(s.VP,4)}, {vr(s.SP+8,8)}, v{s.IX}
        v_smfmac_f32_32x32x32_bf16 {vr(s.OO,16)}, {vr(s.VC,4)}, {vr(s.SC,8)}, v{s.IX}
        v_smfmac_f32_32x32x32_bf16 {vr(s.OO,16)}, {vr(s.VC+4,4)}, {vr(s.SC+8,8)}, v{s.IX}
        """)
    def fin(s):
        s.blk(11, OA)
        finish_O(s.a, s.OO, s.T, 51, True)
    def pub(s):
        s.blk(7, FOA)
        s.a.vm_wait("ost")
        put_flag(s.a, 51, SNV)
    def oflag_load(s):
        a = s.a
        a(f"""
        s_sub_u32 s59, s52, {OA}
        s_lshr_b32 s59, s59, 4
        s_add_u32 s59, s59, {FOA}
        v_min_u32 v10, 7, v0
        v_lshlrev_b32 v10, 7, v10
        """)
        a.vmem(f"buffer_load_dwordx2 v[8:9], v10, {WS}, s59 offen sc1", "oflag")
    def oflag_check(s):
        a = s.a
        a.vm_wait("oflag")
        a(f"""
        s_mov_b32 s63, 0
        L_of:
        v_cmp_ne_u64 vcc, s[{NON}:{NON+1}], v[8:9]
        s_add_u32 s63, s63, 1
        s_cbranch_vccz L_of_ok
        s_cmp_ge_u32 s63, {SPIN_MAX}
        s_cbranch_scc1 L_of_ok
        s_sleep 2
        s_mov_b64 exec, vcc
        buffer_load_dwordx2 v[8:9], v10, {WS}, s59 offen sc1
        s_mov_b64 exec, -1
        s_waitcnt vmcnt(0)
        s_branch L_of
        L_of_ok:
        """)

def main(out):
    a = Asm()
    a("L_begin:")
    setup(a)
    service(a)
    a("s_branch L_end\nL_comp:")
    a.vm_reset()
    gemm_compute(a)
    attn_compute(a)
    a("L_end:")
    stamp_out(a)
    a("L_exit:\ns_endpgm\nL_codeend:")
    kn = NAME + "_kernel"
    if X("LIST"): hdr = f"; @launch kernel={kn} grid=(256,1,1) block=(768,1,1) lds=163840\n"
    else: hdr = "; @launch grid=(256,1,1) block=(768,1,1) lds=163840\n"
    hdr += f'.amdgcn_target "amdgcn-amd-amdhsa--gfx950"\n.text\n.globl {kn}\n.p2align 8\n.type {kn},@function\n{kn}:\n'
    desc = f""".section .rodata,"a"
.p2align 6
.amdhsa_kernel {kn}
  .amdhsa_next_free_vgpr 168
  .amdhsa_next_free_sgpr 102
  .amdhsa_accum_offset 168
  .amdhsa_group_segment_fixed_size 0
  .amdhsa_kernarg_size 72
  .amdhsa_user_sgpr_count 2
  .amdhsa_user_sgpr_kernarg_segment_ptr 1
  .amdhsa_system_sgpr_workgroup_id_x 1
.end_amdhsa_kernel
"""
    txt = hdr + a.text() + desc
    open(out, "w").write(txt)
    e = lint(txt)
    for x in e: print("HAZARD", x)
    print("written", out, len(txt), "bytes;", len(e), "hazards")

if __name__ == "__main__":
    main(sys.argv[1] if len(sys.argv) > 1 else f"cdna_kernels/{NAME}.s")
```

```python
import sys, math, os, struct
from lint import lint

NAME = "concat_heads__sliding_local_dilated__mha_block__prompt"
def X(k, d=0): return int(os.environ.get(k, str(d)))
SEC = 1835008
QB, KB, VB, QA, KA, VA = [i * SEC for i in range(6)]
OA = 6 * SEC
OB = OA + 0x200000
FB = OB + 0x200000
FA = FB + 42 * 4096
FOA = FA + 42 * 4096
WS_SIZE = FOA + 0x20000
QSCALE = (28 ** -0.5) * math.log2(math.e)
def f2u(x): return struct.unpack('<I', struct.pack('<f', x))[0]
STAMP, TRACE = X("STAMP"), X("TRACE")
TS_OFF = 0x1000000
SPIN_MAX = 2000000

class Asm:
    def __init__(self): self.l = []; self.vm = []; self.nlab = 0
    def __call__(self, s):
        for x in s.strip('\n').split('\n'):
            x = x.strip()
            if not x: continue
            self.l.append(x if x.endswith(':') else '    ' + x)
    def text(self): return '\n'.join(self.l) + '\n'
    def lab(self, p):
        self.nlab += 1; return f"{p}_{self.nlab}"
    def vm_reset(self): self.vm = []
    def vmem(self, ins, tag):
        self(ins); self.vm.append(tag)
    def vm_wait(self, tag, extra=""):
        idx = [i for i, t in enumerate(self.vm) if t == tag]
        if not idx:
            if extra: self(f"s_waitcnt {extra}")
            return
        n = len(self.vm) - 1 - idx[-1]
        assert n < 64
        self(f"s_waitcnt vmcnt({n}) {extra}")
        self.vm = self.vm[idx[-1] + 1:]

def vr(a, n): return "v[%d:%d]" % (a, a + n - 1)
def sr(a, n=4): return "s[%d:%d]" % (a, a + n - 1)

SRD_XB, SRD_WB, SRD_XA, SRD_WA, SRD_WS, SRD_OUT, SRD_DBG = 4, 8, 12, 16, 20, 24, 28
SRD_WOA, SRD_WOB = 4, 8
MODD, MA, MB, AVM = 64, 66, 70, 72
NON = 32
S_HD, S_QB, S_ODD, S_P0 = 34, 35, 36, 37
S_RB, S_CB, S_ROW, S_COL, S_ACT = 38, 39, 40, 41, 42
S_RB2, S_CB2, S_ACT2 = 43, 44, 45
VMASK, QPAD = 46, 48
S_W4 = 50
P = 64
WS = sr(SRD_WS)

def srd(a, d, ptr, size):
    a(f"s_mov_b32 s{d}, s{ptr}\ns_mov_b32 s{d+1}, s{ptr+1}\ns_mov_b32 s{d+2}, {size}\ns_mov_b32 s{d+3}, 0x20000")
def common_srds(a):
    srd(a, SRD_WS, P + 16, WS_SIZE); srd(a, SRD_DBG, P + 14, 256); srd(a, SRD_OUT, P + 12, 2048 * 1792)

def stamp(a, i):
    if STAMP: a(f"s_memtime s[{82+4*i}:{83+4*i}]\ns_memrealtime s[{84+4*i}:{85+4*i}]\ns_waitcnt lgkmcnt(0)")
def trace(a, idx, reg=165):
    if TRACE: a(f"s_memtime s[98:99]\ns_waitcnt lgkmcnt(0)\nv_writelane_b32 v{reg + idx // 64}, s98, {idx % 64}")
def stamp_out(a):
    if TRACE:
        a(f"""
        s_mov_b32 s22, 0x2000000
        s_lshl_b32 s4, s2, 4
        s_add_u32 s4, s4, s3
        s_lshl_b32 s4, s4, 9
        s_add_u32 s4, s4, {TS_OFF + 0x100000}
        v_lshlrev_b32 v1, 2, v0
        buffer_store_dword v165, v1, s[20:23], s4 offen
        buffer_store_dword v166, v1, s[20:23], s4 offen offset:256
        """)
    if not STAMP: return
    a("s_waitcnt vmcnt(0)")
    stamp(a, 4)
    a(f"""
    s_mov_b32 s22, 0x2000000
    s_lshl_b32 s4, s2, 4
    s_add_u32 s4, s4, s3
    s_lshl_b32 s4, s4, 6
    s_add_u32 s4, s4, {TS_OFF}
    """)
    for i in range(5):
        a(f"v_mov_b32 v{8+2*i}, s{84+4*i}\nv_mov_b32 v{9+2*i}, s{82+4*i}")
    a(f"""
    v_mov_b32 v1, 0
    s_mov_b64 exec, 1
    buffer_store_dwordx4 v[8:11], v1, s[20:23], s4 offen
    buffer_store_dwordx4 v[12:15], v1, s[20:23], s4 offen offset:16
    buffer_store_dwordx2 v[16:17], v1, s[20:23], s4 offen offset:32
    """)

GNS, GSLOT, ANS = 4, 28672, 6
L_WOB, L_Q, L_RING = 0, 57344, 65536
L_WOA = L_Q
def slot_addr(st): return L_RING + ((st % ANS + 2) % ANS) * 16384
L_COMB = slot_addr(13)
L_RED = slot_addr(15)
L_SYNC = slot_addr(14)
L_RELAY = slot_addr(3)
ABAR = [0, 4, 8, 12, 16, 20, 24, 28]
VS = X('VS', 32)
ONES = ((127 + VS) << 7) * 0x10001

def setup(a):
    if TRACE: a("v_mov_b32 v165, 0\nv_mov_b32 v166, 0"); trace(a, 0)
    if STAMP:
        for i in range(86, 98, 2): a(f"s_mov_b64 s[{i}:{i+1}], 0")
        a("s_memtime s[82:83]\ns_memrealtime s[84:85]")
    a(f"""
    s_load_dwordx16 s[64:79], s[0:1], 0
    s_load_dwordx2 s[80:81], s[0:1], 64
    s_memrealtime s[{NON}:{NON+1}]
    s_cmp_ge_u32 s2, 256
    s_cbranch_scc1 L_exit
    v_lshrrev_b32 v1, 6, v0
    v_and_b32 v0, 63, v0
    v_readfirstlane_b32 s3, v1
    s_and_b32 s51, s2, 7
    s_lshr_b32 s52, s2, 3
    s_mul_i32 s53, s51, 31
    s_add_u32 s53, s53, s52
    s_cmp_lt_u32 s52, 31
    s_cselect_b32 s{S_ACT}, 1, 0
    s_cmp_lt_u32 s53, 242
    s_cselect_b32 s{S_ACT}, s{S_ACT}, 0
    s_mul_i32 s{S_RB}, s53, 171
    s_lshr_b32 s{S_RB}, s{S_RB}, 10
    s_mul_i32 s{S_CB}, s{S_RB}, 6
    s_sub_u32 s{S_CB}, s53, s{S_CB}
    s_sub_u32 s54, s53, 132
    s_mul_i32 s55, s54, 205
    s_lshr_b32 s55, s55, 10
    s_mul_i32 s56, s55, 5
    s_sub_u32 s56, s54, s56
    s_add_u32 s56, s56, 6
    s_cmp_ge_u32 s53, 132
    s_cselect_b32 s{S_RB}, s55, s{S_RB}
    s_cselect_b32 s{S_CB}, s56, s{S_CB}
    s_mul_i32 s{S_ROW}, s{S_RB}, 96
    s_min_u32 s{S_ROW}, s{S_ROW}, 1952
    s_lshl_b32 s{S_COL}, s{S_CB}, 2
    s_min_u32 s{S_COL}, s{S_COL}, 38
    {"s_sub_u32 s3, s3, 4" if X("SVF", 1) else ""}
    {"s_cselect_b32 s51, 12, 0" if X("SVF", 1) else ""}
    {"s_add_u32 s3, s3, s51" if X("SVF", 1) else ""}
    s_and_b32 s{S_W4}, s3, 3
    s_cmp_ge_u32 s3, 8
    s_cbranch_scc0 L_comp
    """)

def setup2(a):
    a(f"""
    s_and_b32 s51, s2, 7
    s_lshl_b32 s{S_HD}, s51, 1
    s_bfe_u32 s{S_ODD}, s2, 0x10003
    s_add_u32 s{S_HD}, s{S_HD}, s{S_ODD}
    s_lshr_b32 s{S_QB}, s2, 4
    s_mul_i32 s{S_P0}, s{S_HD}, 7
    s_lshr_b32 s{S_P0}, s{S_P0}, 1
    s_lshl_b32 s{S_P0}, s{S_P0}, 9
    s_lshr_b32 s52, s2, 3
    s_cmp_lt_u32 s52, 28
    s_cselect_b32 s{S_ACT2}, 1, 0
    s_mul_i32 s{S_RB2}, s52, 37
    s_lshr_b32 s{S_RB2}, s{S_RB2}, 8
    s_mul_i32 s53, s{S_RB2}, 7
    s_sub_u32 s{S_CB2}, s52, s53
    s_lshl_b32 s51, s51, 2
    s_add_u32 s{S_RB2}, s{S_RB2}, s51
    s_min_u32 s{S_RB2}, s{S_RB2}, 31
    s_cmp_eq_u32 s{S_ODD}, 0
    s_cselect_b32 s{VMASK}, 0x0fffffff, -16
    s_mov_b32 s{VMASK+1}, s{VMASK}
    s_cselect_b32 s{QPAD}, 0, -1
    s_cselect_b32 s{QPAD+1}, -1, 0
    v_and_b32 v1, 31, v0
    v_lshrrev_b32 v2, 5, v0
    v_and_b32 v3, 51, v0
    v_bfe_u32 v4, v0, 2, 1
    v_lshl_add_u32 v3, v4, 3, v3
    v_bfe_u32 v4, v0, 3, 1
    v_lshl_add_u32 v3, v4, 2, v3
    v_lshlrev_b32 v5, 4, v3
    v_lshlrev_b32 v6, 4, v0
    """)
def norm_masks(a):
    a(f"""
    s_mov_b32 s{MODD}, s{QPAD}
    s_mov_b32 s{MODD+1}, s{QPAD}
    s_mov_b32 s{MA}, s{QPAD}
    s_mov_b32 s{MA+1}, 0
    s_mov_b32 s{MB}, 0
    s_mov_b32 s{MB+1}, s{QPAD+1}
    """)

def nonce_load(a, vt):
    a.vmem(f"buffer_load_dwordx2 {vr(vt,2)}, v{vt+2}, {sr(SRD_DBG)}, 0 offen sc1", "non")
def nonce_get(a, vt):
    L = a.lab("non")
    a(f"""
    s_mov_b32 s63, 0
    {L}:
    v_readfirstlane_b32 s{NON}, v{vt}
    v_readfirstlane_b32 s{NON+1}, v{vt+1}
    s_add_u32 s63, s63, 1
    s_cmp_lg_u32 s{NON+1}, 0
    s_cbranch_scc1 {L}_ok
    s_cmp_ge_u32 s63, {SPIN_MAX}
    s_cbranch_scc1 {L}_ok
    s_sleep 8
    buffer_load_dwordx2 {vr(vt,2)}, v{vt+2}, {sr(SRD_DBG)}, 0 offen sc1
    s_waitcnt vmcnt(0)
    s_branch {L}
    {L}_ok:
    """)
def put_flag(a, soff, vt):
    a("s_mov_b64 exec, 1")
    a.vmem(f"buffer_store_dwordx2 {vr(vt,2)}, v{vt+2}, {WS}, s{soff} offen sc1", "flag")
    a("s_mov_b64 exec, -1")

def zero_qpad(a, q):
    a(f"""
    v_cndmask_b32 v{q}, v{q}, 0, s[{MA}:{MA+1}]
    v_cndmask_b32 v{q+1}, v{q+1}, 0, s[{MA}:{MA+1}]
    v_cndmask_b32 v{q+6}, v{q+6}, 0, s[{MB}:{MB+1}]
    v_cndmask_b32 v{q+7}, v{q+7}, 0, s[{MB}:{MB+1}]
    """)

def finish_O(a, o, tmp, soff, sanitize, mid=None, halves=(0, 1)):
    x, y, r, ra, rb, pk = tmp, tmp + 1, tmp + 2, tmp + 4, tmp + 6, tmp + 8
    a(f"""
    v_cndmask_b32 v{x}, v{o+12}, v{o}, s[{MODD}:{MODD+1}]
    v_cndmask_b32 v{y}, v{o+12}, v{o}, s[{MODD}:{MODD+1}]
    """)
    if mid: mid()
    else: a("s_nop 1")
    a(f"""
    v_permlane32_swap_b32 v{x}, v{y}
    v_cndmask_b32 v{x}, v{y}, v{x}, s[{MODD}:{MODD+1}]
    v_rcp_f32 v{r}, v{x}
    s_nop 0
    v_cndmask_b32 v{ra}, v{r}, 0, s[{MA}:{MA+1}]
    v_cndmask_b32 v{rb}, v{r}, 0, s[{MB}:{MB+1}]
    """)
    for hf in halves:
        for g in range(2 * hf, 2 * hf + 2):
            m = ra if g == 0 else rb if g == 3 else r
            for j in range(2):
                d = o + 4 * g + 2 * j
                a(f"v_pk_mul_f32 {vr(d,2)}, {vr(d,2)}, {vr(m,2)} op_sel_hi:[1,0]")
        for k in range(4 * hf, 4 * hf + 4):
            a(f"v_cvt_pk_bf16_f32 v{pk+k}, v{o+2*k}, v{o+2*k+1}")
            if sanitize: a(f"v_min_u32 v{pk+k}, -2, v{pk+k}")
        a.vmem(f"buffer_store_dwordx4 {vr(pk+4*hf,4)}, v6, {WS}, s{soff} offen offset:{1024*hf} sc1", "ost")

def w_frag_addr(a, dst, half_expr):
    a(f"""
    v_lshrrev_b32 v7, 5, v0
    v_bfe_u32 v4, v0, 2, 2
    v_lshl_add_u32 v{dst}, v7, 3, v4
    v_lshlrev_b32 v{dst}, 7, v{dst}
    v_lshrrev_b32 v4, 1, v4
    v_xor_b32 v4, {half_expr}, v4
    v_lshl_add_u32 v{dst}, v4, 6, v{dst}
    v_bfe_u32 v4, v0, 4, 1
    v_lshl_add_u32 v{dst}, v4, 5, v{dst}
    v_and_b32 v4, 1, v0
    v_lshl_add_u32 v{dst}, v4, 4, v{dst}
    v_bfe_u32 v4, v0, 1, 1
    v_lshl_add_u32 v{dst}, v4, 3, v{dst}
    """)

GO, NV = 136, 160
def gemm_store(a, m):
    L = a.lab("gs")
    a(f"""
    s_cmp_gt_u32 s55, {m}
    s_cbranch_scc1 {L}
    buffer_store_dwordx4 {vr(GO+8*m,4)}, v13, {WS}, s53 offen sc1
    buffer_store_dwordx4 {vr(GO+8*m+4,4)}, v14, {WS}, s53 offen sc1
    {L}:
    s_add_u32 s53, s53, s57
    """)
    if m == 2: nonce_load(a, NV)
def gemm_publish(a):
    L = a.lab("gp")
    trace(a, 46)
    a("s_waitcnt vmcnt(0)")
    trace(a, 47)
    nonce_get(a, NV)
    a(f"s_cmp_eq_u32 s55, 3\ns_cbranch_scc1 {L}")
    put_flag(a, 59, NV)
    a(f"{L}:")
def ones_pads(a):
    a(f"""
    v_and_b32 v7, 3, v0
    v_cmp_eq_u32 vcc, 0, v7
    v_mov_b32 v12, {hex(ONES)}
    s_lshl_b32 s51, s{S_W4}, 12
    v_cndmask_b32 v8, 0, v12, vcc
    s_cmp_eq_u32 s{S_ODD}, 0
    s_cselect_b32 s60, {28*16}, 0
    s_add_u32 s51, s51, s60
    s_add_u32 s51, s51, {L_RING + 2048}
    v_mov_b32 v9, v8
    v_mov_b32 v10, v8
    v_mov_b32 v11, v8
    v_lshl_add_u32 v7, v7, 4, s51
    v_bfe_u32 v12, v0, 2, 2
    v_lshl_add_u32 v7, v12, 9, v7
    v_lshrrev_b32 v12, 4, v0
    v_lshl_add_u32 v7, v12, 14, v7
    v_add_u32 v12, 0x10000, v7
    ds_write_b128 v7, v[8:11]
    s_mov_b32 exec_hi, 0
    ds_write_b128 v12, v[8:11]
    s_mov_b32 exec_hi, -1
    """)

def gemm_compute(a):
    ACC, FR = 88, 24
    a("s_waitcnt lgkmcnt(0)")
    PF = X("IDLEPF", 0)
    if PF:
        srd(a, SRD_XA, P + 0, 1835008); srd(a, SRD_WA, P + 2, 448 * 2688)
        srd(a, SRD_WOA, P + 4, 448 * 896); srd(a, SRD_WOB, P + 10, 448 * 896)
        a(f"""
        s_cmp_eq_u32 s{S_ACT}, 0
        s_cbranch_scc0 L_nipf
        s_and_b32 s51, s2, 7
        s_lshr_b32 s52, s2, 3
        s_sub_u32 s52, 31, s52
        s_add_u32 s51, s51, s52
        s_lshl_b32 s51, s51, 3
        s_add_u32 s51, s51, s3
        s_lshl_b32 s51, s51, 13
        v_lshlrev_b32 v7, 7, v0
        """)
        if PF in (1, 2, 3, 5): a(f"buffer_load_dword v16, v7, {sr(SRD_WA)}, s51 offen")
        if PF in (1, 2, 3): a(f"buffer_load_dword v17, v7, {sr(SRD_XA)}, s51 offen")
        if PF == 3: a(f"s_add_u32 s52, s51, {112*8192}\nbuffer_load_dword v18, v7, {sr(SRD_WA)}, s52 offen\nbuffer_load_dword v19, v7, {sr(SRD_XA)}, s52 offen")
        if PF >= 2: a(f"s_lshr_b32 s52, s51, 1\ns_mov_b32 exec_hi, 0\nbuffer_load_dword v20, v7, {sr(SRD_WOB)}, s52 offen\nbuffer_load_dword v21, v7, {sr(SRD_WOA)}, s52 offen\ns_mov_b32 exec_hi, -1")
        a("L_nipf:")
    common_srds(a)
    setup2(a); norm_masks(a)
    a(f"v_mov_b32 v{NV+2}, 0")
    if X("TLBW", 0):
        st = X("TLBS", 18)
        srd(a, SRD_WOA, P + 4, 448 * 896); srd(a, SRD_WOB, P + 10, 448 * 896)
        a(f"""
        s_cmp_eq_u32 s3, 5
        s_cbranch_scc0 L_notl
        v_lshlrev_b32 v7, {st}, v0
        s_lshl_b32 s51, s2, 7
        s_add_u32 s51, s51, 64
        buffer_load_dword v{GO+4}, v7, {WS}, s51 offen
        s_mul_i32 s51, s{S_RB2}, {64*1792}
        s_lshl_b32 s52, s{S_CB2}, 7
        s_add_u32 s51, s51, s52
        v_mul_u32_u24 v8, {32*1792}, v2
        buffer_load_dword v{GO+5}, v8, {sr(SRD_OUT)}, s51 offen
        buffer_load_dword v{GO+6}, v7, {sr(SRD_WOA)}, s52 offen
        buffer_load_dword v{GO+7}, v7, {sr(SRD_WOB)}, s52 offen
        L_notl:
        """)
    if X("CODEPF", 1):
        a(f"""
        s_cmp_eq_u32 s3, 4
        s_cbranch_scc0 L_nopf
        s_getpc_b64 s[52:53]
        L_pc:
        s_lshr_b32 s51, s2, 3
        s_lshl_b32 s51, s51, 10
        v_add_u32 v7, s51, v6
        s_sub_u32 s52, s52, L_pc - L_begin
        s_subb_u32 s53, s53, 0
        v_cmp_gt_u32 vcc, L_codeend - L_begin - 12, v7
        s_nop 0
        s_and_saveexec_b64 s[54:55], vcc
        s_cbranch_execz L_pfe
        global_load_dwordx4 v[{GO}:{GO+3}], v7, s[52:53]
        L_pfe:
        s_mov_b64 exec, -1
        L_nopf:
        """)
    a(f"""
    s_cmp_eq_u32 s{S_ACT}, 0
    s_cbranch_scc1 L_gidle
    v_lshrrev_b32 v4, 1, v1
    v_and_b32 v4, 7, v4
    v_xor_b32 v4, v4, v2
    v_lshlrev_b32 v4, 4, v4
    v_lshl_add_u32 v8, v1, 7, v4
    v_xor_b32 v9, 32, v8
    v_xor_b32 v10, 64, v8
    v_xor_b32 v11, 96, v8
    s_and_b32 s51, s3, 1
    """)
    w_frag_addr(a, 12, "s51")
    a(f"""
    s_bfe_u32 s51, s3, 0x10001
    s_lshl_b32 s51, s51, 13
    s_add_u32 s51, s51, 12288
    v_add_u32 v12, s51, v12
    s_add_u32 s51, s{S_COL}, s{S_W4}
    s_cmp_eq_u32 s{S_RB}, 21
    s_cselect_b32 s55, 2, 0
    s_cmp_eq_u32 s{S_CB}, 10
    s_cselect_b32 s56, 2, 0
    s_cmp_lt_u32 s{S_W4}, s56
    s_cselect_b32 s55, 3, s55
    s_lshr_b32 s57, s{S_ROW}, 5
    s_cmp_ge_u32 s3, 4
    s_cselect_b32 s58, {3*SEC}, 0
    s_cselect_b32 s59, {FA - FB}, 0
    s_cselect_b32 s52, {(7 % GNS) * GSLOT}, 0
    s_add_u32 s59, s59, {FB}
    s_lshl_b32 s60, s51, 12
    s_add_u32 s59, s59, s60
    s_lshl_b32 s60, s{S_RB}, 7
    s_add_u32 s59, s59, s60
    """)
    a(f"v_mov_b32 v{ACC}, 0\nv_mov_b32 v{ACC+1}, 0")
    for r in range(2, 48, 2): a(f"v_pk_mov_b32 {vr(ACC+r,2)}, {vr(ACC,2)}, {vr(ACC,2)}")
    a("s_cmp_ge_u32 s51, 28\ns_cbranch_scc1 L_gV")
    def addr_list():
        return [f"v_add_u32 v{16+i}, s52, v{8+i}" for i in range(5)] + [f"s_add_u32 s52, s52, {GSLOT}", f"s_cmp_ge_u32 s52, {GSLOT*GNS}", "s_cselect_b32 s52, 0, s52"]
    def addrs():
        for x in addr_list(): a(x)
    def read_list(ks):
        f = FR + 16 * ks
        return [f"ds_read_b64_tr_b16 {vr(f+12, 2)}, v20 offset:{ks*2048}", f"ds_read_b64_tr_b16 {vr(f+14, 2)}, v20 offset:{ks*2048+512}"] + \
               [f"ds_read_b128 {vr(f + 4*m, 4)}, v{16+ks} offset:{m*4096}" for m in range(3)]
    def reads(ks):
        for x in read_list(ks): a(x)
    for var in ("QK", "V"):
        t = f"L_g{var}"
        a(f"{t}:")
        if var == "QK":
            a(f"""
            v_mov_b32 v13, v6
            v_add_u32 v14, 1024, v6
            s_cmp_ge_u32 s51, 14
            s_cselect_b32 s53, {SEC - 14*2048}, 0
            s_cselect_b32 s54, 1.0, {hex(f2u(QSCALE))}
            s_lshl_b32 s60, s51, 11
            s_add_u32 s53, s53, s60
            s_mul_i32 s60, s57, 28672
            s_add_u32 s53, s53, s60
            s_mov_b32 s57, 28672
            v_mov_b32 v22, s54
            """)
        else:
            a(f"""
            v_and_b32 v4, 31, v3
            s_sub_u32 s60, s51, 28
            s_lshl_b32 s60, s60, 5
            v_add_u32 v4, s60, v4
            v_mul_u32_u24 v7, 2341, v4
            v_lshrrev_b32 v7, 16, v7
            v_mul_u32_u24 v13, 28, v7
            v_sub_u32 v4, v4, v13
            v_mul_u32_u24 v7, {64*1792}, v7
            v_lshl_add_u32 v13, v4, 4, v7
            v_mul_u32_u24 v4, 448, v2
            v_add_u32 v13, v13, v4
            v_add_u32 v14, 896, v13
            s_mul_i32 s53, s57, 1792
            s_add_u32 s53, s53, {2*SEC}
            s_mov_b32 s57, 1792
            v_mov_b32 v22, {hex(f2u(2.0**VS))}
            """)
        a(f"s_add_u32 s53, s53, s58")
        addrs()
        a(f"s_cmp_ge_u32 s3, 4\ns_cbranch_scc0 {t}_go")
        for i in range(7): a("s_barrier")
        a(f"s_waitcnt vmcnt(0)\n{t}_go:\ns_barrier")
        def mf(ks, fill=((), (), ())):
            f = FR + 16 * ks
            for m in range(3):
                x, w, d = vr(f + 4*m, 4), vr(f + 12, 4), vr(ACC + 16*m, 16)
                if var == "QK": a(f"v_mfma_f32_32x32x16_bf16 {d}, {w}, {x}, {d}")
                else: a(f"v_mfma_f32_32x32x16_bf16 {d}, {x}, {w}, {d}")
                for y in fill[m]: a(y)
        def spread(ks):
            r = read_list(ks); return (r[0:2], r[2:4], r[4:5])
        reads(0); reads(1)
        a(f"s_mov_b32 s56, 6\n{t}_chunk:")
        a("s_waitcnt lgkmcnt(5)"); mf(0, spread(2))
        r3 = read_list(3)
        a("s_waitcnt lgkmcnt(5)"); mf(1, (r3[0:3], r3[3:5], ["s_cmp_eq_u32 s56, 0", f"s_cbranch_scc1 {t}_last"]))
        al = addr_list()
        a("s_waitcnt lgkmcnt(5)")
        mf(2, (al[0:5], al[5:8] + ["s_sub_u32 s56, s56, 1", "s_waitcnt lgkmcnt(0)", "s_barrier"], read_list(0)[0:3]))
        r0, r1 = read_list(0), read_list(1)
        mf(3, (r0[3:5], r1[0:3], r1[3:5]))
        a(f"s_branch {t}_chunk\n{t}_last:\ns_waitcnt lgkmcnt(0)")
        if X("A0EARLY", 0):
            a("s_barrier")
            stamp(a, 2)
        else:
            if not X("G7LATE", 1): a(f"s_cmp_ge_u32 s3, 4\ns_cbranch_scc1 {t}_nb0\ns_barrier\n{t}_nb0:")
        for m in range(3):
            for ks in (2, 3):
                f = FR + 16 * ks
                x, w, d = vr(f + 4*m, 4), vr(f + 12, 4), vr(ACC + 16*m, 16)
                if var == "QK": a(f"v_mfma_f32_32x32x16_bf16 {d}, {w}, {x}, {d}")
                else: a(f"v_mfma_f32_32x32x16_bf16 {d}, {x}, {w}, {d}")
        a("s_nop 6\ns_branch L_gcvt" if var == "QK" else "s_nop 7")
    a("L_gcvt:")
    trace(a, 44)
    for m in range(3):
        a(f"s_cmp_ge_u32 s3, 4\ns_cbranch_scc1 L_gnm{m}")
        for r in range(16*m, 16*m+16, 2): a(f"v_pk_mul_f32 {vr(ACC+r,2)}, {vr(ACC+r,2)}, v[22:23] op_sel_hi:[1,0]")
        a(f"L_gnm{m}:")
        for r in range(8*m, 8*m+8): a(f"v_cvt_pk_bf16_f32 v{GO+r}, v{ACC+2*r}, v{ACC+2*r+1}")
        a(f"s_cmp_ge_u32 s3, 4\ns_cbranch_scc1 {'L_att' if m == 2 else 'L_gns%d' % m}")
        gemm_store(a, m)
        a(f"L_gns{m}:")
    trace(a, 45)
    PUB = X("PUB", 7)
    if X("G7LATE", 1): a("s_barrier")
    for g in range(8, 14):
        if g == 8 and PUB == 7: gemm_publish(a)
        if g == 13: trace(a, 49); ones_pads(a); trace(a, 50)
        a("s_barrier")
        if g == PUB: gemm_publish(a)
    stamp(a, 1)
    a("s_branch L_att")
    a(f"""
    L_gidle:
    s_mov_b32 s55, 3
    v_mov_b32 v13, 0
    v_mov_b32 v14, 0
    s_barrier
    s_cmp_ge_u32 s3, 4
    s_cbranch_scc1 L_gidle1
    """)
    ones_pads(a)
    a("s_branch L_att\nL_gidle1:")
    if X("A0EARLY", 0): a("s_barrier"); stamp(a, 2)

S0, S1, O_, CM, QF, KF, V0, V1, IDX, AD0, AD1, PART = 16, 32, 48, 64, 80, 88, 96, 100, 104, 105, 106, 108
def attn_compute(a):
    a(f"""
    L_att:
    v_mov_b32 v{IDX}, 0xdddddddd
    s_lshr_b32 s51, s3, 2
    s_lshl_b32 s51, s51, 13
    s_add_u32 s51, s51, {L_RING}
    v_add_u32 v{AD0}, s51, v5
    v_add_u32 v{AD1}, 0x10000, v{AD0}
    s_lshl_b32 s51, s{S_W4}, 11
    s_add_u32 s51, s51, {L_Q}
    v_add_u32 v8, s51, v6
    """)
    def rd(dst, n, frag):
        st, u = n >> 1, n & 1
        off = slot_addr(st) - L_RING + u * 4096 + frag * 1024
        if X("HALFRD") and n % 2 == 1 and 1 < n < 30:
            if frag == 0 and X("HALFRD") == 1: a("s_nop 1")
            return
        a(f"ds_read_b128 {vr(dst,4)}, v{AD0 if off < 65536 else AD1} offset:{off & 0xffff}")
    def misc_init():
        a(f"v_mov_b32 v{O_}, 0\nv_mov_b32 v{O_+1}, 0")
        for r in range(2, 16, 2): a(f"v_pk_mov_b32 {vr(O_+r,2)}, {vr(O_,2)}, {vr(O_,2)}")
        a(f"""
        s_lshl_b32 s51, s3, 11
        s_add_u32 s51, s51, {L_COMB}
        v_add_u32 v107, s51, v6
        v_xor_b32 v124, 0x2000, v107
        s_lshl_b32 s51, s3, 8
        s_add_u32 s51, s51, {L_SYNC + 4096}
        v_lshl_add_u32 v125, v0, 2, s51
        v_xor_b32 v126, 0x400, v125
        s_lshl_b32 s51, s{S_W4}, 8
        v_lshl_add_u32 v9, v0, 2, s51
        """)
    if X("A0EARLY", 0): a("s_cmp_ge_u32 s3, 4\ns_cbranch_scc1 L_att0")
    misc_init()
    if X("IDLEPF", 0): a("s_waitcnt vmcnt(0)")
    if X("ASTORE", 6) in (7, 8):
        a("s_cmp_ge_u32 s3, 4\ns_cbranch_scc0 L_att00")
        for m in range(3 if X("ASTORE", 6) == 7 else 1): gemm_store(a, m)
        a("L_att00:")
    a("s_waitcnt lgkmcnt(0)\ns_barrier\nL_att0:")
    if not X("A0EARLY", 0): stamp(a, 2)
    trace(a, 51)
    a(f"""
    ds_read_b128 {vr(QF,4)}, v8
    ds_read_b128 {vr(QF+4,4)}, v8 offset:1024
    """)
    rd(KF, 0, 0); rd(KF + 4, 0, 1); rd(V0, 0, 2)
    a("s_waitcnt lgkmcnt(3)")
    zero_qpad(a, QF)
    a(f"""
    s_waitcnt lgkmcnt(1)
    s_nop 0
    v_mfma_f32_32x32x16_bf16 {vr(S0,16)}, {vr(KF,4)}, {vr(QF,4)}, 0
    v_mfma_f32_32x32x16_bf16 {vr(S0,16)}, {vr(KF+4,4)}, {vr(QF+4,4)}, {vr(S0,16)}
    """)
    rd(KF, 1, 0); rd(KF + 4, 1, 1)
    a(f"""
    s_cmp_ge_u32 s3, 4
    s_cbranch_scc1 L_g1m
    s_nop 7
    v_max3_f32 v7, v{S0}, v{S0+1}, v{S0+2}
    v_max3_f32 v8, v{S0+3}, v{S0+4}, v{S0+5}
    v_max3_f32 v7, v7, v{S0+6}, v{S0+7}
    v_max3_f32 v8, v8, v{S0+8}, v{S0+9}
    v_max3_f32 v7, v7, v{S0+10}, v{S0+11}
    v_max3_f32 v8, v8, v{S0+12}, v{S0+13}
    v_max3_f32 v7, v7, v{S0+14}, v{S0+15}
    v_max_f32 v7, v7, v8
    v_mov_b32 v8, v7
    s_nop 1
    v_permlane32_swap_b32 v7, v8
    v_max_f32 v7, v7, v8
    v_sub_f32 v{CM}, {hex(f2u(-float(X("BIAS", 104))))}, v7
    ds_write_b32 v9, v{CM}
    s_branch L_havem
    L_g1m:
    """)
    if X("A0EARLY", 0): misc_init()
    else: a("s_setprio 3")
    if X("ASTORE", 6) == 6:
        for m in range(3): gemm_store(a, m)
    if X("ASTORE", 6) == 8:
        for m in range(1, 3): gemm_store(a, m)
    if X("ASTORE", 6) == 9:
        for m in range(2): gemm_store(a, m)
    trace(a, 52)
    a(f"""
    s_barrier
    ds_read_b32 v{CM}, v9
    s_waitcnt lgkmcnt(0)
    L_havem:
    v_mov_b32 v{CM+1}, v{CM}
    """)
    trace(a, 53)
    for r in range(0, 16, 2): a(f"v_pk_add_f32 {vr(S0+r,2)}, {vr(S0+r,2)}, {vr(CM,2)}")
    for r in range(2, 16, 2): a(f"v_pk_mov_b32 {vr(CM+r,2)}, {vr(CM,2)}, {vr(CM,2)}")
    def step(n, grp=None):
        Sc = S0 if n % 2 == 0 else S1
        Sn = S1 if n % 2 == 0 else S0
        def ex(lo, hi):
            for r in range(lo, hi): a(f"v_exp_f32 v{Sc+r}, v{Sc+r}")
        last = n == 31
        PR = X("PRIO", 1)
        if PR == 1 and 0 < n:
            lad = os.environ.get("LAD", "0210")
            if lad[n % 4] != "x": a(f"s_setprio {lad[n % 4]}")
        e0, e1_, e2_, e3_ = [int(x) for x in os.environ.get("SPL", "2,5,8,12").split(",")]
        WM = X("WM", 3) if 0 < n < 30 else 3
        ex(0, e0)
        if n > 0:
            a(f"s_waitcnt lgkmcnt({1 if last else {3: 3, 2: 1, 1: 0}[WM]})")
            a(f"v_smfmac_f32_32x32x32_bf16 {vr(O_,16)}, {vr(V1,4)}, {vr(Sn+8,8)}, v{IDX}")
        rd(V1, n, 3)
        nk = 0
        if last and grp == 1:
            trace(a, 61)
            a("s_barrier")
            trace(a, 62)
            for i in range(4): a(f"ds_read_b128 {vr(PART+4*i,4)}, v107 offset:{i*1024}")
            nk = 4
        ex(e0, e1_)
        if not last:
            if WM == 3: a(f"s_waitcnt lgkmcnt({2 if n > 0 else 1})")
            a(f"v_mfma_f32_32x32x16_bf16 {vr(Sn,16)}, {vr(KF,4)}, {vr(QF,4)}, {vr(CM,16)}")
        ex(e1_, e2_)
        if not last:
            a(f"v_mfma_f32_32x32x16_bf16 {vr(Sn,16)}, {vr(KF+4,4)}, {vr(QF+4,4)}, {vr(Sn,16)}")
        if n + 2 < 32:
            if n in (0, 1, 2, 3, 4, 28, 29): trace(a, {0: 54, 1: 55, 2: 56, 3: 57, 4: 58, 28: 59, 29: 60}[n])
            if n in ABAR:
                if n == 0: a("s_cmp_ge_u32 s3, 4\ns_cbranch_scc1 L_nb0\ns_barrier\nL_nb0:")
                else: a("s_barrier")
                if PR == 1: a(f"s_setprio {X('PTOP', 2)}")
                if n == 28 and X("ENDP", 0): a("s_cmp_ge_u32 s3, 4\ns_cbranch_scc1 L_ep\ns_setprio 2\nL_ep:")
            rd(KF, n + 2, 0); rd(KF + 4, n + 2, 1); nk = 2
        ex(e2_, e3_)
        if WM > 1: a(f"s_waitcnt lgkmcnt({1 + nk})")
        a(f"v_smfmac_f32_32x32x32_bf16 {vr(O_,16)}, {vr(V0,4)}, {vr(Sc,8)}, v{IDX}")
        if not last: rd(V0, n + 1, 2)
        if n == 30: a("s_nop 1")
        AS = {0: {2: [0, 1], 3: [2]}, 1: {1: [0], 2: [1], 3: [2]}, 2: {3: [0, 1, 2]}, 3: {2: [0, 1, 2]}, 4: {0: [0, 1, 2]}, 5: {0: [0, 1], 1: [2]}, 6: {}, 7: {}, 8: {}, 9: {4: [2]}}[X("ASTORE", 6)]
        if n in AS or n == X("APUB", 5):
            L = a.lab("g1")
            a(f"s_cmp_ge_u32 s3, 4\ns_cbranch_scc0 {L}")
            if n in AS:
                for m in AS[n]: gemm_store(a, m)
            else: gemm_publish(a)
            a(f"{L}:")
        ex(e3_, 16)
        if last:
            a("s_waitcnt lgkmcnt(0)")
            a("s_barrier" if grp == 1 else "s_nop 0")
            a(f"v_smfmac_f32_32x32x32_bf16 {vr(O_,16)}, {vr(V1,4)}, {vr(S1+8,8)}, v{IDX}")
    for n in range(32): step(n, 0)
    stamp(a, 3); trace(a, 112)
    a(f"""
    s_lshl_b32 s51, s{S_QB}, 2
    s_add_u32 s51, s51, s{S_W4}
    s_lshl_b32 s51, s51, 4
    s_add_u32 s51, s51, s{S_HD}
    s_lshl_b32 s51, s51, 11
    s_add_u32 s51, s51, {OB}
    s_mov_b32 s62, {hex(f2u(2.0**-90))}
    s_setprio 2
    s_cmp_ge_u32 s3, 4
    s_nop 1
    s_cbranch_scc1 L_fin1
    """)
    x, y, r, rm, pk = S1, S1 + 1, S1 + 2, S1 + 4, S1 + 8
    for hf in range(2):
        keep, send = O_ + 8 * hf, O_ + 8 * (1 - hf)
        real, padg, M = (keep + 4, keep, MA) if hf == 0 else (keep, keep + 4, MB)
        if hf: a("L_fin1:")
        a(f"""
        ds_write_b128 v107, {vr(send,4)}
        v_cndmask_b32 v{x}, v{O_+12}, v{O_}, s[{MODD}:{MODD+1}]
        ds_write_b128 v107, {vr(send+4,4)} offset:1024
        ds_write_b32 v125, v{x}
        s_waitcnt lgkmcnt(0)
        s_barrier
        ds_read_b32 v{y}, v126
        ds_read_b128 {vr(PART,4)}, v124
        ds_read_b128 {vr(PART+4,4)}, v124 offset:1024
        s_waitcnt lgkmcnt(2)
        v_add_f32 v{x}, v{x}, v{y}
        v_mov_b32 v{y}, v{x}
        s_waitcnt lgkmcnt(0)
        {"s_nop 0" if X("E2L", 1) else "s_barrier"}
        v_permlane32_swap_b32 v{x}, v{y}
        """)
        for k in range(0, 8, 2): a(f"v_pk_add_f32 {vr(keep+k,2)}, {vr(keep+k,2)}, {vr(PART+k,2)}")
        a(f"""
        v_cndmask_b32 v{x}, v{y}, v{x}, s[{MODD}:{MODD+1}]
        v_maximum3_f32 v8, |v{real}|, |v{real+1}|, |v{real+2}|
        v_rcp_f32 v{r}, v{x}
        v_maximum3_f32 v9, |v{padg}|, |v{padg+1}|, |v{padg+2}|
        v_maximum3_f32 v8, v8, |v{real+3}|, |v{real+3}|
        v_maximum3_f32 v9, v9, |v{padg+3}|, v{x}
        v_cmp_gt_f32 s[60:61], s62, v8
        v_maximum3_f32 v9, v9, v8, v8
        v_cndmask_b32 v{rm}, v{r}, 0, s[{M}:{M+1}]
        v_cmp_ngt_f32 vcc, {'-1.0' if X('FORCEFB') else hex(f2u(2.0**120))}, v9
        v_pk_mul_f32 {vr(real,2)}, {vr(real,2)}, {vr(r,2)} op_sel_hi:[1,0]
        s_or_b64 vcc, vcc, s[60:61]
        s_cbranch_scc1 L_fallback
        v_pk_mul_f32 {vr(real+2,2)}, {vr(real+2,2)}, {vr(r,2)} op_sel_hi:[1,0]
        v_pk_mul_f32 {vr(padg,2)}, {vr(padg,2)}, {vr(rm,2)} op_sel_hi:[1,0]
        v_pk_mul_f32 {vr(padg+2,2)}, {vr(padg+2,2)}, {vr(rm,2)} op_sel_hi:[1,0]
        """)
        for k in range(4): a(f"v_cvt_pk_bf16_f32 v{pk+k}, v{keep+2*k}, v{keep+2*k+1}")
        a(f"buffer_store_dwordx4 {vr(pk,4)}, v6, {WS}, s51 offen offset:{1024*hf} sc1")
        trace(a, 113)
        if X("E2L", 1): a("s_barrier")
        if hf == 0: a("s_branch L_g0o")
    a(f"""
    s_branch L_end
    L_g0o:
    s_setprio 0
    s_cmp_eq_u32 s{S_ACT2}, 0
    s_cbranch_scc1 L_end
    s_waitcnt vmcnt(0)
    """)
    oproj_params(a, "B")
    oproj_init(a)
    a.vm_reset()
    oproj_loads(a)
    a("s_branch L_oproj")
    fallback(a)

def fallback(a):
    a(f"""
    L_fallback:
    {"s_barrier" if X("E2L", 1) else ""}
    v_and_b32 v7, 31, v3
    s_lshl_b32 s54, s{S_ODD}, 2
    v_subrev_u32 v8, s54, v7
    v_cmp_gt_u32 s[60:61], 28, v8
    v_mul_u32_u24 v9, 448, v2
    v_lshl_add_u32 v8, v8, 4, v9
    v_add_u32 v8, 256, v8
    v_mov_b32 v7, 0xff800000
    s_add_u32 s54, s{S_P0}, {KB}
    s_mov_b32 s56, 64
    L_fb1:
    buffer_load_dwordx4 {vr(KF,4)}, v5, {WS}, s54 offen sc1
    buffer_load_dwordx4 {vr(KF+4,4)}, v5, {WS}, s54 offen offset:1024 sc1
    s_add_u32 s54, s54, 28672
    s_waitcnt vmcnt(0)
    v_mfma_f32_32x32x16_bf16 {vr(S0,16)}, {vr(KF,4)}, {vr(QF,4)}, 0
    v_mfma_f32_32x32x16_bf16 {vr(S0,16)}, {vr(KF+4,4)}, {vr(QF+4,4)}, {vr(S0,16)}
    s_nop 11
    """)
    for r in range(0, 16, 2): a(f"v_max3_f32 v7, v7, v{S0+r}, v{S0+r+1}")
    a(f"""
    s_sub_u32 s56, s56, 1
    s_cmp_lg_u32 s56, 0
    s_cbranch_scc1 L_fb1
    v_mov_b32 v9, v7
    s_nop 1
    v_permlane32_swap_b32 v7, v9
    v_max_f32 v7, v7, v9
    """)
    for r in range(16): a(f"v_sub_f32 v{CM+r}, 0, v7\nv_mov_b32 v{O_+r}, 0")
    for r in range(8): a(f"v_mov_b32 v{V0+r}, {hex(ONES)}")
    a(f"""
    s_add_u32 s54, s{S_P0}, {KB}
    s_mul_i32 s57, s{S_HD}, {64*1792}
    s_add_u32 s57, s57, {VB - 256}
    s_mov_b32 s56, 64
    L_fb2:
    buffer_load_dwordx4 {vr(KF,4)}, v5, {WS}, s54 offen sc1
    buffer_load_dwordx4 {vr(KF+4,4)}, v5, {WS}, s54 offen offset:1024 sc1
    s_mov_b64 exec, s[60:61]
    buffer_load_dwordx4 {vr(V0,4)}, v8, {WS}, s57 offen sc1
    buffer_load_dwordx4 {vr(V1,4)}, v8, {WS}, s57 offen offset:896 sc1
    s_mov_b64 exec, -1
    s_add_u32 s54, s54, 28672
    s_add_u32 s57, s57, 1792
    s_waitcnt vmcnt(0)
    v_mfma_f32_32x32x16_bf16 {vr(S0,16)}, {vr(KF,4)}, {vr(QF,4)}, {vr(CM,16)}
    v_mfma_f32_32x32x16_bf16 {vr(S0,16)}, {vr(KF+4,4)}, {vr(QF+4,4)}, {vr(S0,16)}
    s_nop 11
    """)
    for r in range(16): a(f"v_exp_f32 v{S0+r}, v{S0+r}")
    a(f"""
    s_nop 1
    v_smfmac_f32_32x32x32_bf16 {vr(O_,16)}, {vr(V0,4)}, {vr(S0,8)}, v{IDX}
    v_smfmac_f32_32x32x32_bf16 {vr(O_,16)}, {vr(V1,4)}, {vr(S0+8,8)}, v{IDX}
    s_sub_u32 s56, s56, 1
    s_cmp_lg_u32 s56, 0
    s_nop 7
    s_cbranch_scc1 L_fb2
    s_nop 7
    """)
    a("s_cmp_ge_u32 s3, 4\ns_cbranch_scc1 L_fbh1")
    finish_O(a, O_, S1, 51, True, halves=(0,))
    a("s_branch L_g0o\nL_fbh1:")
    finish_O(a, O_, S1, 51, True, halves=(1,))
    a("s_branch L_end")

OF, OACC, OW, OAD = 16, 80, 112, 144
def oproj_params(a, br):
    Ob, LW, red, fl, oo = (OA, L_WOA, L_RED, 0, 0) if br == "A" else (OB, L_WOB, L_COMB, 16, 896)
    a(f"""
    s_and_b32 s55, s{S_W4}, 1
    s_lshl_b32 s52, s{S_RB2}, 1
    s_add_u32 s55, s55, s52
    s_lshr_b32 s51, s{S_W4}, 1
    s_lshl_b32 s52, s55, 15
    s_lshl_b32 s53, s51, 14
    s_add_u32 s52, s52, s53
    s_add_u32 s52, s52, {Ob}
    s_mul_i32 s55, s55, {32*1792}
    s_lshl_b32 s53, s{S_CB2}, 7
    s_add_u32 s55, s55, s53
    s_lshl_b32 s53, s51, 6
    s_add_u32 s55, s55, s53
    s_add_u32 s55, s55, {oo}
    s_lshl_b32 s53, s{S_W4}, 12
    s_xor_b32 s54, s53, 0x2000
    s_add_u32 s53, s53, {red}
    s_add_u32 s54, s54, {red}
    s_mul_i32 s57, s51, {224*128}
    s_add_u32 s57, s57, {LW}
    s_lshl_b32 s58, s{S_W4}, 2
    s_add_u32 s58, s58, {L_SYNC + fl}
    """)
def oproj_init(a):
    w_frag_addr(a, OAD, "0")
    a(f"""
    v_add_u32 v{OAD}, s57, v{OAD}
    v_xor_b32 v{OAD+1}, 64, v{OAD}
    v_add_u32 v{OAD+2}, s53, v6
    v_add_u32 v{OAD+3}, s54, v6
    v_mov_b32 v{OAD+4}, s58
    v_xor_b32 v{OAD+5}, 8, v{OAD+4}
    v_mov_b32 v{OAD+6}, 1
    v_mul_u32_u24 v{OAD+7}, 1792, v1
    v_lshl_add_u32 v{OAD+7}, v2, 4, v{OAD+7}
    v_add_u32 v{OAD+8}, 0x1000, v6
    v_add_u32 v{OAD+9}, 0x2000, v6
    v_add_u32 v{OAD+10}, 0x3000, v6
    """)
def o_load(a, k):
    for s in range(2):
        f = 2 * k + s
        va = 6 if f < 4 else OAD + 7 + f // 4
        a.vmem(f"buffer_load_dwordx4 {vr(OF+4*f,4)}, v{va}, {WS}, s52 offen offset:{(f&3)*1024} sc1", f"of{k}")
def oproj_loads(a):
    for k in range(8): o_load(a, k)
def oproj_main(a):
    a("L_oproj:")
    if X("TSTAMP"): stamp(a, 2)
    trace(a, 114)
    NB = 4
    def wlist(j):
        if j >= 16: return []
        k, st = j >> 1, j & 1
        row = 28 * k - 4 * (k & 1) + 16 * st
        r = []
        for n in range(2):
            f = OW + 8 * (j % NB) + 4 * n
            r.append(f"ds_read_b64_tr_b16 {vr(f,2)}, v{OAD+n} offset:{row*128}")
            r.append(f"ds_read_b64_tr_b16 {vr(f+2,2)}, v{OAD+n} offset:{row*128+512}")
        return r
    def clist(k):
        o = OF + 8 * k
        return [f"v_max3_u32 v7, v{o}, v{o+1}, v{o+2}", f"v_max3_u32 v4, v{o+3}, v{o+4}, v{o+5}", f"v_max3_u32 v7, v7, v{o+6}, v{o+7}",
                "v_max_u32 v7, v7, v4", "v_cmp_eq_u32 vcc, -1, v7"]
    def check(k):
        for x in clist(k): a(x)
    for j in range(NB - 1):
        for x in wlist(j): a(x)
    a("s_mov_b32 s63, 0\ns_movk_i32 s56, 0\ns_waitcnt vmcnt(14)")
    check(0)
    a("s_waitcnt lgkmcnt(8)")
    for j in range(16):
        k = j >> 1
        if j % 2 == 0: a(f"s_cbranch_vccnz L_oretry\nL_ob{k}:")
        w = wlist(j + NB - 1)
        nxt = min(j + NB - 1, 15) - (j + 1)
        fills = [w[0:2], w[2:4]]
        if j % 2 == 1 and k < 7:
            c = clist(k + 1)
            fills = [w[0:4] + [f"s_waitcnt vmcnt({12 - 2*k})"], c + [f"s_movk_i32 s56, {k+1}"]]
        if j < 15: fills[1] = fills[1] + [f"s_waitcnt lgkmcnt({4*nxt})"]
        for n in range(2):
            d = vr(OACC + 16 * n, 16)
            a(f"v_mfma_f32_32x32x16_bf16 {d}, {vr(OW+8*(j%NB)+4*n,4)}, {vr(OF+4*j,4)}, {d if j else 0}")
            for x in fills[n]: a(x)
    a("s_branch L_odone")
    a(f"L_oretry:\ns_mov_b32 s60, 0\ns_brev_b32 s61, 1\ns_waitcnt vmcnt(0)\nL_ore2:\ns_mov_b32 s59, 0")
    for k in range(8):
        a(f"s_cmp_gt_u32 s56, {k}\ns_cbranch_scc1 L_o2_{k}")
        check(k)
        a(f"s_nop 0\ns_cbranch_vccz L_o2_{k}\ns_bitset1_b32 s59, {k}")
        if X("RGATE", 0):
            a(f"v_readlane_b32 s62, v{OF+8*k+7}, 63\ns_nop 0\ns_cmp_lg_u32 s62, -1\ns_cselect_b64 exec, -1, s[60:61]")
        o_load(a, k)
        if X("RGATE", 0): a("s_mov_b64 exec, -1")
        a(f"L_o2_{k}:")
    a(f"""
    s_add_u32 s63, s63, 1
    s_waitcnt vmcnt(0)
    s_cmp_ge_u32 s63, {SPIN_MAX}
    s_cbranch_scc1 L_oret
    s_bitcmp1_b32 s59, s56
    s_cbranch_scc0 L_oret
    """)
    for k in range(8):
        a(f"s_cmp_eq_u32 s56, {k}\ns_cbranch_scc0 L_o4_{k}")
        check(k)
        a(f"s_nop 0\ns_cbranch_vccz L_ob{k}\ns_branch L_osl\nL_o4_{k}:")
    a("L_osl:")
    if X("OSLEEP", 1): a(f"s_sleep {X('OSLEEP', 1)}")
    a("s_branch L_ore2\nL_oret:")
    for k in range(7): a(f"s_cmp_eq_u32 s56, {k}\ns_cbranch_scc1 L_ob{k}")
    a("s_branch L_ob7\nL_odone:")
    if TRACE: a(f"v_writelane_b32 v166, s63, 63")
    trace(a, 116)
    if X("TSTAMP"): stamp(a, 3)
    a("s_cmp_eq_u32 s51, 0\ns_nop 7\ns_mov_b32 s63, 0\ns_cbranch_scc1 L_ok0")
    for var in (1, 0):
        keep, send = OACC + 16 * var, OACC + 16 * (1 - var)
        if var == 0: a("L_ok0:")
        for i in range(4): a(f"ds_write_b128 v{OAD+2}, {vr(send+4*i,4)} offset:{i*1024}")
        a(f"ds_write_b32 v{OAD+4}, v{OAD+6}\nL_ow{var}:\nds_read_b32 v7, v{OAD+5}")
        for i in range(4): a(f"ds_read_b128 {vr(OF+4*i,4)}, v{OAD+3} offset:{i*1024}")
        a(f"""
        s_add_u32 s63, s63, 1
        s_waitcnt lgkmcnt(4)
        v_cmp_eq_u32 vcc, 0, v7
        s_cmp_ge_u32 s63, {SPIN_MAX*8}
        s_cbranch_scc1 L_og{var}
        s_cbranch_vccnz L_ow{var}
        L_og{var}:
        """)
        for hf in range(2):
            a(f"s_waitcnt lgkmcnt({2 - 2*hf})")
            for r in range(8*hf, 8*hf+8, 2): a(f"v_pk_add_f32 {vr(keep+r,2)}, {vr(keep+r,2)}, {vr(OF+r,2)}")
            for r in range(4*hf, 4*hf+4): a(f"v_cvt_pk_bf16_f32 v{OF+16+r}, v{keep+2*r}, v{keep+2*r+1}")
            if os.environ.get("OUTA"):
                L = a.lab("oa")
                a(f"s_cmp_ge_u32 s3, 8\ns_cbranch_scc0 {L}\nbuffer_store_dwordx4 {vr(OF+16+4*hf,4)}, v{OAD+7}, {sr(SRD_OUT)}, s55 offen offset:{32*hf} {os.environ['OUTA']}\ns_branch {L}d\n{L}:")
            a(f"buffer_store_dwordx4 {vr(OF+16+4*hf,4)}, v{OAD+7}, {sr(SRD_OUT)}, s55 offen offset:{32*hf} {os.environ.get('OUTF', '')}")
            if os.environ.get("OUTA"): a(f"{L}d:")
        if var == 1: a("s_branch L_oe")
    a("L_oe:")
    if X("TSTAMP"): stamp(a, 1)
    trace(a, 117)
    if TRACE: a("s_waitcnt vmcnt(0)")
    trace(a, 118)

FL, SNV = 132, 158
VW, VVA, VVB, VR0, VR1 = 161, 162, 163, 164, 167
def qkv_flag_loads(a, F):
    vt = FL
    a(f"""
    s_lshr_b32 s51, s{S_P0}, 11
    s_add_u32 s52, s{S_P0}, 1536
    s_lshr_b32 s52, s52, 11
    s_sub_u32 s52, s52, s51
    s_lshl_b32 s52, s52, 12
    v_mul_u32_u24 v7, s52, v2
    s_lshl_b32 s51, s51, 12
    s_add_u32 s79, s51, {F}
    s_lshl_b32 s51, s{S_QB}, 2
    """)
    if F == FB: a("s_add_u32 s52, s51, 3")
    else: a(f"s_add_u32 s52, s51, s{S_W4}\ns_max_u32 s51, s52, 1\ns_sub_u32 s51, s51, 1")
    a(f"""
    s_mul_i32 s51, s51, 86
    s_lshr_b32 s51, s51, 8
    s_mul_i32 s52, s52, 86
    s_lshr_b32 s52, s52, 8
    v_max_u32 v4, s51, v1
    v_min_u32 v4, s52, v4
    v_lshl_add_u32 v{vt+7}, v4, 7, v7
    """)
    if F == FB: a(f"v_min_u32 v4, 21, v1")
    a(f"""
    v_lshl_add_u32 v{vt+6}, v4, 7, v7
    v_add_u32 v{vt+6}, {14*4096}, v{vt+6}
    s_add_u32 s80, s79, {14*4096}
    """)
    a.vmem(f"buffer_load_dwordx2 {vr(vt,2)}, v{vt+7}, {WS}, s79 offen sc1", "qf")
    a.vmem(f"buffer_load_dwordx2 {vr(vt+2,2)}, v{vt+6}, {WS}, s79 offen sc1", "qf")
    a.vmem(f"buffer_load_dwordx2 {vr(vt+4,2)}, v{vt+6}, {WS}, s80 offen sc1", "qf")
def qkv_flag_test(a):
    vt = FL
    a(f"""
    v_cmp_ne_u64 vcc, s[{NON}:{NON+1}], {vr(vt,2)}
    v_cmp_ne_u64 s[52:53], s[{NON}:{NON+1}], {vr(vt+2,2)}
    v_cmp_ne_u64 s[54:55], s[{NON}:{NON+1}], {vr(vt+4,2)}
    s_add_u32 s63, s63, 1
    s_or_b64 s[56:57], s[52:53], vcc
    s_or_b64 s[56:57], s[56:57], s[54:55]
    """)
def qkv_flag_check(a):
    vt = FL
    L = a.lab("qf")
    a.vm_wait("qf")
    a(f"s_mov_b32 s63, 0\n{L}:")
    qkv_flag_test(a)
    a(f"""
    s_cbranch_scc0 {L}_ok
    s_cmp_ge_u32 s63, {SPIN_MAX}
    s_cbranch_scc1 {L}_ok
    s_sleep {X("QSLEEP", 1)}
    s_or_b64 exec, vcc, 1
    buffer_load_dwordx2 {vr(vt,2)}, v{vt+7}, {WS}, s79 offen sc1
    s_or_b64 exec, s[52:53], 1
    buffer_load_dwordx2 {vr(vt+2,2)}, v{vt+6}, {WS}, s79 offen sc1
    s_or_b64 exec, s[54:55], 1
    buffer_load_dwordx2 {vr(vt+4,2)}, v{vt+6}, {WS}, s80 offen sc1
    s_mov_b64 exec, -1
    s_waitcnt vmcnt(0)
    s_branch {L}
    {L}_ok:
    """)

def service(a):
    a("s_setprio 3")
    a.vm_reset()
    a(f"""
    v_lshrrev_b32 v1, 3, v0
    v_and_b32 v2, 7, v0
    v_lshrrev_b32 v3, 1, v1
    s_and_b32 s51, s3, 1
    s_lshl_b32 s51, s51, 2
    v_add_u32 v4, s51, v3
    v_xor_b32 v4, v2, v4
    v_lshlrev_b32 v4, 4, v4
    v_mul_u32_u24 v5, 896, v1
    v_add_u32 v8, v4, v5
    v_add_u32 v9, 28672, v8
    v_add_u32 v10, 57344, v8
    v_and_b32 v3, 1, v3
    v_lshlrev_b32 v3, 2, v3
    v_xor_b32 v4, v2, v3
    v_lshlrev_b32 v4, 4, v4
    v_add_u32 v{VW}, v4, v5
    v_mul_u32_u24 v5, 2688, v1
    v_add_u32 v11, v4, v5
    v_add_u32 v12, {32*2688}, v11
    v_add_u32 v13, 128, v11
    v_add_u32 v14, 128, v12
    s_lshl_b32 s51, s{S_W4}, 3
    s_add_u32 s56, s{S_ROW}, s51
    s_mul_i32 s56, s56, 896
    s_mul_i32 s57, s51, 2688
    s_lshl_b32 s52, s{S_COL}, 6
    s_add_u32 s57, s57, s52
    s_lshl_b32 s58, s{S_W4}, 10
    s_add_u32 s59, s{S_RB}, s{S_CB}
    """)
    R = X("ROT", 7)
    if R == 7: a("s_mul_i32 s51, s59, 37\ns_lshr_b32 s51, s51, 8\ns_mul_i32 s51, s51, 7\ns_sub_u32 s59, s59, s51")
    if R == 2: a("s_and_b32 s59, s59, 1\ns_mul_i32 s59, s59, 3")
    if R == 3: a("s_mul_i32 s51, s59, 86\ns_lshr_b32 s51, s51, 8\ns_mul_i32 s51, s51, 3\ns_sub_u32 s59, s59, s51\ns_lshl_b32 s59, s59, 1")
    if R == 4: a("s_and_b32 s59, s59, 3\ns_mul_i32 s59, s59, 7\ns_lshr_b32 s59, s59, 2")
    if R == 0: a("s_mov_b32 s59, 0")
    a("s_waitcnt lgkmcnt(0)")
    srd(a, SRD_XB, P + 6, 1835008); srd(a, SRD_WB, P + 8, 448 * 2688)
    a(f"s_cmp_eq_u32 s{S_ACT}, 0\ns_cbranch_scc1 L_sv_nog")
    def issue(g):
        Xs, W = (SRD_XB, SRD_WB) if g < 7 or X('FAKEA') else (SRD_XA, SRD_WA)
        slot = (g % GNS) * GSLOT
        if g == 7 and X("ROTA", 3) == 7: a(f"s_add_u32 s59, s{S_RB}, s{S_CB}\ns_mul_i32 s51, s59, 37\ns_lshr_b32 s51, s51, 8\ns_mul_i32 s51, s51, 7\ns_sub_u32 s59, s59, s51")
        if g == 7 and X("ROTA", 3) == 2: a(f"s_add_u32 s59, s{S_RB}, s{S_CB}\ns_and_b32 s59, s59, 1\ns_mul_i32 s59, s59, 3")
        if g == 7 and X("ROTA", 3) == 3: a(f"s_add_u32 s59, s{S_RB}, s{S_CB}\ns_mul_i32 s51, s59, 86\ns_lshr_b32 s51, s51, 8\ns_mul_i32 s51, s51, 3\ns_sub_u32 s59, s59, s51\ns_lshl_b32 s59, s59, 1")
        if g == 7 and X("ROTA", 3) == 4: a(f"s_add_u32 s59, s{S_RB}, s{S_CB}\ns_and_b32 s59, s59, 3\ns_mul_i32 s59, s59, 7\ns_lshr_b32 s59, s59, 2")
        if g == 7 and X("ROTA", 3) == 0: a("s_mov_b32 s59, 0")
        a(f"""
        s_lshl_b32 s60, s59, 7
        s_add_u32 s60, s60, s56
        s_mul_i32 s61, s59, {64*2688}
        s_add_u32 s61, s61, s57
        """)
        order = [('x', 0), ('w', 0), ('w', 2), ('x', 1), ('w', 1), ('w', 3), ('x', 2)]
        fill = ["s_add_u32 s59, s59, 1", "s_nop 0", "s_nop 0", "s_nop 0", "s_nop 0", "s_nop 0", "s_cmp_ge_u32 s59, 7"]
        for (kind, u), fl in zip(order, fill):
            if kind == 'x':
                a(f"s_add_u32 m0, s58, {slot + u * 4096}\n{fl}")
                a.vmem(f"buffer_load_dwordx4 v{8+u}, {sr(Xs)}, s60 offen {os.environ.get('XF','')} lds", f"g{g}")
            else:
                j, v = u >> 1, u & 1
                a(f"s_add_u32 m0, s58, {slot + 12288 + j * 8192 + v * 4096}\n{fl}")
                a.vmem(f"buffer_load_dwordx4 v{11 + 2*j + v}, {sr(W)}, s61 offen {os.environ.get('WF','')} lds", f"g{g}")
        a("s_cselect_b32 s59, 0, s59")
    def touch(Xs, W, tag):
        a(f"""
        s_cmp_eq_u32 s{S_W4}, 0
        s_cbranch_scc0 L_t1{tag}
        s_mul_i32 s51, s{S_CB}, {62*128}
        s_mul_i32 s52, s{S_ROW}, 896
        s_add_u32 s51, s51, s52
        v_min_u32 v15, 61, v0
        v_lshl_add_u32 v15, v15, 7, s51
        buffer_load_dword v156, v15, {sr(Xs)}, 0 offen
        L_t1{tag}:
        s_cmp_eq_u32 s{S_W4}, 1
        s_cbranch_scc0 L_t2{tag}
        s_mul_i32 s51, s{S_RB}, {21*2688}
        s_lshl_b32 s52, s{S_COL}, 6
        s_add_u32 s51, s51, s52
        v_min_u32 v15, 41, v0
        v_lshrrev_b32 v157, 1, v15
        v_mul_u32_u24 v157, 2688, v157
        v_and_b32 v15, 1, v15
        v_lshl_add_u32 v15, v15, 7, v157
        v_add_u32 v15, s51, v15
        buffer_load_dword v156, v15, {sr(W)}, 0 offen
        L_t2{tag}:
        """)
        if X("TX2", 0):
            a(f"""
            s_cmp_eq_u32 s{S_W4}, 2
            s_cbranch_scc0 L_t3{tag}
            s_add_u32 s51, s{S_CB}, 6
            s_cmp_ge_u32 s51, 11
            s_cselect_b32 s52, 11, 0
            s_sub_u32 s51, s51, s52
            s_mul_i32 s51, s51, {62*128}
            s_mul_i32 s52, s{S_ROW}, 896
            s_add_u32 s51, s51, s52
            v_min_u32 v15, 61, v0
            v_lshlrev_b32 v15, 7, v15
            buffer_load_dword v156, v15, {sr(Xs)}, s51 offen
            L_t3{tag}:
            s_cmp_eq_u32 s{S_W4}, 3
            s_cbranch_scc0 L_t4{tag}
            s_add_u32 s51, s{S_RB}, 11
            s_cmp_ge_u32 s51, 22
            s_cselect_b32 s52, 22, 0
            s_sub_u32 s51, s51, s52
            s_mul_i32 s51, s51, {21*2688}
            s_lshl_b32 s52, s{S_COL}, 6
            s_add_u32 s51, s51, s52
            v_min_u32 v15, 41, v0
            v_lshrrev_b32 v157, 1, v15
            v_mul_u32_u24 v157, 2688, v157
            v_and_b32 v15, 1, v15
            v_lshl_add_u32 v15, v15, 7, v157
            buffer_load_dword v156, v15, {sr(W)}, s51 offen
            L_t4{tag}:
            """)
    trace(a, 48)
    if X("TB", 0) == 1: touch(SRD_XB, SRD_WB, "b")
    issue(0)
    if X("TB", 0) == 2: touch(SRD_XB, SRD_WB, "b")
    srd(a, SRD_XA, P + 0, 1835008); srd(a, SRD_WA, P + 2, 448 * 2688)
    common_srds(a)
    a(f"""
    s_sub_u32 s51, s3, 8
    s_or_b32 s51, s51, s2
    s_cmp_eq_u32 s51, 0
    s_cbranch_scc0 L_nonon
    v_mov_b32 v18, 0
    v_mov_b32 v19, 0
    s_or_b32 s53, s{NON+1}, 0x80000000
    v_mov_b32 v16, s{NON}
    v_mov_b32 v17, s53
    s_mov_b64 exec, 1
    buffer_atomic_cmpswap_x2 v[16:19], v18, {sr(SRD_DBG)}, 0 offen sc1
    s_mov_b64 exec, -1
    s_nop 1
    L_nonon:
    """)
    A = AttnA(a)
    def sv_setup():
        setup2(a); norm_masks(a)
        a(f"""
        v_mov_b32 v{SNV+2}, 0
        v_mov_b32 v{FL+6}, 0
        v_mov_b32 v{FL+7}, 0
        v_mul_u32_u24 v7, 448, v2
        v_lshl_add_u32 v7, v1, 4, v7
        s_lshl_b32 s51, s{S_ODD}, 6
        s_sub_u32 s51, 256, s51
        v_add_u32 v{VVA}, s51, v7
        v_subrev_u32 v{VVB}, 128, v{VVA}
        v_lshlrev_b32 v{VR0}, 12, v0
        v_add_u32 v{VR0}, {L_RELAY}, v{VR0}
        s_lshl_b32 s51, s{S_W4}, 12
        s_add_u32 s51, s51, {L_RELAY}
        v_mov_b32 v{VR1}, s51
        v_mov_b32 v7, 0
        ds_write_b32 v{VR1}, v7
        """)
        A.masks()
        a("s_mov_b64 s[76:77], s[56:57]\ns_mov_b32 s78, s58")
        oproj_params(a, "A"); oproj_init(a)
        a("s_mov_b64 s[56:57], s[76:77]\ns_mov_b32 s58, s78")
        a("s_waitcnt lgkmcnt(0)")
    def sv_setup_late():
        srd(a, SRD_WOA, P + 4, 448 * 896); srd(a, SRD_WOB, P + 10, 448 * 896)
        a(f"""
        s_lshl_b32 s58, s{S_W4}, 12
        s_mul_i32 s59, s{S_W4}, 28672
        s_add_u32 s59, s59, s{S_P0}
        s_add_u32 s59, s59, {KB}
        s_lshl_b32 s60, s{S_HD}, 6
        s_add_u32 s60, s60, s{S_W4}
        s_mul_i32 s60, s60, 1792
        s_add_u32 s60, s60, {VB - 256}
        """)
    def dma(st):
        a(f"s_add_u32 m0, s58, {slot_addr(st)}\ns_add_u32 s56, s59, {st*4*28672}")
        a.vmem(f"buffer_load_dwordx4 v6, {WS}, s56 offen sc1 lds", f"a{st}")
        a.vmem(f"buffer_load_dwordx4 v6, {WS}, s56 offen offset:1024 sc1 lds", f"a{st}")
        a(f"s_add_u32 m0, s58, {slot_addr(st) + 2048}\ns_add_u32 s57, s60, {st*4*1792}\ns_mov_b64 exec, s[{VMASK}:{VMASK+1}]")
        a.vmem(f"buffer_load_dwordx4 v{VVA}, {WS}, s57 offen sc1 lds", f"a{st}")
        a.vmem(f"buffer_load_dwordx4 v{VVB}, {WS}, s57 offen offset:1024 sc1 lds", f"a{st}")
        a("s_mov_b64 exec, -1")
    APRE = X("APRE", 3)
    def relay_set():
        a(f"v_mov_b32 v7, 1\ns_mov_b64 exec, 14\nds_write_b32 v{VR0}, v7\ns_mov_b64 exec, -1")
    def first_dmas():
        a(f"""
        s_mul_i32 s56, s{S_QB}, {4*28672}
        s_add_u32 s56, s56, s59
        s_lshr_b32 s51, s58, 1
        s_add_u32 m0, s51, {L_Q}
        s_sub_u32 s56, s56, {KB}
        """)
        a.vmem(f"buffer_load_dwordx4 v6, {WS}, s56 offen sc1 lds", "a0")
        a.vmem(f"buffer_load_dwordx4 v6, {WS}, s56 offen offset:1024 sc1 lds", "a0")
        for st in range(X('APRE0', 1)): dma(st)
    if X("TA", 3) == -1: touch(SRD_XA, SRD_WA, "a")
    issued = 1
    while issued < X("PRE", 2): issue(issued); issued += 1
    if X("TB", 0) == 3: touch(SRD_XB, SRD_WB, "b")
    SVAT = X("SVAT", 7)
    if SVAT < 0: sv_setup()
    FBAT = X("FBAT", 11)
    KVAT = X("KVAT", 13)
    def flags_uniform(tag):
        nonce_load(a, SNV)
        keep = list(a.vm)
        a(f"s_cmp_eq_u32 s{S_W4}, 0\ns_cbranch_scc1 L_fu{tag}")
        for i in range(3): nonce_load(a, SNV)
        a(f"s_branch L_fud{tag}\nL_fu{tag}:")
        a.vm = keep
        qkv_flag_loads(a, FB)
        a(f"L_fud{tag}:")
    for c in range(KVAT + 1):
        trace(a, 1 + 3*c)
        a.vm_wait(f"g{c}")
        trace(a, 2 + 3*c)
        a("s_barrier")
        trace(a, 3 + 3*c)
        if c == 0: stamp(a, 1)
        if c == X("TA", 3) and not X("TAS"): touch(SRD_XA, SRD_WA, "a")
        if X("TAS") and X("TA", 3) <= c < X("TA", 3) + X("TAS"):
            a(f"s_lshr_b32 s51, s2, 3\ns_and_b32 s51, s51, {X('TAS') - 1}\ns_cmp_eq_u32 s51, {c - X('TA', 3)}\ns_cbranch_scc0 L_ts{c}")
            touch(SRD_XA, SRD_WA, f"a{c}")
            a(f"L_ts{c}:")
        if c == FBAT and X("FBPRE", 1): flags_uniform(0)
        lim = min(13, c + GNS - 1)
        if c < 7: lim = min(lim, X("HOLD", 9))
        while issued <= lim: issue(issued); issued += 1
        if c == SVAT: sv_setup()
        if c == 10: sv_setup_late()
        if c == FBAT and not X("FBPRE", 1): flags_uniform(0)
    a.vm_wait("qf")
    keep2 = list(a.vm)
    a("s_branch L_sv_att\nL_sv_nog:")
    common_srds(a)
    sv_setup(); sv_setup_late()
    for i in range(X("IDLEW", 1)): a("s_sleep 64")
    flags_uniform(1)
    a("s_barrier\ns_waitcnt vmcnt(0)\nL_sv_att:")
    a.vm = keep2
    a(f"s_cmp_eq_u32 s{S_W4}, 0\ns_cbranch_scc0 L_relay")
    nonce_get(a, SNV)
    qkv_flag_check(a)
    relay_set()
    a(f"""
    s_branch L_relay_ok
    L_relay:
    s_mov_b32 s63, 0
    L_relay_w:
    ds_read_b32 v7, v{VR1}
    s_add_u32 s63, s63, 1
    s_waitcnt lgkmcnt(0)
    v_cmp_eq_u32 vcc, 0, v7
    s_cmp_ge_u32 s63, {SPIN_MAX*16}
    s_cbranch_scc1 L_relay_ok
    s_cbranch_vccnz L_relay_w
    L_relay_ok:
    """)
    stamp(a, 2); trace(a, 44)
    first_dmas()
    if KVAT == 12:
        a.vm_wait("g13")
        trace(a, 41)
        a(f"s_cmp_eq_u32 s{S_ACT}, 0\ns_cbranch_scc1 L_no13\ns_barrier\nL_no13:")
        trace(a, 42)
    for st in range(X("APRE0", 1), APRE): dma(st)
    nonce_get(a, SNV)
    def wo_dma(W, lds, i0, n, tag):
        a(f"""
        s_mul_i32 s61, s{S_W4}, {8*896}
        s_lshl_b32 s62, s{S_CB2}, 7
        s_add_u32 s61, s61, s62
        s_lshl_b32 s62, s{S_W4}, 10
        """)
        for j in range(i0, i0 + n):
            a(f"s_add_u32 m0, s62, {lds + j*4096}\ns_add_u32 s63, s61, {j*32*896}")
            a.vmem(f"buffer_load_dwordx4 v{VW}, {sr(W)}, s63 offen lds", tag)
    issued = APRE
    bars = [-2] + ABAR
    for i, n in enumerate(bars):
        need = bars[i + 1] // 2 if i + 1 < len(bars) else 15
        trace(a, 64 + 3*i)
        a.vm_wait(f"a{need}", "lgkmcnt(0)" if i == 0 else "")
        trace(a, 65 + 3*i)
        a("s_barrier")
        trace(a, 66 + 3*i)
        if X("PSTAMP") and n == 20: stamp(a, 1)
        if X("PSTAMP") and n == 8: stamp(a, 2)
        if n == 12 and not X("FAD", 0) and not X("FAE", 4): qkv_flag_loads(a, FA)
        if n == 12 and X("FAE", 4) and X("AFIRST", 0): qkv_flag_check(a); A.loads()
        if n == 20: A.pub()
        while issued <= min(15, max(n // 2 - 1, -1) + ANS) and (n >= 0 or issued <= X('A0ISS', 0)): dma(issued); issued += 1
        wb = dict(zip((4, 8, 12, 16, 20, 24), [int(x) for x in os.environ.get("WB", "4,6,0,4,0,0").split(",")]))
        assert sum(wb.values()) == 14
        if n == X("POI", 8) and X("POIF", 0): A.poison()
        if wb.get(n) and n != 12: wo_dma(SRD_WOB, L_WOB, sum(v for k, v in wb.items() if k < n), wb[n], "wob")
        if n == X("POI", 8) and not X("POIF", 0): A.poison()
        if n == X("WT", -9):
            a(f"""
            s_and_b32 s61, s{S_RB2}, 3
            s_lshl_b32 s61, s61, 2
            s_add_u32 s61, s61, s{S_W4}
            s_mul_i32 s61, s61, {28*896}
            s_lshl_b32 s62, s{S_CB2}, 7
            s_add_u32 s61, s61, s62
            v_min_u32 v15, 27, v0
            v_mul_u32_u24 v15, 896, v15
            """)
            a.vmem(f"buffer_load_dword v156, v15, {sr(SRD_WOA)}, s61 offen", "wt")
        if n == 12:
            if X("FAD", 0): qkv_flag_loads(a, FA)
            if not (X("FAE", 4) and X("AFIRST", 0)): qkv_flag_check(a); A.loads()
        if n == 8 and X("FAE", 4):
            if X("FAW", 0): a.vm_wait("a9")
            qkv_flag_loads(a, FA)
        if n == 16:
            if not X("NOAA"): A.qk(); A.pv(); a("s_nop 7")
            A.fin()
        if n == 20: wo_dma(SRD_WOA, L_WOA, 0, 2, "woa")
        if n == 24:
            assert issued == 16
            wo_dma(SRD_WOA, L_WOA, 2, 8, "woa")
            oproj_params(a, "A")
            a.vm_wait("woa")
            A.oflag_load()
        if n == 28:
            wo_dma(SRD_WOA, L_WOA, 10, 4, "woa")
            A.oflag_check()
            for k in range(X("OAK", 8)): o_load(a, k)
    a.vm_wait("woa")
    assert "wob" not in a.vm
    a(f"""
    v_mov_b32 v7, {L_SYNC}
    v_lshl_add_u32 v7, v0, 2, v7
    v_mov_b32 v4, 0
    s_mov_b64 exec, 0xff
    ds_write_b32 v7, v4
    s_mov_b64 exec, -1
    s_waitcnt lgkmcnt(0)
    s_barrier
    s_barrier
    """)
    stamp(a, 3); trace(a, 113)
    a(f"s_setprio 0\ns_cmp_eq_u32 s{S_ACT2}, 0\ns_cbranch_scc1 L_end")
    if X("OAK", 8) < 8:
        a(f"s_sleep {X('OADELAY', 5)}")
        for k in range(X("OAK", 8), 8): o_load(a, k)
    oproj_main(a)

class AttnA:
    Q, KP, KC, VP, VC, SP, SC, OO, T, IX = 80, 88, 96, 112, 116, 16, 32, 48, 64, 124
    def __init__(s, a): s.a = a
    def tq(s): s.a(f"s_lshl_b32 s51, s{S_QB}, 2\ns_add_u32 s51, s51, s{S_W4}")
    def blk(s, sh, base):
        s.tq()
        s.a(f"s_lshl_b32 s51, s51, 4\ns_add_u32 s51, s51, s{S_HD}\ns_lshl_b32 s51, s51, {sh}\ns_add_u32 s51, s51, {base}")
    def masks(s):
        a = s.a; s.tq()
        a(f"""
        v_lshlrev_b32 v7, 3, v2
        v_sub_u32 v7, v1, v7
        v_add_u32 v7, 18, v7
        v_mov_b32 v126, 0x5555
        v_mov_b32 v127, 0
        v_lshlrev_b64 v[126:127], v7, v[126:127]
        s_cmp_eq_u32 s51, 0
        s_cselect_b32 s52, 0, -1
        v_and_b32 v126, s52, v126
        v_not_b32 v126, v126
        v_not_b32 v127, v127
        s_mov_b32 s52, 0xf149f2ca
        v_mov_b32 v{s.IX}, 0xdddddddd
        """)
        for r in range(16):
            g, i = r >> 2, r & 3
            c = 16 * (g >> 1) + 4 * (g & 1) + i
            a(f"v_bfe_i32 v{s.SC+r}, v127, {c}, 1\nv_and_b32 v{s.SC+r}, s52, v{s.SC+r}")
            if r >= 8: a(f"v_bfe_i32 v{s.SP+r}, v126, {c}, 1\nv_and_b32 v{s.SP+r}, s52, v{s.SP+r}")
            else: a(f"v_mov_b32 v{s.SP+r}, 0")
            a(f"v_mov_b32 v{s.OO+r}, 0")
        for r in range(12): a(f"v_mov_b32 v{s.VP+r}, 0x3f803f80")
        a(f"v_mov_b32 v140, {hex(f2u(QSCALE))}")
        for r in range(4): a(f"v_mov_b32 v{128+r}, -1")
        a(f"""
        v_and_b32 v7, 31, v3
        s_lshl_b32 s53, s{S_ODD}, 2
        v_subrev_u32 v7, s53, v7
        v_cmp_gt_u32 s[{AVM}:{AVM+1}], 28, v7
        v_mul_u32_u24 v125, 448, v2
        v_lshl_add_u32 v125, v7, 4, v125
        v_add_u32 v125, 256, v125
        """)
    def poison(s):
        a = s.a; s.blk(11, OB)
        a.vmem(f"buffer_store_dwordx4 v[128:131], v6, {WS}, s51 offen sc1", "poi")
        a.vmem(f"buffer_store_dwordx4 v[128:131], v6, {WS}, s51 offen offset:1024 sc1", "poi")
    def loads(s):
        a = s.a; s.tq()
        a(f"""
        s_mul_i32 s52, s51, 28672
        s_add_u32 s52, s52, s{S_P0}
        s_add_u32 s53, s52, {KA}
        s_add_u32 s52, s52, {QA}
        s_cmp_eq_u32 s51, 0
        s_cselect_b32 s54, 0, 28672
        s_cselect_b32 s55, 0, 1792
        s_sub_u32 s54, s53, s54
        """)
        a.vmem(f"buffer_load_dwordx4 {vr(s.Q,4)}, v6, {WS}, s52 offen sc1", "aq")
        a.vmem(f"buffer_load_dwordx4 {vr(s.Q+4,4)}, v6, {WS}, s52 offen offset:1024 sc1", "aq")
        a.vmem(f"buffer_load_dwordx4 {vr(s.KP,4)}, v5, {WS}, s54 offen sc1", "aq")
        a.vmem(f"buffer_load_dwordx4 {vr(s.KP+4,4)}, v5, {WS}, s54 offen offset:1024 sc1", "aq")
        a.vmem(f"buffer_load_dwordx4 {vr(s.KC,4)}, v5, {WS}, s53 offen sc1", "aq")
        a.vmem(f"buffer_load_dwordx4 {vr(s.KC+4,4)}, v5, {WS}, s53 offen offset:1024 sc1", "aq")
        a(f"""
        s_lshl_b32 s52, s{S_HD}, 6
        s_add_u32 s52, s52, s51
        s_mul_i32 s52, s52, 1792
        s_add_u32 s52, s52, {VA - 256}
        s_sub_u32 s55, s52, s55
        s_mov_b64 exec, s[{AVM}:{AVM+1}]
        """)
        a.vmem(f"buffer_load_dwordx4 {vr(s.VP,4)}, v125, {WS}, s55 offen offset:896 sc1", "aq")
        a.vmem(f"buffer_load_dwordx4 {vr(s.VC,4)}, v125, {WS}, s52 offen sc1", "aq")
        a.vmem(f"buffer_load_dwordx4 {vr(s.VC+4,4)}, v125, {WS}, s52 offen offset:896 sc1", "aq")
        a("s_mov_b64 exec, -1")
    def qk(s):
        a = s.a
        a.vm_wait("aq")
        zero_qpad(a, s.Q)
        a(f"""
        v_mfma_f32_32x32x16_bf16 {vr(s.SP,16)}, {vr(s.KP,4)}, {vr(s.Q,4)}, {vr(s.SP,16)}
        v_mfma_f32_32x32x16_bf16 {vr(s.SC,16)}, {vr(s.KC,4)}, {vr(s.Q,4)}, {vr(s.SC,16)}
        v_mfma_f32_32x32x16_bf16 {vr(s.SP,16)}, {vr(s.KP+4,4)}, {vr(s.Q+4,4)}, {vr(s.SP,16)}
        v_mfma_f32_32x32x16_bf16 {vr(s.SC,16)}, {vr(s.KC+4,4)}, {vr(s.Q+4,4)}, {vr(s.SC,16)}
        s_nop 11
        """)
        s.regs = regs = list(range(s.SP + 8, s.SP + 16)) + list(range(s.SC, s.SC + 16))
        a(f"v_max_f32 v8, v{regs[0]}, v{regs[1]}")
        for k in range(2, 24, 2): a(f"v_max3_f32 v8, v8, v{regs[k]}, v{regs[k+1]}")
        a("v_mov_b32 v9, v8\ns_nop 1\nv_permlane32_swap_b32 v8, v9\nv_max_f32 v8, v8, v9\nv_mul_f32 v8, v140, v8")
        for r in regs[::2]: a(f"v_pk_fma_f32 {vr(r,2)}, {vr(r,2)}, v[140:141], v[8:9] op_sel_hi:[1,0,0] neg_lo:[0,0,1] neg_hi:[0,0,1]")
    def pv(s):
        a = s.a
        for r in s.regs: a(f"v_exp_f32 v{r}, v{r}")
        a(f"""
        v_smfmac_f32_32x32x32_bf16 {vr(s.OO,16)}, {vr(s.VP,4)}, {vr(s.SP+8,8)}, v{s.IX}
        v_smfmac_f32_32x32x32_bf16 {vr(s.OO,16)}, {vr(s.VC,4)}, {vr(s.SC,8)}, v{s.IX}
        v_smfmac_f32_32x32x32_bf16 {vr(s.OO,16)}, {vr(s.VC+4,4)}, {vr(s.SC+8,8)}, v{s.IX}
        """)
    def fin(s):
        s.blk(11, OA)
        finish_O(s.a, s.OO, s.T, 51, True)
    def pub(s):
        s.blk(7, FOA)
        s.a("s_waitcnt vmcnt(0)"); s.a.vm_reset()
        put_flag(s.a, 51, SNV)
    def oflag_load(s):
        a = s.a
        a(f"""
        s_sub_u32 s59, s52, {OA}
        s_lshr_b32 s59, s59, 4
        s_add_u32 s59, s59, {FOA}
        v_min_u32 v10, 7, v0
        v_lshlrev_b32 v10, 7, v10
        """)
        a.vmem(f"buffer_load_dwordx2 v[8:9], v10, {WS}, s59 offen sc1", "oflag")
    def oflag_check(s):
        a = s.a
        a.vm_wait("oflag")
        a(f"""
        s_mov_b32 s63, 0
        L_of:
        v_cmp_ne_u64 vcc, s[{NON}:{NON+1}], v[8:9]
        s_add_u32 s63, s63, 1
        s_cbranch_vccz L_of_ok
        s_cmp_ge_u32 s63, {SPIN_MAX}
        s_cbranch_scc1 L_of_ok
        s_sleep 2
        s_mov_b64 exec, vcc
        buffer_load_dwordx2 v[8:9], v10, {WS}, s59 offen sc1
        s_mov_b64 exec, -1
        s_waitcnt vmcnt(0)
        s_branch L_of
        L_of_ok:
        """)


DOC = """; One persistent launch, 256 workgroups (one per CU) x 12 waves: G0 (4), G1 (4) compute, SV (4) load / hand-off service.
;  1. QKV GEMMs, 96x128 tiles through an LDS-DMA ring: branch B on G0, then branch A on G1. Results go to d_ws in
"""

def main(out):
    a = Asm()
    a("L_begin:")
    setup(a)
    service(a)
    a("s_branch L_end\nL_comp:")
    a.vm_reset()
    gemm_compute(a)
    attn_compute(a)
    a("L_end:")
    stamp_out(a)
    a("L_exit:\ns_endpgm\nL_codeend:")
    kn = NAME + "_kernel"
    if X("LIST"): hdr = f"; @launch kernel={kn} grid=(256,1,1) block=(768,1,1) lds=163840\n"
    else: hdr = "; @launch grid=(256,1,1) block=(768,1,1) lds=163840\n"
    hdr += DOC
    hdr += f'.amdgcn_target "amdgcn-amd-amdhsa--gfx950"\n.text\n.globl {kn}\n.p2align 8\n.type {kn},@function\n{kn}:\n'
    desc = f""".section .rodata,"a"
.p2align 6
.amdhsa_kernel {kn}
  .amdhsa_next_free_vgpr 168
  .amdhsa_next_free_sgpr 102
  .amdhsa_accum_offset 168
  .amdhsa_group_segment_fixed_size 0
  .amdhsa_kernarg_size 72
  .amdhsa_user_sgpr_count 2
  .amdhsa_user_sgpr_kernarg_segment_ptr 1
  .amdhsa_system_sgpr_workgroup_id_x 1
.end_amdhsa_kernel
"""
    txt = hdr + a.text() + desc
    open(out, "w").write(txt)
    e = lint(txt)
    for x in e: print("HAZARD", x)
    print("written", out, len(txt), "bytes;", len(e), "hazards")

if __name__ == "__main__":
    main(sys.argv[1] if len(sys.argv) > 1 else f"cdna_kernels/{NAME}.s")
```

```python
import sys, math, os, struct
from lint import lint

NAME = "concat_heads__sliding_local_dilated__mha_block__prompt"
def X(k, d=0): return int(os.environ.get(k, str(d)))
SEC = 1835008
QB, KB, VB, QA, KA, VA = [i * SEC for i in range(6)]
OA = 6 * SEC
OB = OA + 0x200000
FB = OB + 0x200000
FA = FB + 42 * 4096
FOA = FA + 42 * 4096
WS_SIZE = FOA + 0x20000
QSCALE = (28 ** -0.5) * math.log2(math.e)
def f2u(x): return struct.unpack('<I', struct.pack('<f', x))[0]
STAMP, TRACE = X("STAMP"), X("TRACE")
TS_OFF = 0x1000000
SPIN_MAX = 2000000

class Asm:
    def __init__(self): self.l = []; self.vm = []; self.nlab = 0
    def __call__(self, s):
        for x in s.strip('\n').split('\n'):
            x = x.strip()
            if not x: continue
            self.l.append(x if x.endswith(':') else '    ' + x)
    def text(self): return '\n'.join(self.l) + '\n'
    def lab(self, p):
        self.nlab += 1; return f"{p}_{self.nlab}"
    def vm_reset(self): self.vm = []
    def vmem(self, ins, tag):
        self(ins); self.vm.append(tag)
    def vm_wait(self, tag, extra=""):
        idx = [i for i, t in enumerate(self.vm) if t == tag]
        if not idx:
            if extra: self(f"s_waitcnt {extra}")
            return
        n = len(self.vm) - 1 - idx[-1]
        assert n < 64
        self(f"s_waitcnt vmcnt({n}) {extra}")
        self.vm = self.vm[idx[-1] + 1:]

def vr(a, n): return "v[%d:%d]" % (a, a + n - 1)
def sr(a, n=4): return "s[%d:%d]" % (a, a + n - 1)

SRD_XB, SRD_WB, SRD_XA, SRD_WA, SRD_WS, SRD_OUT, SRD_DBG = 4, 8, 12, 16, 20, 24, 28
SRD_WOA, SRD_WOB = 4, 8
MODD, MA, MB, AVM = 64, 66, 70, 72
NON = 32
S_HD, S_QB, S_ODD, S_P0 = 34, 35, 36, 37
S_RB, S_CB, S_ROW, S_COL, S_ACT = 38, 39, 40, 41, 42
S_RB2, S_CB2, S_ACT2 = 43, 44, 45
VMASK, QPAD = 46, 48
S_W4 = 50
P = 64
WS = sr(SRD_WS)

def srd(a, d, ptr, size):
    a(f"s_mov_b32 s{d}, s{ptr}\ns_mov_b32 s{d+1}, s{ptr+1}\ns_mov_b32 s{d+2}, {size}\ns_mov_b32 s{d+3}, 0x20000")
def common_srds(a):
    srd(a, SRD_WS, P + 16, WS_SIZE); srd(a, SRD_DBG, P + 14, 256); srd(a, SRD_OUT, P + 12, 2048 * 1792)

def stamp(a, i):
    if STAMP: a(f"s_memtime s[{82+4*i}:{83+4*i}]\ns_memrealtime s[{84+4*i}:{85+4*i}]\ns_waitcnt lgkmcnt(0)")
def trace(a, idx, reg=165):
    if TRACE: a(f"s_memtime s[98:99]\ns_waitcnt lgkmcnt(0)\nv_writelane_b32 v{reg + idx // 64}, s98, {idx % 64}")
def stamp_out(a):
    if TRACE:
        a(f"""
        s_mov_b32 s22, 0x2000000
        s_lshl_b32 s4, s2, 4
        s_add_u32 s4, s4, s3
        s_lshl_b32 s4, s4, 9
        s_add_u32 s4, s4, {TS_OFF + 0x100000}
        v_lshlrev_b32 v1, 2, v0
        buffer_store_dword v165, v1, s[20:23], s4 offen
        buffer_store_dword v166, v1, s[20:23], s4 offen offset:256
        """)
    if not STAMP: return
    a("s_waitcnt vmcnt(0)")
    stamp(a, 4)
    a(f"""
    s_mov_b32 s22, 0x2000000
    s_lshl_b32 s4, s2, 4
    s_add_u32 s4, s4, s3
    s_lshl_b32 s4, s4, 6
    s_add_u32 s4, s4, {TS_OFF}
    """)
    for i in range(5):
        a(f"v_mov_b32 v{8+2*i}, s{84+4*i}\nv_mov_b32 v{9+2*i}, s{82+4*i}")
    a(f"""
    v_mov_b32 v1, 0
    s_mov_b64 exec, 1
    buffer_store_dwordx4 v[8:11], v1, s[20:23], s4 offen
    buffer_store_dwordx4 v[12:15], v1, s[20:23], s4 offen offset:16
    buffer_store_dwordx2 v[16:17], v1, s[20:23], s4 offen offset:32
    """)

GNS, GSLOT, ANS = 4, 28672, 6
L_WOB, L_Q, L_RING = 0, 57344, 65536
L_WOA = L_Q
def slot_addr(st): return L_RING + ((st % ANS + 2) % ANS) * 16384
L_COMB = slot_addr(13)
L_RED = slot_addr(15)
L_SYNC = slot_addr(14)
L_RELAY = slot_addr(3)
ABAR = [0, 4, 8, 12, 16, 20, 24, 28]
VS = X('VS', 32)
ONES = ((127 + VS) << 7) * 0x10001

def setup(a):
    if TRACE: a("v_mov_b32 v165, 0\nv_mov_b32 v166, 0"); trace(a, 0)
    if STAMP:
        for i in range(86, 98, 2): a(f"s_mov_b64 s[{i}:{i+1}], 0")
        a("s_memtime s[82:83]\ns_memrealtime s[84:85]")
    a(f"""
    s_load_dwordx16 s[64:79], s[0:1], 0
    s_load_dwordx2 s[80:81], s[0:1], 64
    s_memrealtime s[{NON}:{NON+1}]
    s_cmp_ge_u32 s2, 256
    s_cbranch_scc1 L_exit
    v_lshrrev_b32 v1, 6, v0
    v_and_b32 v0, 63, v0
    v_readfirstlane_b32 s3, v1
    s_and_b32 s51, s2, 7
    s_lshr_b32 s52, s2, 3
    s_mul_i32 s53, s51, 31
    s_add_u32 s53, s53, s52
    s_cmp_lt_u32 s52, 31
    s_cselect_b32 s{S_ACT}, 1, 0
    s_cmp_lt_u32 s53, 242
    s_cselect_b32 s{S_ACT}, s{S_ACT}, 0
    s_mul_i32 s{S_RB}, s53, 171
    s_lshr_b32 s{S_RB}, s{S_RB}, 10
    s_mul_i32 s{S_CB}, s{S_RB}, 6
    s_sub_u32 s{S_CB}, s53, s{S_CB}
    s_sub_u32 s54, s53, 132
    s_mul_i32 s55, s54, 205
    s_lshr_b32 s55, s55, 10
    s_mul_i32 s56, s55, 5
    s_sub_u32 s56, s54, s56
    s_add_u32 s56, s56, 6
    s_cmp_ge_u32 s53, 132
    s_cselect_b32 s{S_RB}, s55, s{S_RB}
    s_cselect_b32 s{S_CB}, s56, s{S_CB}
    s_mul_i32 s{S_ROW}, s{S_RB}, 96
    s_min_u32 s{S_ROW}, s{S_ROW}, 1952
    s_lshl_b32 s{S_COL}, s{S_CB}, 2
    s_min_u32 s{S_COL}, s{S_COL}, 38
    {"s_sub_u32 s3, s3, 4" if X("SVF", 1) else ""}
    {"s_cselect_b32 s51, 12, 0" if X("SVF", 1) else ""}
    {"s_add_u32 s3, s3, s51" if X("SVF", 1) else ""}
    s_and_b32 s{S_W4}, s3, 3
    s_cmp_ge_u32 s3, 8
    s_cbranch_scc0 L_comp
    """)

def setup2(a):
    a(f"""
    s_and_b32 s51, s2, 7
    s_lshl_b32 s{S_HD}, s51, 1
    s_bfe_u32 s{S_ODD}, s2, 0x10003
    s_add_u32 s{S_HD}, s{S_HD}, s{S_ODD}
    s_lshr_b32 s{S_QB}, s2, 4
    s_mul_i32 s{S_P0}, s{S_HD}, 7
    s_lshr_b32 s{S_P0}, s{S_P0}, 1
    s_lshl_b32 s{S_P0}, s{S_P0}, 9
    s_lshr_b32 s52, s2, 3
    s_cmp_lt_u32 s52, 28
    s_cselect_b32 s{S_ACT2}, 1, 0
    s_mul_i32 s{S_RB2}, s52, 37
    s_lshr_b32 s{S_RB2}, s{S_RB2}, 8
    s_mul_i32 s53, s{S_RB2}, 7
    s_sub_u32 s{S_CB2}, s52, s53
    s_lshl_b32 s51, s51, 2
    s_add_u32 s{S_RB2}, s{S_RB2}, s51
    s_min_u32 s{S_RB2}, s{S_RB2}, 31
    s_cmp_eq_u32 s{S_ODD}, 0
    s_cselect_b32 s{VMASK}, 0x0fffffff, -16
    s_mov_b32 s{VMASK+1}, s{VMASK}
    s_cselect_b32 s{QPAD}, 0, -1
    s_cselect_b32 s{QPAD+1}, -1, 0
    v_and_b32 v1, 31, v0
    v_lshrrev_b32 v2, 5, v0
    v_and_b32 v3, 51, v0
    v_bfe_u32 v4, v0, 2, 1
    v_lshl_add_u32 v3, v4, 3, v3
    v_bfe_u32 v4, v0, 3, 1
    v_lshl_add_u32 v3, v4, 2, v3
    v_lshlrev_b32 v5, 4, v3
    v_lshlrev_b32 v6, 4, v0
    """)
def norm_masks(a):
    a(f"""
    s_mov_b32 s{MODD}, s{QPAD}
    s_mov_b32 s{MODD+1}, s{QPAD}
    s_mov_b32 s{MA}, s{QPAD}
    s_mov_b32 s{MA+1}, 0
    s_mov_b32 s{MB}, 0
    s_mov_b32 s{MB+1}, s{QPAD+1}
    """)

def nonce_load(a, vt):
    a.vmem(f"buffer_load_dwordx2 {vr(vt,2)}, v{vt+2}, {sr(SRD_DBG)}, 0 offen sc1", "non")
def nonce_get(a, vt):
    L = a.lab("non")
    a(f"""
    s_mov_b32 s63, 0
    {L}:
    v_readfirstlane_b32 s{NON}, v{vt}
    v_readfirstlane_b32 s{NON+1}, v{vt+1}
    s_add_u32 s63, s63, 1
    s_cmp_lg_u32 s{NON+1}, 0
    s_cbranch_scc1 {L}_ok
    s_cmp_ge_u32 s63, {SPIN_MAX}
    s_cbranch_scc1 {L}_ok
    s_sleep 8
    buffer_load_dwordx2 {vr(vt,2)}, v{vt+2}, {sr(SRD_DBG)}, 0 offen sc1
    s_waitcnt vmcnt(0)
    s_branch {L}
    {L}_ok:
    """)
def put_flag(a, soff, vt):
    a("s_mov_b64 exec, 1")
    a.vmem(f"buffer_store_dwordx2 {vr(vt,2)}, v{vt+2}, {WS}, s{soff} offen sc1", "flag")
    a("s_mov_b64 exec, -1")

def zero_qpad(a, q):
    a(f"""
    v_cndmask_b32 v{q}, v{q}, 0, s[{MA}:{MA+1}]
    v_cndmask_b32 v{q+1}, v{q+1}, 0, s[{MA}:{MA+1}]
    v_cndmask_b32 v{q+6}, v{q+6}, 0, s[{MB}:{MB+1}]
    v_cndmask_b32 v{q+7}, v{q+7}, 0, s[{MB}:{MB+1}]
    """)

def finish_O(a, o, tmp, soff, sanitize, mid=None, halves=(0, 1)):
    x, y, r, ra, rb, pk = tmp, tmp + 1, tmp + 2, tmp + 4, tmp + 6, tmp + 8
    a(f"""
    v_cndmask_b32 v{x}, v{o+12}, v{o}, s[{MODD}:{MODD+1}]
    v_cndmask_b32 v{y}, v{o+12}, v{o}, s[{MODD}:{MODD+1}]
    """)
    if mid: mid()
    else: a("s_nop 1")
    a(f"""
    v_permlane32_swap_b32 v{x}, v{y}
    v_cndmask_b32 v{x}, v{y}, v{x}, s[{MODD}:{MODD+1}]
    v_rcp_f32 v{r}, v{x}
    s_nop 0
    v_cndmask_b32 v{ra}, v{r}, 0, s[{MA}:{MA+1}]
    v_cndmask_b32 v{rb}, v{r}, 0, s[{MB}:{MB+1}]
    """)
    for hf in halves:
        for g in range(2 * hf, 2 * hf + 2):
            m = ra if g == 0 else rb if g == 3 else r
            for j in range(2):
                d = o + 4 * g + 2 * j
                a(f"v_pk_mul_f32 {vr(d,2)}, {vr(d,2)}, {vr(m,2)} op_sel_hi:[1,0]")
        for k in range(4 * hf, 4 * hf + 4):
            a(f"v_cvt_pk_bf16_f32 v{pk+k}, v{o+2*k}, v{o+2*k+1}")
            if sanitize: a(f"v_min_u32 v{pk+k}, -2, v{pk+k}")
        a.vmem(f"buffer_store_dwordx4 {vr(pk+4*hf,4)}, v6, {WS}, s{soff} offen offset:{1024*hf} sc1", "ost")

def w_frag_addr(a, dst, half_expr):
    a(f"""
    v_lshrrev_b32 v7, 5, v0
    v_bfe_u32 v4, v0, 2, 2
    v_lshl_add_u32 v{dst}, v7, 3, v4
    v_lshlrev_b32 v{dst}, 7, v{dst}
    v_lshrrev_b32 v4, 1, v4
    v_xor_b32 v4, {half_expr}, v4
    v_lshl_add_u32 v{dst}, v4, 6, v{dst}
    v_bfe_u32 v4, v0, 4, 1
    v_lshl_add_u32 v{dst}, v4, 5, v{dst}
    v_and_b32 v4, 1, v0
    v_lshl_add_u32 v{dst}, v4, 4, v{dst}
    v_bfe_u32 v4, v0, 1, 1
    v_lshl_add_u32 v{dst}, v4, 3, v{dst}
    """)

GO, NV = 136, 160
def gemm_store(a, m):
    L = a.lab("gs")
    a(f"""
    s_cmp_gt_u32 s55, {m}
    s_cbranch_scc1 {L}
    buffer_store_dwordx4 {vr(GO+8*m,4)}, v13, {WS}, s53 offen sc1
    buffer_store_dwordx4 {vr(GO+8*m+4,4)}, v14, {WS}, s53 offen sc1
    {L}:
    s_add_u32 s53, s53, s57
    """)
    if m == 2: nonce_load(a, NV)
def gemm_publish(a):
    L = a.lab("gp")
    trace(a, 46)
    a("s_waitcnt vmcnt(0)")
    trace(a, 47)
    nonce_get(a, NV)
    a(f"s_cmp_eq_u32 s55, 3\ns_cbranch_scc1 {L}")
    put_flag(a, 59, NV)
    a(f"{L}:")
def ones_pads(a):
    a(f"""
    v_and_b32 v7, 3, v0
    v_cmp_eq_u32 vcc, 0, v7
    v_mov_b32 v12, {hex(ONES)}
    s_lshl_b32 s51, s{S_W4}, 12
    v_cndmask_b32 v8, 0, v12, vcc
    s_cmp_eq_u32 s{S_ODD}, 0
    s_cselect_b32 s60, {28*16}, 0
    s_add_u32 s51, s51, s60
    s_add_u32 s51, s51, {L_RING + 2048}
    v_mov_b32 v9, v8
    v_mov_b32 v10, v8
    v_mov_b32 v11, v8
    v_lshl_add_u32 v7, v7, 4, s51
    v_bfe_u32 v12, v0, 2, 2
    v_lshl_add_u32 v7, v12, 9, v7
    v_lshrrev_b32 v12, 4, v0
    v_lshl_add_u32 v7, v12, 14, v7
    v_add_u32 v12, 0x10000, v7
    ds_write_b128 v7, v[8:11]
    s_mov_b32 exec_hi, 0
    ds_write_b128 v12, v[8:11]
    s_mov_b32 exec_hi, -1
    """)

def gemm_compute(a):
    ACC, FR = 88, 24
    a("s_waitcnt lgkmcnt(0)")
    PF = X("IDLEPF", 0)
    if PF:
        a(f"s_cmp_eq_u32 s{S_ACT}, 0\ns_cbranch_scc0 L_nipf")
        srd(a, SRD_XA, P + 0, 1835008); srd(a, SRD_WA, P + 2, 448 * 2688)
        srd(a, SRD_WOA, P + 4, 448 * 896); srd(a, SRD_WOB, P + 10, 448 * 896)
        a(f"""
        s_and_b32 s51, s2, 7
        s_lshr_b32 s52, s2, 3
        s_sub_u32 s52, 31, s52
        s_add_u32 s51, s51, s52
        s_lshl_b32 s51, s51, 3
        s_add_u32 s51, s51, s3
        s_lshl_b32 s51, s51, 13
        v_lshlrev_b32 v7, 7, v0
        """)
        if PF in (1, 2, 3, 5): a(f"buffer_load_dword v16, v7, {sr(SRD_WA)}, s51 offen")
        if PF in (1, 2, 3): a(f"buffer_load_dword v17, v7, {sr(SRD_XA)}, s51 offen")
        if PF == 3: a(f"s_add_u32 s52, s51, {112*8192}\nbuffer_load_dword v18, v7, {sr(SRD_WA)}, s52 offen\nbuffer_load_dword v19, v7, {sr(SRD_XA)}, s52 offen")
        if PF >= 2: a(f"s_lshr_b32 s52, s51, 1\nv_add_u32 v7, s52, v7\ns_mov_b32 exec_hi, 0\nbuffer_load_dword v20, v7, {sr(SRD_WOB)}, 0 offen\nbuffer_load_dword v21, v7, {sr(SRD_WOA)}, 0 offen\ns_mov_b32 exec_hi, -1")
        a("L_nipf:")
    common_srds(a)
    setup2(a); norm_masks(a)
    a(f"v_mov_b32 v{NV+2}, 0")
    if X("TLBW", 0):
        st = X("TLBS", 18)
        srd(a, SRD_WOA, P + 4, 448 * 896); srd(a, SRD_WOB, P + 10, 448 * 896)
        a(f"""
        s_cmp_eq_u32 s3, 5
        s_cbranch_scc0 L_notl
        v_lshlrev_b32 v7, {st}, v0
        s_lshl_b32 s51, s2, 7
        s_add_u32 s51, s51, 64
        buffer_load_dword v{GO+4}, v7, {WS}, s51 offen
        s_mul_i32 s51, s{S_RB2}, {64*1792}
        s_lshl_b32 s52, s{S_CB2}, 7
        s_add_u32 s51, s51, s52
        v_mul_u32_u24 v8, {32*1792}, v2
        buffer_load_dword v{GO+5}, v8, {sr(SRD_OUT)}, s51 offen
        buffer_load_dword v{GO+6}, v7, {sr(SRD_WOA)}, s52 offen
        buffer_load_dword v{GO+7}, v7, {sr(SRD_WOB)}, s52 offen
        L_notl:
        """)
    if X("CODEPF", 1):
        a(f"""
        s_cmp_eq_u32 s3, 4
        s_cbranch_scc0 L_nopf
        s_getpc_b64 s[52:53]
        L_pc:
        s_lshr_b32 s51, s2, 3
        s_lshl_b32 s51, s51, 10
        v_add_u32 v7, s51, v6
        s_sub_u32 s52, s52, L_pc - L_begin
        s_subb_u32 s53, s53, 0
        v_cmp_gt_u32 vcc, L_codeend - L_begin - 12, v7
        s_nop 0
        s_and_saveexec_b64 s[54:55], vcc
        s_cbranch_execz L_pfe
        global_load_dwordx4 v[{GO}:{GO+3}], v7, s[52:53]
        L_pfe:
        s_mov_b64 exec, -1
        L_nopf:
        """)
    a(f"""
    s_cmp_eq_u32 s{S_ACT}, 0
    s_cbranch_scc1 L_gidle
    v_lshrrev_b32 v4, 1, v1
    v_and_b32 v4, 7, v4
    v_xor_b32 v4, v4, v2
    v_lshlrev_b32 v4, 4, v4
    v_lshl_add_u32 v8, v1, 7, v4
    v_xor_b32 v9, 32, v8
    v_xor_b32 v10, 64, v8
    v_xor_b32 v11, 96, v8
    s_and_b32 s51, s3, 1
    """)
    w_frag_addr(a, 12, "s51")
    a(f"""
    s_bfe_u32 s51, s3, 0x10001
    s_lshl_b32 s51, s51, 13
    s_add_u32 s51, s51, 12288
    v_add_u32 v12, s51, v12
    s_add_u32 s51, s{S_COL}, s{S_W4}
    s_cmp_eq_u32 s{S_RB}, 21
    s_cselect_b32 s55, 2, 0
    s_cmp_eq_u32 s{S_CB}, 10
    s_cselect_b32 s56, 2, 0
    s_cmp_lt_u32 s{S_W4}, s56
    s_cselect_b32 s55, 3, s55
    s_lshr_b32 s57, s{S_ROW}, 5
    s_cmp_ge_u32 s3, 4
    s_cselect_b32 s58, {3*SEC}, 0
    s_cselect_b32 s59, {FA - FB}, 0
    s_cselect_b32 s52, {(7 % GNS) * GSLOT}, 0
    s_add_u32 s59, s59, {FB}
    s_lshl_b32 s60, s51, 12
    s_add_u32 s59, s59, s60
    s_lshl_b32 s60, s{S_RB}, 7
    s_add_u32 s59, s59, s60
    """)
    a(f"v_mov_b32 v{ACC}, 0\nv_mov_b32 v{ACC+1}, 0")
    for r in range(2, 48, 2): a(f"v_pk_mov_b32 {vr(ACC+r,2)}, {vr(ACC,2)}, {vr(ACC,2)}")
    a("s_cmp_ge_u32 s51, 28\ns_cbranch_scc1 L_gV")
    def addr_list():
        return [f"v_add_u32 v{16+i}, s52, v{8+i}" for i in range(5)] + [f"s_add_u32 s52, s52, {GSLOT}", f"s_cmp_ge_u32 s52, {GSLOT*GNS}", "s_cselect_b32 s52, 0, s52"]
    def addrs():
        for x in addr_list(): a(x)
    def read_list(ks):
        f = FR + 16 * ks
        return [f"ds_read_b64_tr_b16 {vr(f+12, 2)}, v20 offset:{ks*2048}", f"ds_read_b64_tr_b16 {vr(f+14, 2)}, v20 offset:{ks*2048+512}"] + \
               [f"ds_read_b128 {vr(f + 4*m, 4)}, v{16+ks} offset:{m*4096}" for m in range(3)]
    def reads(ks):
        for x in read_list(ks): a(x)
    for var in ("QK", "V"):
        t = f"L_g{var}"
        a(f"{t}:")
        if var == "QK":
            a(f"""
            v_mov_b32 v13, v6
            v_add_u32 v14, 1024, v6
            s_cmp_ge_u32 s51, 14
            s_cselect_b32 s53, {SEC - 14*2048}, 0
            s_cselect_b32 s54, 1.0, {hex(f2u(QSCALE))}
            s_lshl_b32 s60, s51, 11
            s_add_u32 s53, s53, s60
            s_mul_i32 s60, s57, 28672
            s_add_u32 s53, s53, s60
            s_mov_b32 s57, 28672
            v_mov_b32 v22, s54
            """)
        else:
            a(f"""
            v_and_b32 v4, 31, v3
            s_sub_u32 s60, s51, 28
            s_lshl_b32 s60, s60, 5
            v_add_u32 v4, s60, v4
            v_mul_u32_u24 v7, 2341, v4
            v_lshrrev_b32 v7, 16, v7
            v_mul_u32_u24 v13, 28, v7
            v_sub_u32 v4, v4, v13
            v_mul_u32_u24 v7, {64*1792}, v7
            v_lshl_add_u32 v13, v4, 4, v7
            v_mul_u32_u24 v4, 448, v2
            v_add_u32 v13, v13, v4
            v_add_u32 v14, 896, v13
            s_mul_i32 s53, s57, 1792
            s_add_u32 s53, s53, {2*SEC}
            s_mov_b32 s57, 1792
            v_mov_b32 v22, {hex(f2u(2.0**VS))}
            """)
        a(f"s_add_u32 s53, s53, s58")
        addrs()
        a(f"s_cmp_ge_u32 s3, 4\ns_cbranch_scc0 {t}_go")
        for i in range(7): a("s_barrier")
        a(f"s_waitcnt vmcnt(0)\n{t}_go:\ns_barrier")
        def mf(ks, fill=((), (), ())):
            f = FR + 16 * ks
            for m in range(3):
                x, w, d = vr(f + 4*m, 4), vr(f + 12, 4), vr(ACC + 16*m, 16)
                if var == "QK": a(f"v_mfma_f32_32x32x16_bf16 {d}, {w}, {x}, {d}")
                else: a(f"v_mfma_f32_32x32x16_bf16 {d}, {x}, {w}, {d}")
                for y in fill[m]: a(y)
        def spread(ks):
            r = read_list(ks); return (r[0:2], r[2:4], r[4:5])
        reads(0); reads(1)
        a("s_mov_b32 s56, 6")
        if X("GAL", 0): a.l.append(f".p2align {X('GAL', 0)}")
        a(f"{t}_chunk:")
        a("s_waitcnt lgkmcnt(5)"); mf(0, spread(2))
        r3 = read_list(3)
        a("s_waitcnt lgkmcnt(5)"); mf(1, (r3[0:3], r3[3:5], ["s_cmp_eq_u32 s56, 0", f"s_cbranch_scc1 {t}_last"]))
        al = addr_list()
        a("s_waitcnt lgkmcnt(5)")
        mf(2, (al[0:5], al[5:8] + ["s_sub_u32 s56, s56, 1", "s_waitcnt lgkmcnt(0)", "s_barrier"], read_list(0)[0:3]))
        r0, r1 = read_list(0), read_list(1)
        mf(3, (r0[3:5], r1[0:3], r1[3:5]))
        a(f"s_branch {t}_chunk\n{t}_last:\ns_waitcnt lgkmcnt(0)")
        if X("A0EARLY", 0):
            a("s_barrier")
            stamp(a, 2)
        else:
            if not X("G7LATE", 1): a(f"s_cmp_ge_u32 s3, 4\ns_cbranch_scc1 {t}_nb0\ns_barrier\n{t}_nb0:")
        for m in range(3):
            for ks in (2, 3):
                f = FR + 16 * ks
                x, w, d = vr(f + 4*m, 4), vr(f + 12, 4), vr(ACC + 16*m, 16)
                if var == "QK": a(f"v_mfma_f32_32x32x16_bf16 {d}, {w}, {x}, {d}")
                else: a(f"v_mfma_f32_32x32x16_bf16 {d}, {x}, {w}, {d}")
        a("s_nop 6\ns_branch L_gcvt" if var == "QK" else "s_nop 7")
    a("L_gcvt:")
    trace(a, 44)
    for m in range(3):
        a(f"s_cmp_ge_u32 s3, 4\ns_cbranch_scc1 L_gnm{m}")
        for r in range(16*m, 16*m+16, 2): a(f"v_pk_mul_f32 {vr(ACC+r,2)}, {vr(ACC+r,2)}, v[22:23] op_sel_hi:[1,0]")
        a(f"L_gnm{m}:")
        for r in range(8*m, 8*m+8): a(f"v_cvt_pk_bf16_f32 v{GO+r}, v{ACC+2*r}, v{ACC+2*r+1}")
        a(f"s_cmp_ge_u32 s3, 4\ns_cbranch_scc1 {'L_att' if m == 2 else 'L_gns%d' % m}")
        gemm_store(a, m)
        a(f"L_gns{m}:")
    trace(a, 45)
    PUB = X("PUB", 7)
    if X("G7LATE", 1): a("s_barrier")
    for g in range(8, 14):
        if g == 8 and PUB == 7: gemm_publish(a)
        if g == 13: trace(a, 49); ones_pads(a); trace(a, 50)
        a("s_barrier")
        if g == PUB: gemm_publish(a)
    stamp(a, 1)
    a("s_branch L_att")
    a(f"""
    L_gidle:
    s_waitcnt vmcnt(0)
    s_mov_b32 s55, 3
    v_mov_b32 v13, 0
    v_mov_b32 v14, 0
    s_barrier
    s_cmp_ge_u32 s3, 4
    s_cbranch_scc1 L_gidle1
    """)
    ones_pads(a)
    a("s_branch L_att\nL_gidle1:")
    if X("A0EARLY", 0): a("s_barrier"); stamp(a, 2)

S0, S1, O_, CM, QF, KF, V0, V1, IDX, AD0, AD1, PART = 16, 32, 48, 64, 80, 88, 96, 100, 104, 105, 106, 108
def attn_compute(a):
    a(f"""
    L_att:
    v_mov_b32 v{IDX}, 0xdddddddd
    s_lshr_b32 s51, s3, 2
    s_lshl_b32 s51, s51, 13
    s_add_u32 s51, s51, {L_RING}
    v_add_u32 v{AD0}, s51, v5
    v_add_u32 v{AD1}, 0x10000, v{AD0}
    s_lshl_b32 s51, s{S_W4}, 11
    s_add_u32 s51, s51, {L_Q}
    v_add_u32 v8, s51, v6
    """)
    def rd(dst, n, frag):
        st, u = n >> 1, n & 1
        off = slot_addr(st) - L_RING + u * 4096 + frag * 1024
        if X("HALFRD") and n % 2 == 1 and 1 < n < 30:
            if frag == 0 and X("HALFRD") == 1: a("s_nop 1")
            return
        a(f"ds_read_b128 {vr(dst,4)}, v{AD0 if off < 65536 else AD1} offset:{off & 0xffff}")
    def misc_init():
        a(f"v_mov_b32 v{O_}, 0\nv_mov_b32 v{O_+1}, 0")
        for r in range(2, 16, 2): a(f"v_pk_mov_b32 {vr(O_+r,2)}, {vr(O_,2)}, {vr(O_,2)}")
        a(f"""
        s_lshl_b32 s51, s3, 11
        s_add_u32 s51, s51, {L_COMB}
        v_add_u32 v107, s51, v6
        v_xor_b32 v124, 0x2000, v107
        s_lshl_b32 s51, s3, 8
        s_add_u32 s51, s51, {L_SYNC + 4096}
        v_lshl_add_u32 v125, v0, 2, s51
        v_xor_b32 v126, 0x400, v125
        s_lshl_b32 s51, s{S_W4}, 8
        v_lshl_add_u32 v9, v0, 2, s51
        """)
    if X("A0EARLY", 0): a("s_cmp_ge_u32 s3, 4\ns_cbranch_scc1 L_att0")
    misc_init()
    if X("ASTORE", 6) in (7, 8):
        a("s_cmp_ge_u32 s3, 4\ns_cbranch_scc0 L_att00")
        for m in range(3 if X("ASTORE", 6) == 7 else 1): gemm_store(a, m)
        a("L_att00:")
    a("s_waitcnt lgkmcnt(0)\ns_barrier\nL_att0:")
    if not X("A0EARLY", 0): stamp(a, 2)
    trace(a, 51)
    a(f"""
    ds_read_b128 {vr(QF,4)}, v8
    ds_read_b128 {vr(QF+4,4)}, v8 offset:1024
    """)
    rd(KF, 0, 0); rd(KF + 4, 0, 1); rd(V0, 0, 2)
    a("s_waitcnt lgkmcnt(3)")
    zero_qpad(a, QF)
    a(f"""
    s_waitcnt lgkmcnt(1)
    s_nop 0
    v_mfma_f32_32x32x16_bf16 {vr(S0,16)}, {vr(KF,4)}, {vr(QF,4)}, 0
    v_mfma_f32_32x32x16_bf16 {vr(S0,16)}, {vr(KF+4,4)}, {vr(QF+4,4)}, {vr(S0,16)}
    """)
    rd(KF, 1, 0); rd(KF + 4, 1, 1)
    a(f"""
    s_cmp_ge_u32 s3, 4
    s_cbranch_scc1 L_g1m
    s_nop 7
    v_max3_f32 v7, v{S0}, v{S0+1}, v{S0+2}
    v_max3_f32 v8, v{S0+3}, v{S0+4}, v{S0+5}
    v_max3_f32 v7, v7, v{S0+6}, v{S0+7}
    v_max3_f32 v8, v8, v{S0+8}, v{S0+9}
    v_max3_f32 v7, v7, v{S0+10}, v{S0+11}
    v_max3_f32 v8, v8, v{S0+12}, v{S0+13}
    v_max3_f32 v7, v7, v{S0+14}, v{S0+15}
    v_max_f32 v7, v7, v8
    v_mov_b32 v8, v7
    s_nop 1
    v_permlane32_swap_b32 v7, v8
    v_max_f32 v7, v7, v8
    v_sub_f32 v{CM}, {hex(f2u(-float(X("BIAS", 104))))}, v7
    ds_write_b32 v9, v{CM}
    s_branch L_havem
    L_g1m:
    """)
    if X("A0EARLY", 0): misc_init()
    else: a("s_setprio 3")
    if X("ASTORE", 6) == 6:
        for m in range(3): gemm_store(a, m)
    if X("ASTORE", 6) == 8:
        for m in range(1, 3): gemm_store(a, m)
    if X("ASTORE", 6) == 9:
        for m in range(2): gemm_store(a, m)
    trace(a, 52)
    a(f"""
    s_barrier
    ds_read_b32 v{CM}, v9
    s_waitcnt lgkmcnt(0)
    L_havem:
    v_mov_b32 v{CM+1}, v{CM}
    """)
    trace(a, 53)
    for r in range(0, 16, 2): a(f"v_pk_add_f32 {vr(S0+r,2)}, {vr(S0+r,2)}, {vr(CM,2)}")
    for r in range(2, 16, 2): a(f"v_pk_mov_b32 {vr(CM+r,2)}, {vr(CM,2)}, {vr(CM,2)}")
    def step(n, grp=None):
        Sc = S0 if n % 2 == 0 else S1
        Sn = S1 if n % 2 == 0 else S0
        def ex(lo, hi):
            for r in range(lo, hi): a(f"v_exp_f32 v{Sc+r}, v{Sc+r}")
        last = n == 31
        PR = X("PRIO", 1)
        if PR == 1 and 0 < n:
            lad = os.environ.get("LAD", "0210")
            if lad[n % 4] != "x": a(f"s_setprio {lad[n % 4]}")
        e0, e1_, e2_, e3_ = [int(x) for x in os.environ.get("SPL", "2,5,8,12").split(",")]
        WM = X("WM", 3) if 0 < n < 30 else 3
        ex(0, e0)
        if n > 0:
            a(f"s_waitcnt lgkmcnt({1 if last else {3: 3, 2: 1, 1: 0}[WM]})")
            a(f"v_smfmac_f32_32x32x32_bf16 {vr(O_,16)}, {vr(V1,4)}, {vr(Sn+8,8)}, v{IDX}")
        rd(V1, n, 3)
        nk = 0
        if last and grp == 1:
            trace(a, 61)
            a("s_barrier")
            trace(a, 62)
            for i in range(4): a(f"ds_read_b128 {vr(PART+4*i,4)}, v107 offset:{i*1024}")
            nk = 4
        ex(e0, e1_)
        if not last:
            if WM == 3: a(f"s_waitcnt lgkmcnt({2 if n > 0 else 1})")
            a(f"v_mfma_f32_32x32x16_bf16 {vr(Sn,16)}, {vr(KF,4)}, {vr(QF,4)}, {vr(CM,16)}")
        ex(e1_, e2_)
        if not last:
            a(f"v_mfma_f32_32x32x16_bf16 {vr(Sn,16)}, {vr(KF+4,4)}, {vr(QF+4,4)}, {vr(Sn,16)}")
        if n + 2 < 32:
            if n in (0, 1, 2, 3, 4, 28, 29): trace(a, {0: 54, 1: 55, 2: 56, 3: 57, 4: 58, 28: 59, 29: 60}[n])
            if n in ABAR:
                if n == 0: a("s_cmp_ge_u32 s3, 4\ns_cbranch_scc1 L_nb0\ns_barrier\nL_nb0:")
                else: a("s_barrier")
                if PR == 1: a(f"s_setprio {X('PTOP', 2)}")
                if n == 28 and X("ENDP", 0): a("s_cmp_ge_u32 s3, 4\ns_cbranch_scc1 L_ep\ns_setprio 2\nL_ep:")
            rd(KF, n + 2, 0); rd(KF + 4, n + 2, 1); nk = 2
        ex(e2_, e3_)
        if WM > 1: a(f"s_waitcnt lgkmcnt({1 + nk})")
        a(f"v_smfmac_f32_32x32x32_bf16 {vr(O_,16)}, {vr(V0,4)}, {vr(Sc,8)}, v{IDX}")
        if not last: rd(V0, n + 1, 2)
        if n == 30: a("s_nop 1")
        AS = {0: {2: [0, 1], 3: [2]}, 1: {1: [0], 2: [1], 3: [2]}, 2: {3: [0, 1, 2]}, 3: {2: [0, 1, 2]}, 4: {0: [0, 1, 2]}, 5: {0: [0, 1], 1: [2]}, 6: {}, 7: {}, 8: {}, 9: {4: [2]}}[X("ASTORE", 6)]
        if n in AS or n == X("APUB", 5):
            L = a.lab("g1")
            a(f"s_cmp_ge_u32 s3, 4\ns_cbranch_scc0 {L}")
            if n in AS:
                for m in AS[n]: gemm_store(a, m)
            else: gemm_publish(a)
            a(f"{L}:")
        ex(e3_, 16)
        if last:
            a("s_waitcnt lgkmcnt(0)")
            a("s_barrier" if grp == 1 else "s_nop 0")
            a(f"v_smfmac_f32_32x32x32_bf16 {vr(O_,16)}, {vr(V1,4)}, {vr(S1+8,8)}, v{IDX}")
    if X("AAL", 0): a.l.append(f".p2align {X('AAL', 0)}")
    for i in range(X("APAD", 0)): a("s_nop 0")
    for n in range(32): step(n, 0)
    stamp(a, 3); trace(a, 112)
    a(f"""
    s_lshl_b32 s51, s{S_QB}, 2
    s_add_u32 s51, s51, s{S_W4}
    s_lshl_b32 s51, s51, 4
    s_add_u32 s51, s51, s{S_HD}
    s_lshl_b32 s51, s51, 11
    s_add_u32 s51, s51, {OB}
    s_mov_b32 s62, {hex(f2u(2.0**-90))}
    s_setprio 2
    s_cmp_ge_u32 s3, 4
    s_nop 1
    s_cbranch_scc1 L_fin1
    """)
    x, y, r, rm, pk = S1, S1 + 1, S1 + 2, S1 + 4, S1 + 8
    for hf in range(2):
        keep, send = O_ + 8 * hf, O_ + 8 * (1 - hf)
        real, padg, M = (keep + 4, keep, MA) if hf == 0 else (keep, keep + 4, MB)
        if hf: a("L_fin1:")
        a(f"""
        ds_write_b128 v107, {vr(send,4)}
        v_cndmask_b32 v{x}, v{O_+12}, v{O_}, s[{MODD}:{MODD+1}]
        ds_write_b128 v107, {vr(send+4,4)} offset:1024
        ds_write_b32 v125, v{x}
        s_waitcnt lgkmcnt(0)
        s_barrier
        ds_read_b32 v{y}, v126
        ds_read_b128 {vr(PART,4)}, v124
        ds_read_b128 {vr(PART+4,4)}, v124 offset:1024
        s_waitcnt lgkmcnt(2)
        v_add_f32 v{x}, v{x}, v{y}
        v_mov_b32 v{y}, v{x}
        s_waitcnt lgkmcnt(0)
        {"s_nop 0" if X("E2L", 1) else "s_barrier"}
        v_permlane32_swap_b32 v{x}, v{y}
        """)
        for k in range(0, 8, 2): a(f"v_pk_add_f32 {vr(keep+k,2)}, {vr(keep+k,2)}, {vr(PART+k,2)}")
        a(f"""
        v_cndmask_b32 v{x}, v{y}, v{x}, s[{MODD}:{MODD+1}]
        v_maximum3_f32 v8, |v{real}|, |v{real+1}|, |v{real+2}|
        v_rcp_f32 v{r}, v{x}
        v_maximum3_f32 v9, |v{padg}|, |v{padg+1}|, |v{padg+2}|
        v_maximum3_f32 v8, v8, |v{real+3}|, |v{real+3}|
        v_maximum3_f32 v9, v9, |v{padg+3}|, v{x}
        v_cmp_gt_f32 s[60:61], s62, v8
        v_maximum3_f32 v9, v9, v8, v8
        v_cndmask_b32 v{rm}, v{r}, 0, s[{M}:{M+1}]
        v_cmp_ngt_f32 vcc, {'-1.0' if X('FORCEFB') else hex(f2u(2.0**120))}, v9
        v_pk_mul_f32 {vr(real,2)}, {vr(real,2)}, {vr(r,2)} op_sel_hi:[1,0]
        s_or_b64 vcc, vcc, s[60:61]
        s_cbranch_scc1 L_fallback
        v_pk_mul_f32 {vr(real+2,2)}, {vr(real+2,2)}, {vr(r,2)} op_sel_hi:[1,0]
        v_pk_mul_f32 {vr(padg,2)}, {vr(padg,2)}, {vr(rm,2)} op_sel_hi:[1,0]
        v_pk_mul_f32 {vr(padg+2,2)}, {vr(padg+2,2)}, {vr(rm,2)} op_sel_hi:[1,0]
        """)
        for k in range(4): a(f"v_cvt_pk_bf16_f32 v{pk+k}, v{keep+2*k}, v{keep+2*k+1}")
        a(f"buffer_store_dwordx4 {vr(pk,4)}, v6, {WS}, s51 offen offset:{1024*hf} sc1")
        trace(a, 113)
        if X("E2L", 1): a("s_barrier")
        if hf == 0: a("s_branch L_g0o")
    a(f"""
    s_branch L_end
    L_g0o:
    s_setprio 0
    s_cmp_eq_u32 s{S_ACT2}, 0
    s_cbranch_scc1 L_end
    {"" if X("INITF", 0) else "s_waitcnt vmcnt(0)"}
    """)
    oproj_params(a, "B")
    oproj_init(a)
    if X("INITF", 0) == 1: a("s_waitcnt vmcnt(0)")
    a.vm_reset()
    oproj_loads(a)
    a("s_branch L_oproj")
    fallback(a)

def fallback(a):
    a(f"""
    L_fallback:
    {"s_barrier" if X("E2L", 1) else ""}
    v_and_b32 v7, 31, v3
    s_lshl_b32 s54, s{S_ODD}, 2
    v_subrev_u32 v8, s54, v7
    v_cmp_gt_u32 s[60:61], 28, v8
    v_mul_u32_u24 v9, 448, v2
    v_lshl_add_u32 v8, v8, 4, v9
    v_add_u32 v8, 256, v8
    v_mov_b32 v7, 0xff800000
    s_add_u32 s54, s{S_P0}, {KB}
    s_mov_b32 s56, 64
    L_fb1:
    buffer_load_dwordx4 {vr(KF,4)}, v5, {WS}, s54 offen sc1
    buffer_load_dwordx4 {vr(KF+4,4)}, v5, {WS}, s54 offen offset:1024 sc1
    s_add_u32 s54, s54, 28672
    s_waitcnt vmcnt(0)
    v_mfma_f32_32x32x16_bf16 {vr(S0,16)}, {vr(KF,4)}, {vr(QF,4)}, 0
    v_mfma_f32_32x32x16_bf16 {vr(S0,16)}, {vr(KF+4,4)}, {vr(QF+4,4)}, {vr(S0,16)}
    s_nop 11
    """)
    for r in range(0, 16, 2): a(f"v_max3_f32 v7, v7, v{S0+r}, v{S0+r+1}")
    a(f"""
    s_sub_u32 s56, s56, 1
    s_cmp_lg_u32 s56, 0
    s_cbranch_scc1 L_fb1
    v_mov_b32 v9, v7
    s_nop 1
    v_permlane32_swap_b32 v7, v9
    v_max_f32 v7, v7, v9
    """)
    for r in range(16): a(f"v_sub_f32 v{CM+r}, 0, v7\nv_mov_b32 v{O_+r}, 0")
    for r in range(8): a(f"v_mov_b32 v{V0+r}, {hex(ONES)}")
    a(f"""
    s_add_u32 s54, s{S_P0}, {KB}
    s_mul_i32 s57, s{S_HD}, {64*1792}
    s_add_u32 s57, s57, {VB - 256}
    s_mov_b32 s56, 64
    L_fb2:
    buffer_load_dwordx4 {vr(KF,4)}, v5, {WS}, s54 offen sc1
    buffer_load_dwordx4 {vr(KF+4,4)}, v5, {WS}, s54 offen offset:1024 sc1
    s_mov_b64 exec, s[60:61]
    buffer_load_dwordx4 {vr(V0,4)}, v8, {WS}, s57 offen sc1
    buffer_load_dwordx4 {vr(V1,4)}, v8, {WS}, s57 offen offset:896 sc1
    s_mov_b64 exec, -1
    s_add_u32 s54, s54, 28672
    s_add_u32 s57, s57, 1792
    s_waitcnt vmcnt(0)
    v_mfma_f32_32x32x16_bf16 {vr(S0,16)}, {vr(KF,4)}, {vr(QF,4)}, {vr(CM,16)}
    v_mfma_f32_32x32x16_bf16 {vr(S0,16)}, {vr(KF+4,4)}, {vr(QF+4,4)}, {vr(S0,16)}
    s_nop 11
    """)
    for r in range(16): a(f"v_exp_f32 v{S0+r}, v{S0+r}")
    a(f"""
    s_nop 1
    v_smfmac_f32_32x32x32_bf16 {vr(O_,16)}, {vr(V0,4)}, {vr(S0,8)}, v{IDX}
    v_smfmac_f32_32x32x32_bf16 {vr(O_,16)}, {vr(V1,4)}, {vr(S0+8,8)}, v{IDX}
    s_sub_u32 s56, s56, 1
    s_cmp_lg_u32 s56, 0
    s_nop 7
    s_cbranch_scc1 L_fb2
    s_nop 7
    """)
    a("s_cmp_ge_u32 s3, 4\ns_cbranch_scc1 L_fbh1")
    finish_O(a, O_, S1, 51, True, halves=(0,))
    a("s_branch L_g0o\nL_fbh1:")
    finish_O(a, O_, S1, 51, True, halves=(1,))
    a("s_branch L_end")

OF, OACC, OW, OAD = 16, 80, 112, 144
def oproj_params(a, br):
    Ob, LW, red, fl, oo = (OA, L_WOA, L_RED, 0, 0) if br == "A" else (OB, L_WOB, L_COMB, 16, 896)
    a(f"""
    s_and_b32 s55, s{S_W4}, 1
    s_lshl_b32 s52, s{S_RB2}, 1
    s_add_u32 s55, s55, s52
    s_lshr_b32 s51, s{S_W4}, 1
    s_lshl_b32 s52, s55, 15
    s_lshl_b32 s53, s51, 14
    s_add_u32 s52, s52, s53
    s_add_u32 s52, s52, {Ob}
    s_mul_i32 s55, s55, {32*1792}
    s_lshl_b32 s53, s{S_CB2}, 7
    s_add_u32 s55, s55, s53
    s_lshl_b32 s53, s51, 6
    s_add_u32 s55, s55, s53
    s_add_u32 s55, s55, {oo}
    s_lshl_b32 s53, s{S_W4}, 12
    s_xor_b32 s54, s53, 0x2000
    s_add_u32 s53, s53, {red}
    s_add_u32 s54, s54, {red}
    s_mul_i32 s57, s51, {224*128}
    s_add_u32 s57, s57, {LW}
    s_lshl_b32 s58, s{S_W4}, 2
    s_add_u32 s58, s58, {L_SYNC + fl}
    """)
def oproj_init(a):
    w_frag_addr(a, OAD, "0")
    a(f"""
    v_add_u32 v{OAD}, s57, v{OAD}
    v_xor_b32 v{OAD+1}, 64, v{OAD}
    v_add_u32 v{OAD+2}, s53, v6
    v_add_u32 v{OAD+3}, s54, v6
    v_mov_b32 v{OAD+4}, s58
    v_xor_b32 v{OAD+5}, 8, v{OAD+4}
    v_mov_b32 v{OAD+6}, 1
    v_mul_u32_u24 v{OAD+7}, 1792, v1
    v_lshl_add_u32 v{OAD+7}, v2, 4, v{OAD+7}
    v_add_u32 v{OAD+8}, 0x1000, v6
    v_add_u32 v{OAD+9}, 0x2000, v6
    v_add_u32 v{OAD+10}, 0x3000, v6
    """)
def o_load(a, k):
    for s in range(2):
        f = 2 * k + s
        va = 6 if f < 4 else OAD + 7 + f // 4
        a.vmem(f"buffer_load_dwordx4 {vr(OF+4*f,4)}, v{va}, {WS}, s52 offen offset:{(f&3)*1024} sc1", f"of{k}")
def oproj_loads(a):
    for k in range(8): o_load(a, k)
def oproj_main(a):
    a("L_oproj:")
    if X("TSTAMP"): stamp(a, 2)
    trace(a, 114)
    NB = 4
    def wlist(j):
        if j >= 16: return []
        k, st = j >> 1, j & 1
        row = 28 * k - 4 * (k & 1) + 16 * st
        r = []
        for n in range(2):
            f = OW + 8 * (j % NB) + 4 * n
            r.append(f"ds_read_b64_tr_b16 {vr(f,2)}, v{OAD+n} offset:{row*128}")
            r.append(f"ds_read_b64_tr_b16 {vr(f+2,2)}, v{OAD+n} offset:{row*128+512}")
        return r
    def clist(k):
        o = OF + 8 * k
        return [f"v_max3_u32 v7, v{o}, v{o+1}, v{o+2}", f"v_max3_u32 v4, v{o+3}, v{o+4}, v{o+5}", f"v_max3_u32 v7, v7, v{o+6}, v{o+7}",
                "v_max_u32 v7, v7, v4", "v_cmp_eq_u32 vcc, -1, v7"]
    def check(k):
        for x in clist(k): a(x)
    for j in range(NB - 1):
        for x in wlist(j): a(x)
    a("s_mov_b32 s63, 0\ns_movk_i32 s56, 0\ns_waitcnt vmcnt(14)")
    check(0)
    a("s_waitcnt lgkmcnt(8)")
    for j in range(16):
        k = j >> 1
        if j % 2 == 0: a(f"s_cbranch_vccnz L_oretry\nL_ob{k}:")
        w = wlist(j + NB - 1)
        nxt = min(j + NB - 1, 15) - (j + 1)
        fills = [w[0:2], w[2:4]]
        if j % 2 == 1 and k < 7:
            c = clist(k + 1)
            fills = [w[0:4] + [f"s_waitcnt vmcnt({12 - 2*k})"], c + [f"s_movk_i32 s56, {k+1}"]]
        if j < 15: fills[1] = fills[1] + [f"s_waitcnt lgkmcnt({4*nxt})"]
        for n in range(2):
            d = vr(OACC + 16 * n, 16)
            a(f"v_mfma_f32_32x32x16_bf16 {d}, {vr(OW+8*(j%NB)+4*n,4)}, {vr(OF+4*j,4)}, {d if j else 0}")
            for x in fills[n]: a(x)
    a("s_branch L_odone")
    a(f"L_oretry:\ns_mov_b32 s60, 0\ns_brev_b32 s61, 1\ns_waitcnt vmcnt(0)\nL_ore2:\ns_mov_b32 s59, 0")
    for k in range(8):
        a(f"s_cmp_gt_u32 s56, {k}\ns_cbranch_scc1 L_o2_{k}")
        check(k)
        a(f"s_nop 0\ns_cbranch_vccz L_o2_{k}\ns_bitset1_b32 s59, {k}")
        if X("RGATE", 0):
            a(f"v_readlane_b32 s62, v{OF+8*k+7}, 63\ns_nop 0\ns_cmp_lg_u32 s62, -1\ns_cselect_b64 exec, -1, s[60:61]")
        o_load(a, k)
        if X("RGATE", 0): a("s_mov_b64 exec, -1")
        a(f"L_o2_{k}:")
    a(f"""
    s_add_u32 s63, s63, 1
    s_waitcnt vmcnt(0)
    s_cmp_ge_u32 s63, {SPIN_MAX}
    s_cbranch_scc1 L_oret
    s_bitcmp1_b32 s59, s56
    s_cbranch_scc0 L_oret
    """)
    for k in range(8):
        a(f"s_cmp_eq_u32 s56, {k}\ns_cbranch_scc0 L_o4_{k}")
        check(k)
        a(f"s_nop 0\ns_cbranch_vccz L_ob{k}\ns_branch L_osl\nL_o4_{k}:")
    a("L_osl:")
    if X("OSLEEP", 1): a(f"s_sleep {X('OSLEEP', 1)}")
    a("s_branch L_ore2\nL_oret:")
    for k in range(7): a(f"s_cmp_eq_u32 s56, {k}\ns_cbranch_scc1 L_ob{k}")
    a("s_branch L_ob7\nL_odone:")
    if TRACE: a(f"v_writelane_b32 v166, s63, 63")
    trace(a, 116)
    if X("TSTAMP"): stamp(a, 3)
    a("s_cmp_eq_u32 s51, 0\ns_nop 7\ns_mov_b32 s63, 0\ns_cbranch_scc1 L_ok0")
    for var in (1, 0):
        keep, send = OACC + 16 * var, OACC + 16 * (1 - var)
        if var == 0: a("L_ok0:")
        for i in range(4): a(f"ds_write_b128 v{OAD+2}, {vr(send+4*i,4)} offset:{i*1024}")
        a(f"ds_write_b32 v{OAD+4}, v{OAD+6}\nL_ow{var}:\nds_read_b32 v7, v{OAD+5}")
        for i in range(4): a(f"ds_read_b128 {vr(OF+4*i,4)}, v{OAD+3} offset:{i*1024}")
        a(f"""
        s_add_u32 s63, s63, 1
        s_waitcnt lgkmcnt(4)
        v_cmp_eq_u32 vcc, 0, v7
        s_cmp_ge_u32 s63, {SPIN_MAX*8}
        s_cbranch_scc1 L_og{var}
        s_cbranch_vccnz L_ow{var}
        L_og{var}:
        """)
        for hf in range(2):
            a(f"s_waitcnt lgkmcnt({2 - 2*hf})")
            for r in range(8*hf, 8*hf+8, 2): a(f"v_pk_add_f32 {vr(keep+r,2)}, {vr(keep+r,2)}, {vr(OF+r,2)}")
            for r in range(4*hf, 4*hf+4): a(f"v_cvt_pk_bf16_f32 v{OF+16+r}, v{keep+2*r}, v{keep+2*r+1}")
            if os.environ.get("OUTA"):
                L = a.lab("oa")
                a(f"s_cmp_ge_u32 s3, 8\ns_cbranch_scc0 {L}\nbuffer_store_dwordx4 {vr(OF+16+4*hf,4)}, v{OAD+7}, {sr(SRD_OUT)}, s55 offen offset:{32*hf} {os.environ['OUTA']}\ns_branch {L}d\n{L}:")
            a(f"buffer_store_dwordx4 {vr(OF+16+4*hf,4)}, v{OAD+7}, {sr(SRD_OUT)}, s55 offen offset:{32*hf} {os.environ.get('OUTF', '')}")
            if os.environ.get("OUTA"): a(f"{L}d:")
        if var == 1: a("s_branch L_oe")
    a("L_oe:")
    if X("TSTAMP"): stamp(a, 1)
    trace(a, 117)
    if TRACE: a("s_waitcnt vmcnt(0)")
    trace(a, 118)

FL, SNV = 132, 158
VW, VVA, VVB, VR0, VR1 = 161, 162, 163, 164, 167
def qkv_flag_loads(a, F):
    vt = FL
    a(f"""
    s_lshr_b32 s51, s{S_P0}, 11
    s_add_u32 s52, s{S_P0}, 1536
    s_lshr_b32 s52, s52, 11
    s_sub_u32 s52, s52, s51
    s_lshl_b32 s52, s52, 12
    v_mul_u32_u24 v7, s52, v2
    s_lshl_b32 s51, s51, 12
    s_add_u32 s79, s51, {F}
    s_lshl_b32 s51, s{S_QB}, 2
    """)
    if F == FB: a("s_add_u32 s52, s51, 3")
    else: a(f"s_add_u32 s52, s51, s{S_W4}\ns_max_u32 s51, s52, 1\ns_sub_u32 s51, s51, 1")
    a(f"""
    s_mul_i32 s51, s51, 86
    s_lshr_b32 s51, s51, 8
    s_mul_i32 s52, s52, 86
    s_lshr_b32 s52, s52, 8
    v_max_u32 v4, s51, v1
    v_min_u32 v4, s52, v4
    v_lshl_add_u32 v{vt+7}, v4, 7, v7
    """)
    if F == FB: a(f"v_min_u32 v4, 21, v1")
    a(f"""
    v_lshl_add_u32 v{vt+6}, v4, 7, v7
    v_add_u32 v{vt+6}, {14*4096}, v{vt+6}
    s_add_u32 s80, s79, {14*4096}
    """)
    a.vmem(f"buffer_load_dwordx2 {vr(vt,2)}, v{vt+7}, {WS}, s79 offen sc1", "qf")
    a.vmem(f"buffer_load_dwordx2 {vr(vt+2,2)}, v{vt+6}, {WS}, s79 offen sc1", "qf")
    a.vmem(f"buffer_load_dwordx2 {vr(vt+4,2)}, v{vt+6}, {WS}, s80 offen sc1", "qf")
def qkv_flag_test(a):
    vt = FL
    a(f"""
    v_cmp_ne_u64 vcc, s[{NON}:{NON+1}], {vr(vt,2)}
    v_cmp_ne_u64 s[52:53], s[{NON}:{NON+1}], {vr(vt+2,2)}
    v_cmp_ne_u64 s[54:55], s[{NON}:{NON+1}], {vr(vt+4,2)}
    s_add_u32 s63, s63, 1
    s_or_b64 s[56:57], s[52:53], vcc
    s_or_b64 s[56:57], s[56:57], s[54:55]
    """)
def qkv_flag_check(a):
    vt = FL
    L = a.lab("qf")
    a.vm_wait("qf")
    a(f"s_mov_b32 s63, 0\n{L}:")
    qkv_flag_test(a)
    a(f"""
    s_cbranch_scc0 {L}_ok
    s_cmp_ge_u32 s63, {SPIN_MAX}
    s_cbranch_scc1 {L}_ok
    s_sleep {X("QSLEEP", 1)}
    s_or_b64 exec, vcc, 1
    buffer_load_dwordx2 {vr(vt,2)}, v{vt+7}, {WS}, s79 offen sc1
    s_or_b64 exec, s[52:53], 1
    buffer_load_dwordx2 {vr(vt+2,2)}, v{vt+6}, {WS}, s79 offen sc1
    s_or_b64 exec, s[54:55], 1
    buffer_load_dwordx2 {vr(vt+4,2)}, v{vt+6}, {WS}, s80 offen sc1
    s_mov_b64 exec, -1
    s_waitcnt vmcnt(0)
    s_branch {L}
    {L}_ok:
    """)

def service(a):
    a("s_setprio 3")
    a.vm_reset()
    a(f"""
    v_lshrrev_b32 v1, 3, v0
    v_and_b32 v2, 7, v0
    v_lshrrev_b32 v3, 1, v1
    s_and_b32 s51, s3, 1
    s_lshl_b32 s51, s51, 2
    v_add_u32 v4, s51, v3
    v_xor_b32 v4, v2, v4
    v_lshlrev_b32 v4, 4, v4
    v_mul_u32_u24 v5, 896, v1
    v_add_u32 v8, v4, v5
    v_add_u32 v9, 28672, v8
    v_add_u32 v10, 57344, v8
    v_and_b32 v3, 1, v3
    v_lshlrev_b32 v3, 2, v3
    v_xor_b32 v4, v2, v3
    v_lshlrev_b32 v4, 4, v4
    v_add_u32 v{VW}, v4, v5
    v_mul_u32_u24 v5, 2688, v1
    v_add_u32 v11, v4, v5
    v_add_u32 v12, {32*2688}, v11
    v_add_u32 v13, 128, v11
    v_add_u32 v14, 128, v12
    s_lshl_b32 s51, s{S_W4}, 3
    s_add_u32 s56, s{S_ROW}, s51
    s_mul_i32 s56, s56, 896
    s_mul_i32 s57, s51, 2688
    s_lshl_b32 s52, s{S_COL}, 6
    s_add_u32 s57, s57, s52
    s_lshl_b32 s58, s{S_W4}, 10
    s_add_u32 s59, s{S_RB}, s{S_CB}
    """)
    R = X("ROT", 7)
    if R == 7: a("s_mul_i32 s51, s59, 37\ns_lshr_b32 s51, s51, 8\ns_mul_i32 s51, s51, 7\ns_sub_u32 s59, s59, s51")
    if R == 2: a("s_and_b32 s59, s59, 1\ns_mul_i32 s59, s59, 3")
    if R == 3: a("s_mul_i32 s51, s59, 86\ns_lshr_b32 s51, s51, 8\ns_mul_i32 s51, s51, 3\ns_sub_u32 s59, s59, s51\ns_lshl_b32 s59, s59, 1")
    if R == 4: a("s_and_b32 s59, s59, 3\ns_mul_i32 s59, s59, 7\ns_lshr_b32 s59, s59, 2")
    if R == 0: a("s_mov_b32 s59, 0")
    a("s_waitcnt lgkmcnt(0)")
    srd(a, SRD_XB, P + 6, 1835008); srd(a, SRD_WB, P + 8, 448 * 2688)
    a(f"s_cmp_eq_u32 s{S_ACT}, 0\ns_cbranch_scc1 L_sv_nog")
    def issue(g):
        Xs, W = (SRD_XB, SRD_WB) if g < 7 or X('FAKEA') else (SRD_XA, SRD_WA)
        slot = (g % GNS) * GSLOT
        if g == 7 and X("ROTA", 3) == 7: a(f"s_add_u32 s59, s{S_RB}, s{S_CB}\ns_mul_i32 s51, s59, 37\ns_lshr_b32 s51, s51, 8\ns_mul_i32 s51, s51, 7\ns_sub_u32 s59, s59, s51")
        if g == 7 and X("ROTA", 3) == 2: a(f"s_add_u32 s59, s{S_RB}, s{S_CB}\ns_and_b32 s59, s59, 1\ns_mul_i32 s59, s59, 3")
        if g == 7 and X("ROTA", 3) == 3: a(f"s_add_u32 s59, s{S_RB}, s{S_CB}\ns_mul_i32 s51, s59, 86\ns_lshr_b32 s51, s51, 8\ns_mul_i32 s51, s51, 3\ns_sub_u32 s59, s59, s51\ns_lshl_b32 s59, s59, 1")
        if g == 7 and X("ROTA", 3) == 4: a(f"s_add_u32 s59, s{S_RB}, s{S_CB}\ns_and_b32 s59, s59, 3\ns_mul_i32 s59, s59, 7\ns_lshr_b32 s59, s59, 2")
        if g == 7 and X("ROTA", 3) == 0: a("s_mov_b32 s59, 0")
        a(f"""
        s_lshl_b32 s60, s59, 7
        s_add_u32 s60, s60, s56
        s_mul_i32 s61, s59, {64*2688}
        s_add_u32 s61, s61, s57
        """)
        order = [('x', 0), ('w', 0), ('w', 2), ('x', 1), ('w', 1), ('w', 3), ('x', 2)]
        fill = ["s_add_u32 s59, s59, 1", "s_nop 0", "s_nop 0", "s_nop 0", "s_nop 0", "s_nop 0", "s_cmp_ge_u32 s59, 7"]
        for (kind, u), fl in zip(order, fill):
            if kind == 'x':
                a(f"s_add_u32 m0, s58, {slot + u * 4096}\n{fl}")
                a.vmem(f"buffer_load_dwordx4 v{8+u}, {sr(Xs)}, s60 offen {os.environ.get('XF','')} lds", f"g{g}")
            else:
                j, v = u >> 1, u & 1
                a(f"s_add_u32 m0, s58, {slot + 12288 + j * 8192 + v * 4096}\n{fl}")
                a.vmem(f"buffer_load_dwordx4 v{11 + 2*j + v}, {sr(W)}, s61 offen {os.environ.get('WF','')} lds", f"g{g}")
        a("s_cselect_b32 s59, 0, s59")
    def touch(Xs, W, tag):
        a(f"""
        s_cmp_eq_u32 s{S_W4}, 0
        s_cbranch_scc0 L_t1{tag}
        s_mul_i32 s51, s{S_CB}, {62*128}
        s_mul_i32 s52, s{S_ROW}, 896
        s_add_u32 s51, s51, s52
        v_min_u32 v15, 61, v0
        v_lshl_add_u32 v15, v15, 7, s51
        buffer_load_dword v156, v15, {sr(Xs)}, 0 offen
        L_t1{tag}:
        s_cmp_eq_u32 s{S_W4}, 1
        s_cbranch_scc0 L_t2{tag}
        s_mul_i32 s51, s{S_RB}, {21*2688}
        s_lshl_b32 s52, s{S_COL}, 6
        s_add_u32 s51, s51, s52
        v_min_u32 v15, 41, v0
        v_lshrrev_b32 v157, 1, v15
        v_mul_u32_u24 v157, 2688, v157
        v_and_b32 v15, 1, v15
        v_lshl_add_u32 v15, v15, 7, v157
        v_add_u32 v15, s51, v15
        buffer_load_dword v156, v15, {sr(W)}, 0 offen
        L_t2{tag}:
        """)
        if X("TX2", 0):
            a(f"""
            s_cmp_eq_u32 s{S_W4}, 2
            s_cbranch_scc0 L_t3{tag}
            s_add_u32 s51, s{S_CB}, 6
            s_cmp_ge_u32 s51, 11
            s_cselect_b32 s52, 11, 0
            s_sub_u32 s51, s51, s52
            s_mul_i32 s51, s51, {62*128}
            s_mul_i32 s52, s{S_ROW}, 896
            s_add_u32 s51, s51, s52
            v_min_u32 v15, 61, v0
            v_lshlrev_b32 v15, 7, v15
            buffer_load_dword v156, v15, {sr(Xs)}, s51 offen
            L_t3{tag}:
            s_cmp_eq_u32 s{S_W4}, 3
            s_cbranch_scc0 L_t4{tag}
            s_add_u32 s51, s{S_RB}, 11
            s_cmp_ge_u32 s51, 22
            s_cselect_b32 s52, 22, 0
            s_sub_u32 s51, s51, s52
            s_mul_i32 s51, s51, {21*2688}
            s_lshl_b32 s52, s{S_COL}, 6
            s_add_u32 s51, s51, s52
            v_min_u32 v15, 41, v0
            v_lshrrev_b32 v157, 1, v15
            v_mul_u32_u24 v157, 2688, v157
            v_and_b32 v15, 1, v15
            v_lshl_add_u32 v15, v15, 7, v157
            buffer_load_dword v156, v15, {sr(W)}, s51 offen
            L_t4{tag}:
            """)
    trace(a, 48)
    if X("TB", 0) == 1: touch(SRD_XB, SRD_WB, "b")
    issue(0)
    if X("TB", 0) == 2: touch(SRD_XB, SRD_WB, "b")
    srd(a, SRD_XA, P + 0, 1835008); srd(a, SRD_WA, P + 2, 448 * 2688)
    common_srds(a)
    a(f"""
    s_sub_u32 s51, s3, 8
    s_or_b32 s51, s51, s2
    s_cmp_eq_u32 s51, 0
    s_cbranch_scc0 L_nonon
    v_mov_b32 v18, 0
    v_mov_b32 v19, 0
    s_or_b32 s53, s{NON+1}, 0x80000000
    v_mov_b32 v16, s{NON}
    v_mov_b32 v17, s53
    s_mov_b64 exec, 1
    buffer_atomic_cmpswap_x2 v[16:19], v18, {sr(SRD_DBG)}, 0 offen sc1
    s_mov_b64 exec, -1
    s_nop 1
    L_nonon:
    """)
    A = AttnA(a)
    def sv_setup():
        setup2(a); norm_masks(a)
        a(f"""
        v_mov_b32 v{SNV+2}, 0
        v_mov_b32 v{FL+6}, 0
        v_mov_b32 v{FL+7}, 0
        v_mul_u32_u24 v7, 448, v2
        v_lshl_add_u32 v7, v1, 4, v7
        s_lshl_b32 s51, s{S_ODD}, 6
        s_sub_u32 s51, 256, s51
        v_add_u32 v{VVA}, s51, v7
        v_subrev_u32 v{VVB}, 128, v{VVA}
        v_lshlrev_b32 v{VR0}, 12, v0
        v_add_u32 v{VR0}, {L_RELAY}, v{VR0}
        s_lshl_b32 s51, s{S_W4}, 12
        s_add_u32 s51, s51, {L_RELAY}
        v_mov_b32 v{VR1}, s51
        v_mov_b32 v7, 0
        ds_write_b32 v{VR1}, v7
        """)
        A.masks()
        a("s_mov_b64 s[76:77], s[56:57]\ns_mov_b32 s78, s58")
        oproj_params(a, "A"); oproj_init(a)
        a("s_mov_b64 s[56:57], s[76:77]\ns_mov_b32 s58, s78")
        a("s_waitcnt lgkmcnt(0)")
    def sv_setup_late():
        srd(a, SRD_WOA, P + 4, 448 * 896); srd(a, SRD_WOB, P + 10, 448 * 896)
        a(f"""
        s_lshl_b32 s58, s{S_W4}, 12
        s_mul_i32 s59, s{S_W4}, 28672
        s_add_u32 s59, s59, s{S_P0}
        s_add_u32 s59, s59, {KB}
        s_lshl_b32 s60, s{S_HD}, 6
        s_add_u32 s60, s60, s{S_W4}
        s_mul_i32 s60, s60, 1792
        s_add_u32 s60, s60, {VB - 256}
        """)
    def dma(st):
        a(f"s_add_u32 m0, s58, {slot_addr(st)}\ns_add_u32 s56, s59, {st*4*28672}")
        a.vmem(f"buffer_load_dwordx4 v6, {WS}, s56 offen sc1 lds", f"a{st}")
        a.vmem(f"buffer_load_dwordx4 v6, {WS}, s56 offen offset:1024 sc1 lds", f"a{st}")
        a(f"s_add_u32 m0, s58, {slot_addr(st) + 2048}\ns_add_u32 s57, s60, {st*4*1792}\ns_mov_b64 exec, s[{VMASK}:{VMASK+1}]")
        a.vmem(f"buffer_load_dwordx4 v{VVA}, {WS}, s57 offen sc1 lds", f"a{st}")
        a.vmem(f"buffer_load_dwordx4 v{VVB}, {WS}, s57 offen offset:1024 sc1 lds", f"a{st}")
        a("s_mov_b64 exec, -1")
    APRE = X("APRE", 3)
    def relay_set():
        a(f"v_mov_b32 v7, 1\ns_mov_b64 exec, 14\nds_write_b32 v{VR0}, v7\ns_mov_b64 exec, -1")
    def first_dmas():
        a(f"""
        s_mul_i32 s56, s{S_QB}, {4*28672}
        s_add_u32 s56, s56, s59
        s_lshr_b32 s51, s58, 1
        s_add_u32 m0, s51, {L_Q}
        s_sub_u32 s56, s56, {KB}
        """)
        a.vmem(f"buffer_load_dwordx4 v6, {WS}, s56 offen sc1 lds", "a0")
        a.vmem(f"buffer_load_dwordx4 v6, {WS}, s56 offen offset:1024 sc1 lds", "a0")
        for st in range(X('APRE0', 1)): dma(st)
    if X("TA", 3) == -1: touch(SRD_XA, SRD_WA, "a")
    issued = 1
    while issued < X("PRE", 2): issue(issued); issued += 1
    if X("TB", 0) == 3: touch(SRD_XB, SRD_WB, "b")
    SVAT = X("SVAT", 7)
    if SVAT < 0: sv_setup()
    FBAT = X("FBAT", 11)
    KVAT = X("KVAT", 13)
    def flags_uniform(tag):
        nonce_load(a, SNV)
        keep = list(a.vm)
        a(f"s_cmp_eq_u32 s{S_W4}, 0\ns_cbranch_scc1 L_fu{tag}")
        for i in range(3): nonce_load(a, SNV)
        a(f"s_branch L_fud{tag}\nL_fu{tag}:")
        a.vm = keep
        qkv_flag_loads(a, FB)
        a(f"L_fud{tag}:")
    for c in range(KVAT + 1):
        trace(a, 1 + 3*c)
        a.vm_wait(f"g{c}")
        trace(a, 2 + 3*c)
        a("s_barrier")
        trace(a, 3 + 3*c)
        if c == 0: stamp(a, 1)
        if c == X("TA", 3) and not X("TAS"): touch(SRD_XA, SRD_WA, "a")
        if X("TAS") and X("TA", 3) <= c < X("TA", 3) + X("TAS"):
            a(f"s_lshr_b32 s51, s2, 3\ns_and_b32 s51, s51, {X('TAS') - 1}\ns_cmp_eq_u32 s51, {c - X('TA', 3)}\ns_cbranch_scc0 L_ts{c}")
            touch(SRD_XA, SRD_WA, f"a{c}")
            a(f"L_ts{c}:")
        if c == FBAT and X("FBPRE", 1): flags_uniform(0)
        lim = min(13, c + GNS - 1)
        if c < 7: lim = min(lim, X("HOLD", 9))
        while issued <= lim: issue(issued); issued += 1
        if c == SVAT: sv_setup()
        if c == 10: sv_setup_late()
        if c == FBAT and not X("FBPRE", 1): flags_uniform(0)
    a.vm_wait("qf")
    keep2 = list(a.vm)
    a("s_branch L_sv_att\nL_sv_nog:")
    common_srds(a)
    sv_setup(); sv_setup_late()
    for i in range(X("IDLEW", 0)): a("s_sleep 64")
    flags_uniform(1)
    a("s_barrier\ns_waitcnt vmcnt(0)\nL_sv_att:")
    a.vm = keep2
    a(f"s_cmp_eq_u32 s{S_W4}, 0\ns_cbranch_scc0 L_relay")
    nonce_get(a, SNV)
    qkv_flag_check(a)
    relay_set()
    a(f"""
    s_branch L_relay_ok
    L_relay:
    s_mov_b32 s63, 0
    L_relay_w:
    ds_read_b32 v7, v{VR1}
    s_add_u32 s63, s63, 1
    s_waitcnt lgkmcnt(0)
    v_cmp_eq_u32 vcc, 0, v7
    s_cmp_ge_u32 s63, {SPIN_MAX*16}
    s_cbranch_scc1 L_relay_ok
    s_cbranch_vccnz L_relay_w
    L_relay_ok:
    """)
    stamp(a, 2); trace(a, 44)
    first_dmas()
    if KVAT == 12:
        a.vm_wait("g13")
        trace(a, 41)
        a(f"s_cmp_eq_u32 s{S_ACT}, 0\ns_cbranch_scc1 L_no13\ns_barrier\nL_no13:")
        trace(a, 42)
    for st in range(X("APRE0", 1), APRE): dma(st)
    nonce_get(a, SNV)
    def wo_dma(W, lds, i0, n, tag):
        a(f"""
        s_mul_i32 s61, s{S_W4}, {8*896}
        s_lshl_b32 s62, s{S_CB2}, 7
        s_add_u32 s61, s61, s62
        s_lshl_b32 s62, s{S_W4}, 10
        """)
        for j in range(i0, i0 + n):
            a(f"s_add_u32 m0, s62, {lds + j*4096}\ns_add_u32 s63, s61, {j*32*896}")
            a.vmem(f"buffer_load_dwordx4 v{VW}, {sr(W)}, s63 offen lds", tag)
    issued = APRE
    bars = [-2] + ABAR
    for i, n in enumerate(bars):
        need = bars[i + 1] // 2 if i + 1 < len(bars) else 15
        trace(a, 64 + 3*i)
        a.vm_wait(f"a{need}", "lgkmcnt(0)" if i == 0 else "")
        trace(a, 65 + 3*i)
        a("s_barrier")
        trace(a, 66 + 3*i)
        if X("PSTAMP") and n == 20: stamp(a, 1)
        if X("PSTAMP") and n == 8: stamp(a, 2)
        if n == 12 and not X("FAD", 0) and not X("FAE", 4): qkv_flag_loads(a, FA)
        if n == 12 and X("FAE", 4) and X("AFIRST", 0): qkv_flag_check(a); A.loads()
        if n == 20: A.pub()
        while issued <= min(15, max(n // 2 - 1, -1) + ANS) and (n >= 0 or issued <= X('A0ISS', 0)): dma(issued); issued += 1
        wb = dict(zip((4, 8, 12, 16, 20, 24), [int(x) for x in os.environ.get("WB", "4,6,0,4,0,0").split(",")]))
        assert sum(wb.values()) == 14
        if n == X("POI", 8) and X("POIF", 0): A.poison()
        if wb.get(n) and n != 12: wo_dma(SRD_WOB, L_WOB, sum(v for k, v in wb.items() if k < n), wb[n], "wob")
        if n == X("POI", 8) and not X("POIF", 0): A.poison()
        if n == X("WT", -9):
            a(f"""
            s_and_b32 s61, s{S_RB2}, 3
            s_lshl_b32 s61, s61, 2
            s_add_u32 s61, s61, s{S_W4}
            s_mul_i32 s61, s61, {28*896}
            s_lshl_b32 s62, s{S_CB2}, 7
            s_add_u32 s61, s61, s62
            v_min_u32 v15, 27, v0
            v_mul_u32_u24 v15, 896, v15
            """)
            a.vmem(f"buffer_load_dword v156, v15, {sr(SRD_WOA)}, s61 offen", "wt")
        if n == 12:
            if X("FAD", 0): qkv_flag_loads(a, FA)
            if not (X("FAE", 4) and X("AFIRST", 0)): qkv_flag_check(a); A.loads()
        if n == 12 and X("QE"): A.qk()
        if n == 8 and X("FAE", 4):
            if X("FAW", 0): a.vm_wait("a9")
            qkv_flag_loads(a, FA)
        if n == 16:
            if X("AP", 3) != 3: a(f"s_setprio {X('AP', 3)}")
            if not X("QE"): A.qk()
            A.pv(); a("s_nop 7")
            A.fin()
            if X("AP", 3) != 3: a("s_setprio 3")
        if n == 20: wo_dma(SRD_WOA, L_WOA, 0, 2, "woa")
        if n == 24:
            assert issued == 16
            wo_dma(SRD_WOA, L_WOA, 2, 8, "woa")
            oproj_params(a, "A")
            a.vm_wait("woa")
            A.oflag_load()
        if n == 28:
            wo_dma(SRD_WOA, L_WOA, 10, 4, "woa")
            A.oflag_check()
            for k in range(X("OAK", 8)): o_load(a, k)
    a.vm_wait("woa")
    assert "wob" not in a.vm
    a(f"""
    v_mov_b32 v7, {L_SYNC}
    v_lshl_add_u32 v7, v0, 2, v7
    v_mov_b32 v4, 0
    s_mov_b64 exec, 0xff
    ds_write_b32 v7, v4
    s_mov_b64 exec, -1
    s_waitcnt lgkmcnt(0)
    s_barrier
    s_barrier
    """)
    stamp(a, 3); trace(a, 113)
    a(f"s_setprio 0\ns_cmp_eq_u32 s{S_ACT2}, 0\ns_cbranch_scc1 L_end")
    if X("OAK", 8) < 8:
        a(f"s_sleep {X('OADELAY', 5)}")
        for k in range(X("OAK", 8), 8): o_load(a, k)
    oproj_main(a)

class AttnA:
    Q, KP, KC, VP, VC, SP, SC, OO, T, IX = 80, 88, 96, 112, 116, 16, 32, 48, 64, 124
    def __init__(s, a): s.a = a
    def tq(s): s.a(f"s_lshl_b32 s51, s{S_QB}, 2\ns_add_u32 s51, s51, s{S_W4}")
    def blk(s, sh, base):
        s.tq()
        s.a(f"s_lshl_b32 s51, s51, 4\ns_add_u32 s51, s51, s{S_HD}\ns_lshl_b32 s51, s51, {sh}\ns_add_u32 s51, s51, {base}")
    def masks(s):
        a = s.a; s.tq()
        a(f"""
        v_lshlrev_b32 v7, 3, v2
        v_sub_u32 v7, v1, v7
        v_add_u32 v7, 18, v7
        v_mov_b32 v126, 0x5555
        v_mov_b32 v127, 0
        v_lshlrev_b64 v[126:127], v7, v[126:127]
        s_cmp_eq_u32 s51, 0
        s_cselect_b32 s52, 0, -1
        v_and_b32 v126, s52, v126
        v_not_b32 v126, v126
        v_not_b32 v127, v127
        s_mov_b32 s52, 0xf149f2ca
        v_mov_b32 v{s.IX}, 0xdddddddd
        """)
        for r in range(16):
            g, i = r >> 2, r & 3
            c = 16 * (g >> 1) + 4 * (g & 1) + i
            a(f"v_bfe_i32 v{s.SC+r}, v127, {c}, 1\nv_and_b32 v{s.SC+r}, s52, v{s.SC+r}")
            if r >= 8: a(f"v_bfe_i32 v{s.SP+r}, v126, {c}, 1\nv_and_b32 v{s.SP+r}, s52, v{s.SP+r}")
            else: a(f"v_mov_b32 v{s.SP+r}, 0")
            a(f"v_mov_b32 v{s.OO+r}, 0")
        for r in range(12): a(f"v_mov_b32 v{s.VP+r}, 0x3f803f80")
        a(f"v_mov_b32 v140, {hex(f2u(QSCALE))}")
        for r in range(4): a(f"v_mov_b32 v{128+r}, -1")
        a(f"""
        v_and_b32 v7, 31, v3
        s_lshl_b32 s53, s{S_ODD}, 2
        v_subrev_u32 v7, s53, v7
        v_cmp_gt_u32 s[{AVM}:{AVM+1}], 28, v7
        v_mul_u32_u24 v125, 448, v2
        v_lshl_add_u32 v125, v7, 4, v125
        v_add_u32 v125, 256, v125
        """)
    def poison(s):
        a = s.a; s.blk(11, OB)
        a.vmem(f"buffer_store_dwordx4 v[128:131], v6, {WS}, s51 offen sc1", "poi")
        a.vmem(f"buffer_store_dwordx4 v[128:131], v6, {WS}, s51 offen offset:1024 sc1", "poi")
    def loads(s):
        a = s.a; s.tq()
        a(f"""
        s_mul_i32 s52, s51, 28672
        s_add_u32 s52, s52, s{S_P0}
        s_add_u32 s53, s52, {KA}
        s_add_u32 s52, s52, {QA}
        s_cmp_eq_u32 s51, 0
        s_cselect_b32 s54, 0, 28672
        s_cselect_b32 s55, 0, 1792
        s_sub_u32 s54, s53, s54
        """)
        a.vmem(f"buffer_load_dwordx4 {vr(s.Q,4)}, v6, {WS}, s52 offen sc1", "aq")
        a.vmem(f"buffer_load_dwordx4 {vr(s.Q+4,4)}, v6, {WS}, s52 offen offset:1024 sc1", "aq")
        a.vmem(f"buffer_load_dwordx4 {vr(s.KP,4)}, v5, {WS}, s54 offen sc1", "aq")
        a.vmem(f"buffer_load_dwordx4 {vr(s.KP+4,4)}, v5, {WS}, s54 offen offset:1024 sc1", "aq")
        a.vmem(f"buffer_load_dwordx4 {vr(s.KC,4)}, v5, {WS}, s53 offen sc1", "aq")
        a.vmem(f"buffer_load_dwordx4 {vr(s.KC+4,4)}, v5, {WS}, s53 offen offset:1024 sc1", "aq")
        a(f"""
        s_lshl_b32 s52, s{S_HD}, 6
        s_add_u32 s52, s52, s51
        s_mul_i32 s52, s52, 1792
        s_add_u32 s52, s52, {VA - 256}
        s_sub_u32 s55, s52, s55
        s_mov_b64 exec, s[{AVM}:{AVM+1}]
        """)
        a.vmem(f"buffer_load_dwordx4 {vr(s.VP,4)}, v125, {WS}, s55 offen offset:896 sc1", "aq")
        a.vmem(f"buffer_load_dwordx4 {vr(s.VC,4)}, v125, {WS}, s52 offen sc1", "aq")
        a.vmem(f"buffer_load_dwordx4 {vr(s.VC+4,4)}, v125, {WS}, s52 offen offset:896 sc1", "aq")
        a("s_mov_b64 exec, -1")
    def qk(s):
        a = s.a
        a.vm_wait("aq")
        zero_qpad(a, s.Q)
        a(f"""
        v_mfma_f32_32x32x16_bf16 {vr(s.SP,16)}, {vr(s.KP,4)}, {vr(s.Q,4)}, {vr(s.SP,16)}
        v_mfma_f32_32x32x16_bf16 {vr(s.SC,16)}, {vr(s.KC,4)}, {vr(s.Q,4)}, {vr(s.SC,16)}
        v_mfma_f32_32x32x16_bf16 {vr(s.SP,16)}, {vr(s.KP+4,4)}, {vr(s.Q+4,4)}, {vr(s.SP,16)}
        v_mfma_f32_32x32x16_bf16 {vr(s.SC,16)}, {vr(s.KC+4,4)}, {vr(s.Q+4,4)}, {vr(s.SC,16)}
        s_nop 11
        """)
        s.regs = regs = list(range(s.SP + 8, s.SP + 16)) + list(range(s.SC, s.SC + 16))
        a(f"v_max_f32 v8, v{regs[0]}, v{regs[1]}")
        for k in range(2, 24, 2): a(f"v_max3_f32 v8, v8, v{regs[k]}, v{regs[k+1]}")
        a("v_mov_b32 v9, v8\ns_nop 1\nv_permlane32_swap_b32 v8, v9\nv_max_f32 v8, v8, v9\nv_mul_f32 v8, v140, v8")
        for r in regs[::2]: a(f"v_pk_fma_f32 {vr(r,2)}, {vr(r,2)}, v[140:141], v[8:9] op_sel_hi:[1,0,0] neg_lo:[0,0,1] neg_hi:[0,0,1]")
    def pv(s):
        a = s.a
        for r in s.regs: a(f"v_exp_f32 v{r}, v{r}")
        a(f"""
        v_smfmac_f32_32x32x32_bf16 {vr(s.OO,16)}, {vr(s.VP,4)}, {vr(s.SP+8,8)}, v{s.IX}
        v_smfmac_f32_32x32x32_bf16 {vr(s.OO,16)}, {vr(s.VC,4)}, {vr(s.SC,8)}, v{s.IX}
        v_smfmac_f32_32x32x32_bf16 {vr(s.OO,16)}, {vr(s.VC+4,4)}, {vr(s.SC+8,8)}, v{s.IX}
        """)
    def fin(s):
        s.blk(11, OA)
        finish_O(s.a, s.OO, s.T, 51, True)
    def pub(s):
        s.blk(7, FOA)
        s.a("s_waitcnt vmcnt(0)"); s.a.vm_reset()
        put_flag(s.a, 51, SNV)
    def oflag_load(s):
        a = s.a
        a(f"""
        s_sub_u32 s59, s52, {OA}
        s_lshr_b32 s59, s59, 4
        s_add_u32 s59, s59, {FOA}
        v_min_u32 v10, 7, v0
        v_lshlrev_b32 v10, 7, v10
        """)
        a.vmem(f"buffer_load_dwordx2 v[8:9], v10, {WS}, s59 offen sc1", "oflag")
    def oflag_check(s):
        a = s.a
        a.vm_wait("oflag")
        a(f"""
        s_mov_b32 s63, 0
        L_of:
        v_cmp_ne_u64 vcc, s[{NON}:{NON+1}], v[8:9]
        s_add_u32 s63, s63, 1
        s_cbranch_vccz L_of_ok
        s_cmp_ge_u32 s63, {SPIN_MAX}
        s_cbranch_scc1 L_of_ok
        s_sleep 2
        s_mov_b64 exec, vcc
        buffer_load_dwordx2 v[8:9], v10, {WS}, s59 offen sc1
        s_mov_b64 exec, -1
        s_waitcnt vmcnt(0)
        s_branch L_of
        L_of_ok:
        """)


DOC = """; One persistent launch, 256 workgroups (one per CU) x 12 waves: G0 (4), G1 (4) compute, SV (4) load / hand-off service.
;  1. QKV GEMMs, 96x128 tiles through an LDS-DMA ring: branch B on G0, then branch A on G1. Results go to d_ws in
"""

def main(out):
    a = Asm()
    a("L_begin:")
    setup(a)
    service(a)
    a("s_branch L_end\nL_comp:")
    a.vm_reset()
    gemm_compute(a)
    attn_compute(a)
    a("L_end:")
    stamp_out(a)
    a("L_exit:\ns_endpgm\nL_codeend:")
    kn = NAME + "_kernel"
    if X("LIST"): hdr = f"; @launch kernel={kn} grid=(256,1,1) block=(768,1,1) lds=163840\n"
    else: hdr = "; @launch grid=(256,1,1) block=(768,1,1) lds=163840\n"
    hdr += DOC
    hdr += f'.amdgcn_target "amdgcn-amd-amdhsa--gfx950"\n.text\n.globl {kn}\n.p2align 8\n.type {kn},@function\n{kn}:\n'
    desc = f""".section .rodata,"a"
.p2align 6
.amdhsa_kernel {kn}
  .amdhsa_next_free_vgpr 168
  .amdhsa_next_free_sgpr 102
  .amdhsa_accum_offset 168
  .amdhsa_group_segment_fixed_size 0
  .amdhsa_kernarg_size 72
  .amdhsa_user_sgpr_count 2
  .amdhsa_user_sgpr_kernarg_segment_ptr 1
  .amdhsa_system_sgpr_workgroup_id_x 1
.end_amdhsa_kernel
"""
    txt = hdr + a.text() + desc
    open(out, "w").write(txt)
    e = lint(txt)
    for x in e: print("HAZARD", x)
    print("written", out, len(txt), "bytes;", len(e), "hazards")

if __name__ == "__main__":
    main(sys.argv[1] if len(sys.argv) > 1 else f"cdna_kernels/{NAME}.s")
```

```python
import sys, math, os, struct
from lint import lint

NAME = "concat_heads__sliding_local_dilated__mha_block__prompt"
def X(k, d=0): return int(os.environ.get(k, str(d)))
SEC = 1835008
QB, KB, VB, QA, KA, VA = [i * SEC for i in range(6)]
OA = 6 * SEC
OB = OA + 0x200000
FB = OB + 0x200000
FA = FB + 42 * 4096
FOA = FA + 42 * 4096
WS_SIZE = FOA + 0x20000
QSCALE = (28 ** -0.5) * math.log2(math.e)
def f2u(x): return struct.unpack('<I', struct.pack('<f', x))[0]
STAMP, TRACE = X("STAMP"), X("TRACE")
TS_OFF = 0x1000000
SPIN_MAX = 2000000

class Asm:
    def __init__(self): self.l = []; self.vm = []; self.nlab = 0
    def __call__(self, s):
        for x in s.strip('\n').split('\n'):
            x = x.strip()
            if not x: continue
            self.l.append(x if x.endswith(':') else '    ' + x)
    def text(self): return '\n'.join(self.l) + '\n'
    def lab(self, p):
        self.nlab += 1; return f"{p}_{self.nlab}"
    def vm_reset(self): self.vm = []
    def vmem(self, ins, tag):
        self(ins); self.vm.append(tag)
    def vm_wait(self, tag, extra=""):
        idx = [i for i, t in enumerate(self.vm) if t == tag]
        if not idx:
            if extra: self(f"s_waitcnt {extra}")
            return
        n = len(self.vm) - 1 - idx[-1]
        assert n < 64
        self(f"s_waitcnt vmcnt({n}) {extra}")
        self.vm = self.vm[idx[-1] + 1:]

def vr(a, n): return "v[%d:%d]" % (a, a + n - 1)
def sr(a, n=4): return "s[%d:%d]" % (a, a + n - 1)

SRD_XB, SRD_WB, SRD_XA, SRD_WA, SRD_WS, SRD_OUT, SRD_DBG = 4, 8, 12, 16, 20, 24, 28
SRD_WOA, SRD_WOB = 4, 8
MODD, MA, MB, AVM = 64, 66, 70, 72
NON = 32
S_HD, S_QB, S_ODD, S_P0 = 34, 35, 36, 37
S_RB, S_CB, S_ROW, S_COL, S_ACT = 38, 39, 40, 41, 42
S_RB2, S_CB2, S_ACT2 = 43, 44, 45
VMASK, QPAD = 46, 48
S_W4 = 50
P = 64
WS = sr(SRD_WS)

def srd(a, d, ptr, size):
    a(f"s_mov_b32 s{d}, s{ptr}\ns_mov_b32 s{d+1}, s{ptr+1}\ns_mov_b32 s{d+2}, {size}\ns_mov_b32 s{d+3}, 0x20000")
def common_srds(a):
    srd(a, SRD_WS, P + 16, WS_SIZE); srd(a, SRD_DBG, P + 14, 256); srd(a, SRD_OUT, P + 12, 2048 * 1792)

def stamp(a, i):
    if STAMP: a(f"s_memtime s[{82+4*i}:{83+4*i}]\ns_memrealtime s[{84+4*i}:{85+4*i}]\ns_waitcnt lgkmcnt(0)")
def trace(a, idx, reg=165):
    if TRACE: a(f"s_memtime s[98:99]\ns_waitcnt lgkmcnt(0)\nv_writelane_b32 v{reg + idx // 64}, s98, {idx % 64}")
def stamp_out(a):
    if TRACE:
        a(f"""
        s_mov_b32 s22, 0x2000000
        s_lshl_b32 s4, s2, 4
        s_add_u32 s4, s4, s3
        s_lshl_b32 s4, s4, 9
        s_add_u32 s4, s4, {TS_OFF + 0x100000}
        v_lshlrev_b32 v1, 2, v0
        buffer_store_dword v165, v1, s[20:23], s4 offen
        buffer_store_dword v166, v1, s[20:23], s4 offen offset:256
        """)
    if not STAMP: return
    a("s_waitcnt vmcnt(0)")
    stamp(a, 4)
    a(f"""
    s_mov_b32 s22, 0x2000000
    s_lshl_b32 s4, s2, 4
    s_add_u32 s4, s4, s3
    s_lshl_b32 s4, s4, 6
    s_add_u32 s4, s4, {TS_OFF}
    """)
    for i in range(5):
        a(f"v_mov_b32 v{8+2*i}, s{84+4*i}\nv_mov_b32 v{9+2*i}, s{82+4*i}")
    a(f"""
    v_mov_b32 v1, 0
    s_mov_b64 exec, 1
    buffer_store_dwordx4 v[8:11], v1, s[20:23], s4 offen
    buffer_store_dwordx4 v[12:15], v1, s[20:23], s4 offen offset:16
    buffer_store_dwordx2 v[16:17], v1, s[20:23], s4 offen offset:32
    """)

GNS, GSLOT, ANS = 4, 28672, 6
L_WOB, L_Q, L_RING = 0, 57344, 65536
L_WOA = L_Q
def slot_addr(st): return L_RING + ((st % ANS + 2) % ANS) * 16384
L_COMB = slot_addr(13)
L_RED = slot_addr(15)
L_SYNC = slot_addr(14)
L_RELAY = slot_addr(3)
ABAR = [0, 4, 8, 12, 16, 20, 24, 28]
VS = X('VS', 32)
ONES = ((127 + VS) << 7) * 0x10001

def setup(a):
    if TRACE: a("v_mov_b32 v165, 0\nv_mov_b32 v166, 0"); trace(a, 0)
    if STAMP:
        for i in range(86, 98, 2): a(f"s_mov_b64 s[{i}:{i+1}], 0")
        a("s_memtime s[82:83]\ns_memrealtime s[84:85]")
    a(f"""
    s_load_dwordx16 s[64:79], s[0:1], 0
    s_load_dwordx2 s[80:81], s[0:1], 64
    s_memrealtime s[{NON}:{NON+1}]
    s_cmp_ge_u32 s2, 256
    s_cbranch_scc1 L_exit
    v_lshrrev_b32 v1, 6, v0
    v_and_b32 v0, 63, v0
    v_readfirstlane_b32 s3, v1
    s_and_b32 s51, s2, 7
    s_lshr_b32 s52, s2, 3
    s_mul_i32 s53, s51, 31
    s_add_u32 s53, s53, s52
    s_cmp_lt_u32 s52, 31
    s_cselect_b32 s{S_ACT}, 1, 0
    s_cmp_lt_u32 s53, 242
    s_cselect_b32 s{S_ACT}, s{S_ACT}, 0
    s_mul_i32 s{S_RB}, s53, 171
    s_lshr_b32 s{S_RB}, s{S_RB}, 10
    s_mul_i32 s{S_CB}, s{S_RB}, 6
    s_sub_u32 s{S_CB}, s53, s{S_CB}
    s_sub_u32 s54, s53, 132
    s_mul_i32 s55, s54, 205
    s_lshr_b32 s55, s55, 10
    s_mul_i32 s56, s55, 5
    s_sub_u32 s56, s54, s56
    s_add_u32 s56, s56, 6
    s_cmp_ge_u32 s53, 132
    s_cselect_b32 s{S_RB}, s55, s{S_RB}
    s_cselect_b32 s{S_CB}, s56, s{S_CB}
    s_mul_i32 s{S_ROW}, s{S_RB}, 96
    s_min_u32 s{S_ROW}, s{S_ROW}, 1952
    s_lshl_b32 s{S_COL}, s{S_CB}, 2
    s_min_u32 s{S_COL}, s{S_COL}, 38
    {"s_sub_u32 s3, s3, 4" if X("SVF", 1) else ""}
    {"s_cselect_b32 s51, 12, 0" if X("SVF", 1) else ""}
    {"s_add_u32 s3, s3, s51" if X("SVF", 1) else ""}
    s_and_b32 s{S_W4}, s3, 3
    s_cmp_ge_u32 s3, 8
    s_cbranch_scc0 L_comp
    """)

def setup2(a):
    a(f"""
    s_and_b32 s51, s2, 7
    s_lshl_b32 s{S_HD}, s51, 1
    s_bfe_u32 s{S_ODD}, s2, 0x10003
    s_add_u32 s{S_HD}, s{S_HD}, s{S_ODD}
    s_lshr_b32 s{S_QB}, s2, 4
    s_mul_i32 s{S_P0}, s{S_HD}, 7
    s_lshr_b32 s{S_P0}, s{S_P0}, 1
    s_lshl_b32 s{S_P0}, s{S_P0}, 9
    s_lshr_b32 s52, s2, 3
    s_cmp_lt_u32 s52, 28
    s_cselect_b32 s{S_ACT2}, 1, 0
    s_mul_i32 s{S_RB2}, s52, 37
    s_lshr_b32 s{S_RB2}, s{S_RB2}, 8
    s_mul_i32 s53, s{S_RB2}, 7
    s_sub_u32 s{S_CB2}, s52, s53
    s_lshl_b32 s51, s51, 2
    s_add_u32 s{S_RB2}, s{S_RB2}, s51
    s_min_u32 s{S_RB2}, s{S_RB2}, 31
    s_cmp_eq_u32 s{S_ODD}, 0
    s_cselect_b32 s{VMASK}, 0x0fffffff, -16
    s_mov_b32 s{VMASK+1}, s{VMASK}
    s_cselect_b32 s{QPAD}, 0, -1
    s_cselect_b32 s{QPAD+1}, -1, 0
    v_and_b32 v1, 31, v0
    v_lshrrev_b32 v2, 5, v0
    v_and_b32 v3, 51, v0
    v_bfe_u32 v4, v0, 2, 1
    v_lshl_add_u32 v3, v4, 3, v3
    v_bfe_u32 v4, v0, 3, 1
    v_lshl_add_u32 v3, v4, 2, v3
    v_lshlrev_b32 v5, 4, v3
    v_lshlrev_b32 v6, 4, v0
    """)
def norm_masks(a):
    a(f"""
    s_mov_b32 s{MODD}, s{QPAD}
    s_mov_b32 s{MODD+1}, s{QPAD}
    s_mov_b32 s{MA}, s{QPAD}
    s_mov_b32 s{MA+1}, 0
    s_mov_b32 s{MB}, 0
    s_mov_b32 s{MB+1}, s{QPAD+1}
    """)

def nonce_load(a, vt):
    a.vmem(f"buffer_load_dwordx2 {vr(vt,2)}, v{vt+2}, {sr(SRD_DBG)}, 0 offen sc1", "non")
def nonce_get(a, vt):
    L = a.lab("non")
    a(f"""
    s_mov_b32 s63, 0
    {L}:
    v_readfirstlane_b32 s{NON}, v{vt}
    v_readfirstlane_b32 s{NON+1}, v{vt+1}
    s_add_u32 s63, s63, 1
    s_cmp_lg_u32 s{NON+1}, 0
    s_cbranch_scc1 {L}_ok
    s_cmp_ge_u32 s63, {SPIN_MAX}
    s_cbranch_scc1 {L}_ok
    s_sleep 8
    buffer_load_dwordx2 {vr(vt,2)}, v{vt+2}, {sr(SRD_DBG)}, 0 offen sc1
    s_waitcnt vmcnt(0)
    s_branch {L}
    {L}_ok:
    """)
def put_flag(a, soff, vt):
    a("s_mov_b64 exec, 1")
    a.vmem(f"buffer_store_dwordx2 {vr(vt,2)}, v{vt+2}, {WS}, s{soff} offen sc1", "flag")
    a("s_mov_b64 exec, -1")

def zero_qpad(a, q):
    a(f"""
    v_cndmask_b32 v{q}, v{q}, 0, s[{MA}:{MA+1}]
    v_cndmask_b32 v{q+1}, v{q+1}, 0, s[{MA}:{MA+1}]
    v_cndmask_b32 v{q+6}, v{q+6}, 0, s[{MB}:{MB+1}]
    v_cndmask_b32 v{q+7}, v{q+7}, 0, s[{MB}:{MB+1}]
    """)

def finish_O(a, o, tmp, soff, sanitize, mid=None, halves=(0, 1)):
    x, y, r, ra, rb, pk = tmp, tmp + 1, tmp + 2, tmp + 4, tmp + 6, tmp + 8
    a(f"""
    v_cndmask_b32 v{x}, v{o+12}, v{o}, s[{MODD}:{MODD+1}]
    v_cndmask_b32 v{y}, v{o+12}, v{o}, s[{MODD}:{MODD+1}]
    """)
    if mid: mid()
    else: a("s_nop 1")
    a(f"""
    v_permlane32_swap_b32 v{x}, v{y}
    v_cndmask_b32 v{x}, v{y}, v{x}, s[{MODD}:{MODD+1}]
    v_rcp_f32 v{r}, v{x}
    s_nop 0
    v_cndmask_b32 v{ra}, v{r}, 0, s[{MA}:{MA+1}]
    v_cndmask_b32 v{rb}, v{r}, 0, s[{MB}:{MB+1}]
    """)
    for hf in halves:
        for g in range(2 * hf, 2 * hf + 2):
            m = ra if g == 0 else rb if g == 3 else r
            for j in range(2):
                d = o + 4 * g + 2 * j
                a(f"v_pk_mul_f32 {vr(d,2)}, {vr(d,2)}, {vr(m,2)} op_sel_hi:[1,0]")
        for k in range(4 * hf, 4 * hf + 4):
            a(f"v_cvt_pk_bf16_f32 v{pk+k}, v{o+2*k}, v{o+2*k+1}")
            if sanitize: a(f"v_min_u32 v{pk+k}, -2, v{pk+k}")
        a.vmem(f"buffer_store_dwordx4 {vr(pk+4*hf,4)}, v6, {WS}, s{soff} offen offset:{1024*hf} sc1", "ost")

def w_frag_addr(a, dst, half_expr):
    a(f"""
    v_lshrrev_b32 v7, 5, v0
    v_bfe_u32 v4, v0, 2, 2
    v_lshl_add_u32 v{dst}, v7, 3, v4
    v_lshlrev_b32 v{dst}, 7, v{dst}
    v_lshrrev_b32 v4, 1, v4
    v_xor_b32 v4, {half_expr}, v4
    v_lshl_add_u32 v{dst}, v4, 6, v{dst}
    v_bfe_u32 v4, v0, 4, 1
    v_lshl_add_u32 v{dst}, v4, 5, v{dst}
    v_and_b32 v4, 1, v0
    v_lshl_add_u32 v{dst}, v4, 4, v{dst}
    v_bfe_u32 v4, v0, 1, 1
    v_lshl_add_u32 v{dst}, v4, 3, v{dst}
    """)

GO, NV = 136, 160
def gemm_store(a, m):
    L = a.lab("gs")
    a(f"""
    s_cmp_gt_u32 s55, {m}
    s_cbranch_scc1 {L}
    buffer_store_dwordx4 {vr(GO+8*m,4)}, v13, {WS}, s53 offen sc1
    buffer_store_dwordx4 {vr(GO+8*m+4,4)}, v14, {WS}, s53 offen sc1
    {L}:
    s_add_u32 s53, s53, s57
    """)
    if m == 2: nonce_load(a, NV)
def gemm_publish(a):
    L = a.lab("gp")
    trace(a, 46)
    a("s_waitcnt vmcnt(0)")
    trace(a, 47)
    nonce_get(a, NV)
    a(f"s_cmp_eq_u32 s55, 3\ns_cbranch_scc1 {L}")
    put_flag(a, 59, NV)
    a(f"{L}:")
def ones_pads(a):
    a(f"""
    v_and_b32 v7, 3, v0
    v_cmp_eq_u32 vcc, 0, v7
    v_mov_b32 v12, {hex(ONES)}
    s_lshl_b32 s51, s{S_W4}, 12
    v_cndmask_b32 v8, 0, v12, vcc
    s_cmp_eq_u32 s{S_ODD}, 0
    s_cselect_b32 s60, {28*16}, 0
    s_add_u32 s51, s51, s60
    s_add_u32 s51, s51, {L_RING + 2048}
    v_mov_b32 v9, v8
    v_mov_b32 v10, v8
    v_mov_b32 v11, v8
    v_lshl_add_u32 v7, v7, 4, s51
    v_bfe_u32 v12, v0, 2, 2
    v_lshl_add_u32 v7, v12, 9, v7
    v_lshrrev_b32 v12, 4, v0
    v_lshl_add_u32 v7, v12, 14, v7
    v_add_u32 v12, 0x10000, v7
    ds_write_b128 v7, v[8:11]
    s_mov_b32 exec_hi, 0
    ds_write_b128 v12, v[8:11]
    s_mov_b32 exec_hi, -1
    """)

def gemm_compute(a):
    ACC, FR = 88, 24
    a("s_waitcnt lgkmcnt(0)")
    PF = X("IDLEPF", 0)
    if PF:
        a(f"s_cmp_eq_u32 s{S_ACT}, 0\ns_cbranch_scc0 L_nipf")
        srd(a, SRD_XA, P + 0, 1835008); srd(a, SRD_WA, P + 2, 448 * 2688)
        srd(a, SRD_WOA, P + 4, 448 * 896); srd(a, SRD_WOB, P + 10, 448 * 896)
        a(f"""
        s_and_b32 s51, s2, 7
        s_lshr_b32 s52, s2, 3
        s_sub_u32 s52, 31, s52
        s_add_u32 s51, s51, s52
        s_lshl_b32 s51, s51, 3
        s_add_u32 s51, s51, s3
        s_lshl_b32 s51, s51, 13
        v_lshlrev_b32 v7, 7, v0
        """)
        if PF in (1, 2, 3, 5): a(f"buffer_load_dword v16, v7, {sr(SRD_WA)}, s51 offen")
        if PF in (1, 2, 3): a(f"buffer_load_dword v17, v7, {sr(SRD_XA)}, s51 offen")
        if PF == 3: a(f"s_add_u32 s52, s51, {112*8192}\nbuffer_load_dword v18, v7, {sr(SRD_WA)}, s52 offen\nbuffer_load_dword v19, v7, {sr(SRD_XA)}, s52 offen")
        if PF >= 2: a(f"s_lshr_b32 s52, s51, 1\nv_add_u32 v7, s52, v7\ns_mov_b32 exec_hi, 0\nbuffer_load_dword v20, v7, {sr(SRD_WOB)}, 0 offen\nbuffer_load_dword v21, v7, {sr(SRD_WOA)}, 0 offen\ns_mov_b32 exec_hi, -1")
        a("L_nipf:")
    common_srds(a)
    setup2(a); norm_masks(a)
    a(f"v_mov_b32 v{NV+2}, 0")
    if X("TLBW", 0):
        st = X("TLBS", 18)
        srd(a, SRD_WOA, P + 4, 448 * 896); srd(a, SRD_WOB, P + 10, 448 * 896)
        a(f"""
        s_cmp_eq_u32 s3, 5
        s_cbranch_scc0 L_notl
        v_lshlrev_b32 v7, {st}, v0
        s_lshl_b32 s51, s2, 7
        s_add_u32 s51, s51, 64
        buffer_load_dword v{GO+4}, v7, {WS}, s51 offen
        s_mul_i32 s51, s{S_RB2}, {64*1792}
        s_lshl_b32 s52, s{S_CB2}, 7
        s_add_u32 s51, s51, s52
        v_mul_u32_u24 v8, {32*1792}, v2
        buffer_load_dword v{GO+5}, v8, {sr(SRD_OUT)}, s51 offen
        buffer_load_dword v{GO+6}, v7, {sr(SRD_WOA)}, s52 offen
        buffer_load_dword v{GO+7}, v7, {sr(SRD_WOB)}, s52 offen
        L_notl:
        """)
    if X("CODEPF", 1):
        a(f"""
        s_cmp_eq_u32 s3, 4
        s_cbranch_scc0 L_nopf
        s_getpc_b64 s[52:53]
        L_pc:
        s_lshr_b32 s51, s2, 3
        s_lshl_b32 s51, s51, 10
        v_add_u32 v7, s51, v6
        s_sub_u32 s52, s52, L_pc - L_begin
        s_subb_u32 s53, s53, 0
        v_cmp_gt_u32 vcc, L_codeend - L_begin - 12, v7
        s_nop 0
        s_and_saveexec_b64 s[54:55], vcc
        s_cbranch_execz L_pfe
        global_load_dwordx4 v[{GO}:{GO+3}], v7, s[52:53]
        L_pfe:
        s_mov_b64 exec, -1
        L_nopf:
        """)
    a(f"""
    s_cmp_eq_u32 s{S_ACT}, 0
    s_cbranch_scc1 L_gidle
    v_lshrrev_b32 v4, 1, v1
    v_and_b32 v4, 7, v4
    v_xor_b32 v4, v4, v2
    v_lshlrev_b32 v4, 4, v4
    v_lshl_add_u32 v8, v1, 7, v4
    v_xor_b32 v9, 32, v8
    v_xor_b32 v10, 64, v8
    v_xor_b32 v11, 96, v8
    s_and_b32 s51, s3, 1
    """)
    w_frag_addr(a, 12, "s51")
    a(f"""
    s_bfe_u32 s51, s3, 0x10001
    s_lshl_b32 s51, s51, 13
    s_add_u32 s51, s51, 12288
    v_add_u32 v12, s51, v12
    s_add_u32 s51, s{S_COL}, s{S_W4}
    s_cmp_eq_u32 s{S_RB}, 21
    s_cselect_b32 s55, 2, 0
    s_cmp_eq_u32 s{S_CB}, 10
    s_cselect_b32 s56, 2, 0
    s_cmp_lt_u32 s{S_W4}, s56
    s_cselect_b32 s55, 3, s55
    s_lshr_b32 s57, s{S_ROW}, 5
    s_cmp_ge_u32 s3, 4
    s_cselect_b32 s58, {3*SEC}, 0
    s_cselect_b32 s59, {FA - FB}, 0
    s_cselect_b32 s52, {(7 % GNS) * GSLOT}, 0
    s_add_u32 s59, s59, {FB}
    s_lshl_b32 s60, s51, 12
    s_add_u32 s59, s59, s60
    s_lshl_b32 s60, s{S_RB}, 7
    s_add_u32 s59, s59, s60
    """)
    a(f"v_mov_b32 v{ACC}, 0\nv_mov_b32 v{ACC+1}, 0")
    for r in range(2, 48, 2): a(f"v_pk_mov_b32 {vr(ACC+r,2)}, {vr(ACC,2)}, {vr(ACC,2)}")
    a("s_cmp_ge_u32 s51, 28\ns_cbranch_scc1 L_gV")
    def addr_list():
        return [f"v_add_u32 v{16+i}, s52, v{8+i}" for i in range(5)] + [f"s_add_u32 s52, s52, {GSLOT}", f"s_cmp_ge_u32 s52, {GSLOT*GNS}", "s_cselect_b32 s52, 0, s52"]
    def addrs():
        for x in addr_list(): a(x)
    def read_list(ks):
        f = FR + 16 * ks
        return [f"ds_read_b64_tr_b16 {vr(f+12, 2)}, v20 offset:{ks*2048}", f"ds_read_b64_tr_b16 {vr(f+14, 2)}, v20 offset:{ks*2048+512}"] + \
               [f"ds_read_b128 {vr(f + 4*m, 4)}, v{16+ks} offset:{m*4096}" for m in range(3)]
    def reads(ks):
        for x in read_list(ks): a(x)
    for var in ("QK", "V"):
        t = f"L_g{var}"
        a(f"{t}:")
        if var == "QK":
            a(f"""
            v_mov_b32 v13, v6
            v_add_u32 v14, 1024, v6
            s_cmp_ge_u32 s51, 14
            s_cselect_b32 s53, {SEC - 14*2048}, 0
            s_cselect_b32 s54, 1.0, {hex(f2u(QSCALE))}
            s_lshl_b32 s60, s51, 11
            s_add_u32 s53, s53, s60
            s_mul_i32 s60, s57, 28672
            s_add_u32 s53, s53, s60
            s_mov_b32 s57, 28672
            v_mov_b32 v22, s54
            """)
        else:
            a(f"""
            v_and_b32 v4, 31, v3
            s_sub_u32 s60, s51, 28
            s_lshl_b32 s60, s60, 5
            v_add_u32 v4, s60, v4
            v_mul_u32_u24 v7, 2341, v4
            v_lshrrev_b32 v7, 16, v7
            v_mul_u32_u24 v13, 28, v7
            v_sub_u32 v4, v4, v13
            v_mul_u32_u24 v7, {64*1792}, v7
            v_lshl_add_u32 v13, v4, 4, v7
            v_mul_u32_u24 v4, 448, v2
            v_add_u32 v13, v13, v4
            v_add_u32 v14, 896, v13
            s_mul_i32 s53, s57, 1792
            s_add_u32 s53, s53, {2*SEC}
            s_mov_b32 s57, 1792
            v_mov_b32 v22, {hex(f2u(2.0**VS))}
            """)
        a(f"s_add_u32 s53, s53, s58")
        addrs()
        a(f"s_cmp_ge_u32 s3, 4\ns_cbranch_scc0 {t}_go")
        for i in range(7): a("s_barrier")
        a(f"s_waitcnt vmcnt(0)\n{t}_go:\ns_barrier")
        def mf(ks, fill=((), (), ())):
            f = FR + 16 * ks
            for m in range(3):
                x, w, d = vr(f + 4*m, 4), vr(f + 12, 4), vr(ACC + 16*m, 16)
                if var == "QK": a(f"v_mfma_f32_32x32x16_bf16 {d}, {w}, {x}, {d}")
                else: a(f"v_mfma_f32_32x32x16_bf16 {d}, {x}, {w}, {d}")
                for y in fill[m]: a(y)
        def spread(ks):
            r = read_list(ks); return (r[0:2], r[2:4], r[4:5])
        reads(0); reads(1)
        a("s_mov_b32 s56, 6")
        if X("GAL", 0): a.l.append(f".p2align {X('GAL', 0)}")
        a(f"{t}_chunk:")
        a("s_waitcnt lgkmcnt(5)"); mf(0, spread(2))
        r3 = read_list(3)
        a("s_waitcnt lgkmcnt(5)"); mf(1, (r3[0:3], r3[3:5], ["s_cmp_eq_u32 s56, 0", f"s_cbranch_scc1 {t}_last"]))
        al = addr_list()
        a("s_waitcnt lgkmcnt(5)")
        mf(2, (al[0:5], al[5:8] + ["s_sub_u32 s56, s56, 1", "s_waitcnt lgkmcnt(0)", "s_barrier"], read_list(0)[0:3]))
        r0, r1 = read_list(0), read_list(1)
        mf(3, (r0[3:5], r1[0:3], r1[3:5]))
        a(f"s_branch {t}_chunk\n{t}_last:\ns_waitcnt lgkmcnt(0)")
        if X("A0EARLY", 0):
            a("s_barrier")
            stamp(a, 2)
        else:
            if not X("G7LATE", 1): a(f"s_cmp_ge_u32 s3, 4\ns_cbranch_scc1 {t}_nb0\ns_barrier\n{t}_nb0:")
        for m in range(3):
            for ks in (2, 3):
                f = FR + 16 * ks
                x, w, d = vr(f + 4*m, 4), vr(f + 12, 4), vr(ACC + 16*m, 16)
                if var == "QK": a(f"v_mfma_f32_32x32x16_bf16 {d}, {w}, {x}, {d}")
                else: a(f"v_mfma_f32_32x32x16_bf16 {d}, {x}, {w}, {d}")
        a("s_nop 6\ns_branch L_gcvt" if var == "QK" else "s_nop 7")
    a("L_gcvt:")
    trace(a, 44)
    for m in range(3):
        a(f"s_cmp_ge_u32 s3, 4\ns_cbranch_scc1 L_gnm{m}")
        for r in range(16*m, 16*m+16, 2): a(f"v_pk_mul_f32 {vr(ACC+r,2)}, {vr(ACC+r,2)}, v[22:23] op_sel_hi:[1,0]")
        a(f"L_gnm{m}:")
        for r in range(8*m, 8*m+8): a(f"v_cvt_pk_bf16_f32 v{GO+r}, v{ACC+2*r}, v{ACC+2*r+1}")
        a(f"s_cmp_ge_u32 s3, 4\ns_cbranch_scc1 {'L_att' if m == 2 else 'L_gns%d' % m}")
        gemm_store(a, m)
        a(f"L_gns{m}:")
    trace(a, 45)
    PUB = X("PUB", 7)
    if X("G7LATE", 1): a("s_barrier")
    for g in range(8, 14):
        if g == 8 and PUB == 7: gemm_publish(a)
        if g == 13: trace(a, 49); ones_pads(a); trace(a, 50)
        a("s_barrier")
        if g == PUB: gemm_publish(a)
    stamp(a, 1)
    a("s_branch L_att")
    a(f"""
    L_gidle:
    s_waitcnt vmcnt(0)
    s_mov_b32 s55, 3
    v_mov_b32 v13, 0
    v_mov_b32 v14, 0
    s_barrier
    s_cmp_ge_u32 s3, 4
    s_cbranch_scc1 L_gidle1
    """)
    ones_pads(a)
    a("s_branch L_att\nL_gidle1:")
    if X("A0EARLY", 0): a("s_barrier"); stamp(a, 2)

S0, S1, O_, CM, QF, KF, V0, V1, IDX, AD0, AD1, PART = 16, 32, 48, 64, 80, 88, 96, 100, 104, 105, 106, 108
def attn_compute(a):
    a(f"""
    L_att:
    v_mov_b32 v{IDX}, 0xdddddddd
    s_lshr_b32 s51, s3, 2
    s_lshl_b32 s51, s51, 13
    s_add_u32 s51, s51, {L_RING}
    v_add_u32 v{AD0}, s51, v5
    v_add_u32 v{AD1}, 0x10000, v{AD0}
    s_lshl_b32 s51, s{S_W4}, 11
    s_add_u32 s51, s51, {L_Q}
    v_add_u32 v8, s51, v6
    """)
    def rd(dst, n, frag):
        st, u = n >> 1, n & 1
        off = slot_addr(st) - L_RING + u * 4096 + frag * 1024
        if X("HALFRD") and n % 2 == 1 and 1 < n < 30:
            if frag == 0 and X("HALFRD") == 1: a("s_nop 1")
            return
        a(f"ds_read_b128 {vr(dst,4)}, v{AD0 if off < 65536 else AD1} offset:{off & 0xffff}")
    def misc_init():
        a(f"v_mov_b32 v{O_}, 0\nv_mov_b32 v{O_+1}, 0")
        for r in range(2, 16, 2): a(f"v_pk_mov_b32 {vr(O_+r,2)}, {vr(O_,2)}, {vr(O_,2)}")
        a(f"""
        s_lshl_b32 s51, s3, 11
        s_add_u32 s51, s51, {L_COMB}
        v_add_u32 v107, s51, v6
        v_xor_b32 v124, 0x2000, v107
        s_lshl_b32 s51, s3, 8
        s_add_u32 s51, s51, {L_SYNC + 4096}
        v_lshl_add_u32 v125, v0, 2, s51
        v_xor_b32 v126, 0x400, v125
        s_lshl_b32 s51, s{S_W4}, 8
        v_lshl_add_u32 v9, v0, 2, s51
        """)
    if X("A0EARLY", 0): a("s_cmp_ge_u32 s3, 4\ns_cbranch_scc1 L_att0")
    misc_init()
    if X("ASTORE", 12) in (7, 8):
        a("s_cmp_ge_u32 s3, 4\ns_cbranch_scc0 L_att00")
        for m in range(3 if X("ASTORE", 12) == 7 else 1): gemm_store(a, m)
        a("L_att00:")
    a("s_waitcnt lgkmcnt(0)\ns_barrier\nL_att0:")
    if not X("A0EARLY", 0): stamp(a, 2)
    trace(a, 51)
    a(f"""
    ds_read_b128 {vr(QF,4)}, v8
    ds_read_b128 {vr(QF+4,4)}, v8 offset:1024
    """)
    rd(KF, 0, 0); rd(KF + 4, 0, 1); rd(V0, 0, 2)
    a("s_waitcnt lgkmcnt(3)")
    zero_qpad(a, QF)
    a(f"""
    s_waitcnt lgkmcnt(1)
    s_nop 0
    v_mfma_f32_32x32x16_bf16 {vr(S0,16)}, {vr(KF,4)}, {vr(QF,4)}, 0
    v_mfma_f32_32x32x16_bf16 {vr(S0,16)}, {vr(KF+4,4)}, {vr(QF+4,4)}, {vr(S0,16)}
    """)
    rd(KF, 1, 0); rd(KF + 4, 1, 1)
    a(f"""
    s_cmp_ge_u32 s3, 4
    s_cbranch_scc1 L_g1m
    s_nop 7
    v_max3_f32 v7, v{S0}, v{S0+1}, v{S0+2}
    v_max3_f32 v8, v{S0+3}, v{S0+4}, v{S0+5}
    v_max3_f32 v7, v7, v{S0+6}, v{S0+7}
    v_max3_f32 v8, v8, v{S0+8}, v{S0+9}
    v_max3_f32 v7, v7, v{S0+10}, v{S0+11}
    v_max3_f32 v8, v8, v{S0+12}, v{S0+13}
    v_max3_f32 v7, v7, v{S0+14}, v{S0+15}
    v_max_f32 v7, v7, v8
    v_mov_b32 v8, v7
    s_nop 1
    v_permlane32_swap_b32 v7, v8
    v_max_f32 v7, v7, v8
    v_sub_f32 v{CM}, {hex(f2u(-float(X("BIAS", 104))))}, v7
    ds_write_b32 v9, v{CM}
    s_branch L_havem
    L_g1m:
    """)
    if X("A0EARLY", 0): misc_init()
    else: a("s_setprio 3")
    if X("ASTORE", 12) == 6:
        for m in range(3): gemm_store(a, m)
    if X("ASTORE", 12) == 8:
        for m in range(1, 3): gemm_store(a, m)
    if X("ASTORE", 12) in (9, 12):
        for m in range(2): gemm_store(a, m)
    if X("ASTORE", 12) in (11, 13): gemm_store(a, 0)
    if X("ASTORE", 12) in (1, 4, 5, 10): a("s_nop 2")
    trace(a, 52)
    a(f"""
    s_barrier
    ds_read_b32 v{CM}, v9
    s_waitcnt lgkmcnt(0)
    L_havem:
    v_mov_b32 v{CM+1}, v{CM}
    """)
    trace(a, 53)
    for r in range(0, 16, 2): a(f"v_pk_add_f32 {vr(S0+r,2)}, {vr(S0+r,2)}, {vr(CM,2)}")
    for r in range(2, 16, 2): a(f"v_pk_mov_b32 {vr(CM+r,2)}, {vr(CM,2)}, {vr(CM,2)}")
    def step(n, grp=None):
        Sc = S0 if n % 2 == 0 else S1
        Sn = S1 if n % 2 == 0 else S0
        def ex(lo, hi):
            for r in range(lo, hi): a(f"v_exp_f32 v{Sc+r}, v{Sc+r}")
        last = n == 31
        PR = X("PRIO", 1)
        if PR == 1 and 0 < n:
            lad = os.environ.get("LAD", "0210")
            if lad[n % 4] != "x": a(f"s_setprio {lad[n % 4]}")
        e0, e1_, e2_, e3_ = [int(x) for x in os.environ.get("SPL", "2,5,8,12").split(",")]
        WM = X("WM", 3) if 0 < n < 30 else 3
        ex(0, e0)
        if n > 0:
            a(f"s_waitcnt lgkmcnt({1 if last else {3: 3, 2: 1, 1: 0}[WM]})")
            a(f"v_smfmac_f32_32x32x32_bf16 {vr(O_,16)}, {vr(V1,4)}, {vr(Sn+8,8)}, v{IDX}")
        rd(V1, n, 3)
        nk = 0
        if last and grp == 1:
            trace(a, 61)
            a("s_barrier")
            trace(a, 62)
            for i in range(4): a(f"ds_read_b128 {vr(PART+4*i,4)}, v107 offset:{i*1024}")
            nk = 4
        ex(e0, e1_)
        if not last:
            if WM == 3: a(f"s_waitcnt lgkmcnt({2 if n > 0 else 1})")
            a(f"v_mfma_f32_32x32x16_bf16 {vr(Sn,16)}, {vr(KF,4)}, {vr(QF,4)}, {vr(CM,16)}")
        ex(e1_, e2_)
        if not last:
            a(f"v_mfma_f32_32x32x16_bf16 {vr(Sn,16)}, {vr(KF+4,4)}, {vr(QF+4,4)}, {vr(Sn,16)}")
        if n + 2 < 32:
            if n in (0, 1, 2, 3, 4, 28, 29): trace(a, {0: 54, 1: 55, 2: 56, 3: 57, 4: 58, 28: 59, 29: 60}[n])
            if n in ABAR:
                if n == 0: a("s_cmp_ge_u32 s3, 4\ns_cbranch_scc1 L_nb0\ns_barrier\nL_nb0:")
                else: a("s_barrier")
                if PR == 1: a(f"s_setprio {X('PTOP', 2)}")
                if n == 28 and X("ENDP", 0): a("s_cmp_ge_u32 s3, 4\ns_cbranch_scc1 L_ep\ns_setprio 2\nL_ep:")
            rd(KF, n + 2, 0); rd(KF + 4, n + 2, 1); nk = 2
        ex(e2_, e3_)
        if WM > 1: a(f"s_waitcnt lgkmcnt({1 + nk})")
        a(f"v_smfmac_f32_32x32x32_bf16 {vr(O_,16)}, {vr(V0,4)}, {vr(Sc,8)}, v{IDX}")
        if not last: rd(V0, n + 1, 2)
        if n == 30: a("s_nop 1")
        AS = {0: {2: [0, 1], 3: [2]}, 1: {1: [0], 2: [1], 3: [2]}, 2: {3: [0, 1, 2]}, 3: {2: [0, 1, 2]}, 4: {0: [0, 1, 2]}, 5: {0: [0, 1], 1: [2]}, 6: {}, 7: {}, 8: {}, 9: {4: [2]}, 10: {0: [0], 1: [1], 2: [2]}, 11: {0: [1], 1: [2]}, 12: {X('S3', 1): [2]}, 13: {X('S2', 1): [1], X('S3', 2): [2]}}[X("ASTORE", 12)]
        if n in AS or n == X("APUB", 5):
            L = a.lab("g1")
            a(f"s_cmp_ge_u32 s3, 4\ns_cbranch_scc0 {L}")
            if n in AS:
                for m in AS[n]: gemm_store(a, m)
            else: gemm_publish(a)
            a(f"{L}:")
        ex(e3_, 16)
        if last:
            a("s_waitcnt lgkmcnt(0)")
            a("s_barrier" if grp == 1 else "s_nop 0")
            a(f"v_smfmac_f32_32x32x32_bf16 {vr(O_,16)}, {vr(V1,4)}, {vr(S1+8,8)}, v{IDX}")
    if X("AAL", 0): a.l.append(f".p2align {X('AAL', 0)}")
    for i in range(X("APAD", 0)): a("s_nop 0")
    for n in range(32): step(n, 0)
    stamp(a, 3); trace(a, 112)
    a(f"""
    s_lshl_b32 s51, s{S_QB}, 2
    s_add_u32 s51, s51, s{S_W4}
    s_lshl_b32 s51, s51, 4
    s_add_u32 s51, s51, s{S_HD}
    s_lshl_b32 s51, s51, 11
    s_add_u32 s51, s51, {OB}
    s_mov_b32 s62, {hex(f2u(2.0**-90))}
    s_setprio 2
    s_cmp_ge_u32 s3, 4
    s_nop 1
    s_cbranch_scc1 L_fin1
    """)
    x, y, r, rm, pk = S1, S1 + 1, S1 + 2, S1 + 4, S1 + 8
    for hf in range(2):
        keep, send = O_ + 8 * hf, O_ + 8 * (1 - hf)
        real, padg, M = (keep + 4, keep, MA) if hf == 0 else (keep, keep + 4, MB)
        if hf: a("L_fin1:")
        a(f"""
        ds_write_b128 v107, {vr(send,4)}
        v_cndmask_b32 v{x}, v{O_+12}, v{O_}, s[{MODD}:{MODD+1}]
        ds_write_b128 v107, {vr(send+4,4)} offset:1024
        ds_write_b32 v125, v{x}
        s_waitcnt lgkmcnt(0)
        s_barrier
        ds_read_b32 v{y}, v126
        ds_read_b128 {vr(PART,4)}, v124
        ds_read_b128 {vr(PART+4,4)}, v124 offset:1024
        s_waitcnt lgkmcnt(2)
        v_add_f32 v{x}, v{x}, v{y}
        v_mov_b32 v{y}, v{x}
        s_waitcnt lgkmcnt(0)
        {"s_nop 0" if X("E2L", 1) else "s_barrier"}
        v_permlane32_swap_b32 v{x}, v{y}
        """)
        for k in range(0, 8, 2): a(f"v_pk_add_f32 {vr(keep+k,2)}, {vr(keep+k,2)}, {vr(PART+k,2)}")
        a(f"""
        v_cndmask_b32 v{x}, v{y}, v{x}, s[{MODD}:{MODD+1}]
        v_maximum3_f32 v8, |v{real}|, |v{real+1}|, |v{real+2}|
        v_rcp_f32 v{r}, v{x}
        v_maximum3_f32 v9, |v{padg}|, |v{padg+1}|, |v{padg+2}|
        v_maximum3_f32 v8, v8, |v{real+3}|, |v{real+3}|
        v_maximum3_f32 v9, v9, |v{padg+3}|, v{x}
        v_cmp_gt_f32 s[60:61], s62, v8
        v_maximum3_f32 v9, v9, v8, v8
        v_cndmask_b32 v{rm}, v{r}, 0, s[{M}:{M+1}]
        v_cmp_ngt_f32 vcc, {'-1.0' if X('FORCEFB') else hex(f2u(2.0**120))}, v9
        v_pk_mul_f32 {vr(real,2)}, {vr(real,2)}, {vr(r,2)} op_sel_hi:[1,0]
        s_or_b64 vcc, vcc, s[60:61]
        s_cbranch_scc1 L_fallback
        v_pk_mul_f32 {vr(real+2,2)}, {vr(real+2,2)}, {vr(r,2)} op_sel_hi:[1,0]
        v_pk_mul_f32 {vr(padg,2)}, {vr(padg,2)}, {vr(rm,2)} op_sel_hi:[1,0]
        v_pk_mul_f32 {vr(padg+2,2)}, {vr(padg+2,2)}, {vr(rm,2)} op_sel_hi:[1,0]
        """)
        for k in range(4): a(f"v_cvt_pk_bf16_f32 v{pk+k}, v{keep+2*k}, v{keep+2*k+1}")
        a(f"buffer_store_dwordx4 {vr(pk,4)}, v6, {WS}, s51 offen offset:{1024*hf} sc1")
        trace(a, 113)
        if X("E2L", 1): a("s_barrier")
        if hf == 0: a("s_branch L_g0o")
    a(f"""
    s_branch L_end
    L_g0o:
    s_setprio 0
    s_cmp_eq_u32 s{S_ACT2}, 0
    s_cbranch_scc1 L_end
    {"" if X("INITF", 0) else "s_waitcnt vmcnt(0)"}
    """)
    oproj_params(a, "B")
    oproj_init(a)
    if X("INITF", 0) == 1: a("s_waitcnt vmcnt(0)")
    a.vm_reset()
    oproj_loads(a)
    a("s_branch L_oproj")
    fallback(a)

def fallback(a):
    a(f"""
    L_fallback:
    {"s_barrier" if X("E2L", 1) else ""}
    v_and_b32 v7, 31, v3
    s_lshl_b32 s54, s{S_ODD}, 2
    v_subrev_u32 v8, s54, v7
    v_cmp_gt_u32 s[60:61], 28, v8
    v_mul_u32_u24 v9, 448, v2
    v_lshl_add_u32 v8, v8, 4, v9
    v_add_u32 v8, 256, v8
    v_mov_b32 v7, 0xff800000
    s_add_u32 s54, s{S_P0}, {KB}
    s_mov_b32 s56, 64
    L_fb1:
    buffer_load_dwordx4 {vr(KF,4)}, v5, {WS}, s54 offen sc1
    buffer_load_dwordx4 {vr(KF+4,4)}, v5, {WS}, s54 offen offset:1024 sc1
    s_add_u32 s54, s54, 28672
    s_waitcnt vmcnt(0)
    v_mfma_f32_32x32x16_bf16 {vr(S0,16)}, {vr(KF,4)}, {vr(QF,4)}, 0
    v_mfma_f32_32x32x16_bf16 {vr(S0,16)}, {vr(KF+4,4)}, {vr(QF+4,4)}, {vr(S0,16)}
    s_nop 11
    """)
    for r in range(0, 16, 2): a(f"v_max3_f32 v7, v7, v{S0+r}, v{S0+r+1}")
    a(f"""
    s_sub_u32 s56, s56, 1
    s_cmp_lg_u32 s56, 0
    s_cbranch_scc1 L_fb1
    v_mov_b32 v9, v7
    s_nop 1
    v_permlane32_swap_b32 v7, v9
    v_max_f32 v7, v7, v9
    """)
    for r in range(16): a(f"v_sub_f32 v{CM+r}, 0, v7\nv_mov_b32 v{O_+r}, 0")
    for r in range(8): a(f"v_mov_b32 v{V0+r}, {hex(ONES)}")
    a(f"""
    s_add_u32 s54, s{S_P0}, {KB}
    s_mul_i32 s57, s{S_HD}, {64*1792}
    s_add_u32 s57, s57, {VB - 256}
    s_mov_b32 s56, 64
    L_fb2:
    buffer_load_dwordx4 {vr(KF,4)}, v5, {WS}, s54 offen sc1
    buffer_load_dwordx4 {vr(KF+4,4)}, v5, {WS}, s54 offen offset:1024 sc1
    s_mov_b64 exec, s[60:61]
    buffer_load_dwordx4 {vr(V0,4)}, v8, {WS}, s57 offen sc1
    buffer_load_dwordx4 {vr(V1,4)}, v8, {WS}, s57 offen offset:896 sc1
    s_mov_b64 exec, -1
    s_add_u32 s54, s54, 28672
    s_add_u32 s57, s57, 1792
    s_waitcnt vmcnt(0)
    v_mfma_f32_32x32x16_bf16 {vr(S0,16)}, {vr(KF,4)}, {vr(QF,4)}, {vr(CM,16)}
    v_mfma_f32_32x32x16_bf16 {vr(S0,16)}, {vr(KF+4,4)}, {vr(QF+4,4)}, {vr(S0,16)}
    s_nop 11
    """)
    for r in range(16): a(f"v_exp_f32 v{S0+r}, v{S0+r}")
    a(f"""
    s_nop 1
    v_smfmac_f32_32x32x32_bf16 {vr(O_,16)}, {vr(V0,4)}, {vr(S0,8)}, v{IDX}
    v_smfmac_f32_32x32x32_bf16 {vr(O_,16)}, {vr(V1,4)}, {vr(S0+8,8)}, v{IDX}
    s_sub_u32 s56, s56, 1
    s_cmp_lg_u32 s56, 0
    s_nop 7
    s_cbranch_scc1 L_fb2
    s_nop 7
    """)
    a("s_cmp_ge_u32 s3, 4\ns_cbranch_scc1 L_fbh1")
    finish_O(a, O_, S1, 51, True, halves=(0,))
    a("s_branch L_g0o\nL_fbh1:")
    finish_O(a, O_, S1, 51, True, halves=(1,))
    a("s_branch L_end")

OF, OACC, OW, OAD = 16, 80, 112, 144
def oproj_params(a, br):
    Ob, LW, red, fl, oo = (OA, L_WOA, L_RED, 0, 0) if br == "A" else (OB, L_WOB, L_COMB, 16, 896)
    a(f"""
    s_and_b32 s55, s{S_W4}, 1
    s_lshl_b32 s52, s{S_RB2}, 1
    s_add_u32 s55, s55, s52
    s_lshr_b32 s51, s{S_W4}, 1
    s_lshl_b32 s52, s55, 15
    s_lshl_b32 s53, s51, 14
    s_add_u32 s52, s52, s53
    s_add_u32 s52, s52, {Ob}
    s_mul_i32 s55, s55, {32*1792}
    s_lshl_b32 s53, s{S_CB2}, 7
    s_add_u32 s55, s55, s53
    s_lshl_b32 s53, s51, 6
    s_add_u32 s55, s55, s53
    s_add_u32 s55, s55, {oo}
    s_lshl_b32 s53, s{S_W4}, 12
    s_xor_b32 s54, s53, 0x2000
    s_add_u32 s53, s53, {red}
    s_add_u32 s54, s54, {red}
    s_mul_i32 s57, s51, {224*128}
    s_add_u32 s57, s57, {LW}
    s_lshl_b32 s58, s{S_W4}, 2
    s_add_u32 s58, s58, {L_SYNC + fl}
    """)
def oproj_init(a):
    w_frag_addr(a, OAD, "0")
    a(f"""
    v_add_u32 v{OAD}, s57, v{OAD}
    v_xor_b32 v{OAD+1}, 64, v{OAD}
    v_add_u32 v{OAD+2}, s53, v6
    v_add_u32 v{OAD+3}, s54, v6
    v_mov_b32 v{OAD+4}, s58
    v_xor_b32 v{OAD+5}, 8, v{OAD+4}
    v_mov_b32 v{OAD+6}, 1
    v_mul_u32_u24 v{OAD+7}, 1792, v1
    v_lshl_add_u32 v{OAD+7}, v2, 4, v{OAD+7}
    v_add_u32 v{OAD+8}, 0x1000, v6
    v_add_u32 v{OAD+9}, 0x2000, v6
    v_add_u32 v{OAD+10}, 0x3000, v6
    """)
def o_load(a, k):
    for s in range(2):
        f = 2 * k + s
        va = 6 if f < 4 else OAD + 7 + f // 4
        a.vmem(f"buffer_load_dwordx4 {vr(OF+4*f,4)}, v{va}, {WS}, s52 offen offset:{(f&3)*1024} sc1", f"of{k}")
def oproj_loads(a):
    for k in range(8): o_load(a, k)
def oproj_main(a):
    a("L_oproj:")
    if X("TSTAMP"): stamp(a, 2)
    trace(a, 114)
    NB = 4
    def wlist(j):
        if j >= 16: return []
        k, st = j >> 1, j & 1
        row = 28 * k - 4 * (k & 1) + 16 * st
        r = []
        for n in range(2):
            f = OW + 8 * (j % NB) + 4 * n
            r.append(f"ds_read_b64_tr_b16 {vr(f,2)}, v{OAD+n} offset:{row*128}")
            r.append(f"ds_read_b64_tr_b16 {vr(f+2,2)}, v{OAD+n} offset:{row*128+512}")
        return r
    def clist(k):
        o = OF + 8 * k
        return [f"v_max3_u32 v7, v{o}, v{o+1}, v{o+2}", f"v_max3_u32 v4, v{o+3}, v{o+4}, v{o+5}", f"v_max3_u32 v7, v7, v{o+6}, v{o+7}",
                "v_max_u32 v7, v7, v4", "v_cmp_eq_u32 vcc, -1, v7"]
    def check(k):
        for x in clist(k): a(x)
    for j in range(NB - 1):
        for x in wlist(j): a(x)
    a("s_mov_b32 s63, 0\ns_movk_i32 s56, 0\ns_waitcnt vmcnt(14)")
    check(0)
    a("s_waitcnt lgkmcnt(8)")
    for j in range(16):
        k = j >> 1
        if j % 2 == 0: a(f"s_cbranch_vccnz L_oretry\nL_ob{k}:")
        w = wlist(j + NB - 1)
        nxt = min(j + NB - 1, 15) - (j + 1)
        fills = [w[0:2], w[2:4]]
        if j % 2 == 1 and k < 7:
            c = clist(k + 1)
            fills = [w[0:4] + [f"s_waitcnt vmcnt({12 - 2*k})"], c + [f"s_movk_i32 s56, {k+1}"]]
        if j < 15: fills[1] = fills[1] + [f"s_waitcnt lgkmcnt({4*nxt})"]
        for n in range(2):
            d = vr(OACC + 16 * n, 16)
            a(f"v_mfma_f32_32x32x16_bf16 {d}, {vr(OW+8*(j%NB)+4*n,4)}, {vr(OF+4*j,4)}, {d if j else 0}")
            for x in fills[n]: a(x)
    a("s_branch L_odone")
    a(f"L_oretry:\ns_mov_b32 s60, 0\ns_brev_b32 s61, 1\ns_waitcnt vmcnt(0)\nL_ore2:\ns_mov_b32 s59, 0")
    for k in range(8):
        a(f"s_cmp_gt_u32 s56, {k}\ns_cbranch_scc1 L_o2_{k}")
        check(k)
        a(f"s_nop 0\ns_cbranch_vccz L_o2_{k}\ns_bitset1_b32 s59, {k}")
        if X("RGATE", 0):
            a(f"v_readlane_b32 s62, v{OF+8*k+7}, 63\ns_nop 0\ns_cmp_lg_u32 s62, -1\ns_cselect_b64 exec, -1, s[60:61]")
        o_load(a, k)
        if X("RGATE", 0): a("s_mov_b64 exec, -1")
        a(f"L_o2_{k}:")
    a(f"""
    s_add_u32 s63, s63, 1
    s_waitcnt vmcnt(0)
    s_cmp_ge_u32 s63, {SPIN_MAX}
    s_cbranch_scc1 L_oret
    s_bitcmp1_b32 s59, s56
    s_cbranch_scc0 L_oret
    """)
    for k in range(8):
        a(f"s_cmp_eq_u32 s56, {k}\ns_cbranch_scc0 L_o4_{k}")
        check(k)
        a(f"s_nop 0\ns_cbranch_vccz L_ob{k}\ns_branch L_osl\nL_o4_{k}:")
    a("L_osl:")
    if X("OSLEEP", 1): a(f"s_sleep {X('OSLEEP', 1)}")
    a("s_branch L_ore2\nL_oret:")
    for k in range(7): a(f"s_cmp_eq_u32 s56, {k}\ns_cbranch_scc1 L_ob{k}")
    a("s_branch L_ob7\nL_odone:")
    if TRACE: a(f"v_writelane_b32 v166, s63, 63")
    trace(a, 116)
    if X("TSTAMP"): stamp(a, 3)
    a("s_cmp_eq_u32 s51, 0\ns_nop 7\ns_mov_b32 s63, 0\ns_cbranch_scc1 L_ok0")
    for var in (1, 0):
        keep, send = OACC + 16 * var, OACC + 16 * (1 - var)
        if var == 0: a("L_ok0:")
        for i in range(4): a(f"ds_write_b128 v{OAD+2}, {vr(send+4*i,4)} offset:{i*1024}")
        a(f"ds_write_b32 v{OAD+4}, v{OAD+6}\nL_ow{var}:\nds_read_b32 v7, v{OAD+5}")
        for i in range(4): a(f"ds_read_b128 {vr(OF+4*i,4)}, v{OAD+3} offset:{i*1024}")
        a(f"""
        s_add_u32 s63, s63, 1
        s_waitcnt lgkmcnt(4)
        v_cmp_eq_u32 vcc, 0, v7
        s_cmp_ge_u32 s63, {SPIN_MAX*8}
        s_cbranch_scc1 L_og{var}
        s_cbranch_vccnz L_ow{var}
        L_og{var}:
        """)
        for hf in range(2):
            a(f"s_waitcnt lgkmcnt({2 - 2*hf})")
            for r in range(8*hf, 8*hf+8, 2): a(f"v_pk_add_f32 {vr(keep+r,2)}, {vr(keep+r,2)}, {vr(OF+r,2)}")
            for r in range(4*hf, 4*hf+4): a(f"v_cvt_pk_bf16_f32 v{OF+16+r}, v{keep+2*r}, v{keep+2*r+1}")
            if os.environ.get("OUTA"):
                L = a.lab("oa")
                a(f"s_cmp_ge_u32 s3, 8\ns_cbranch_scc0 {L}\nbuffer_store_dwordx4 {vr(OF+16+4*hf,4)}, v{OAD+7}, {sr(SRD_OUT)}, s55 offen offset:{32*hf} {os.environ['OUTA']}\ns_branch {L}d\n{L}:")
            a(f"buffer_store_dwordx4 {vr(OF+16+4*hf,4)}, v{OAD+7}, {sr(SRD_OUT)}, s55 offen offset:{32*hf} {os.environ.get('OUTF', '')}")
            if os.environ.get("OUTA"): a(f"{L}d:")
        if var == 1: a("s_branch L_oe")
    a("L_oe:")
    if X("TSTAMP"): stamp(a, 1)
    trace(a, 117)
    if TRACE: a("s_waitcnt vmcnt(0)")
    trace(a, 118)

FL, SNV = 132, 158
VW, VVA, VVB, VR0, VR1 = 161, 162, 163, 164, 167
def qkv_flag_loads(a, F):
    vt = FL
    a(f"""
    s_lshr_b32 s51, s{S_P0}, 11
    s_add_u32 s52, s{S_P0}, 1536
    s_lshr_b32 s52, s52, 11
    s_sub_u32 s52, s52, s51
    s_lshl_b32 s52, s52, 12
    v_mul_u32_u24 v7, s52, v2
    s_lshl_b32 s51, s51, 12
    s_add_u32 s79, s51, {F}
    s_lshl_b32 s51, s{S_QB}, 2
    """)
    if F == FB: a("s_add_u32 s52, s51, 3")
    else: a(f"s_add_u32 s52, s51, s{S_W4}\ns_max_u32 s51, s52, 1\ns_sub_u32 s51, s51, 1")
    a(f"""
    s_mul_i32 s51, s51, 86
    s_lshr_b32 s51, s51, 8
    s_mul_i32 s52, s52, 86
    s_lshr_b32 s52, s52, 8
    v_max_u32 v4, s51, v1
    v_min_u32 v4, s52, v4
    v_lshl_add_u32 v{vt+7}, v4, 7, v7
    """)
    if F == FB: a(f"v_min_u32 v4, 21, v1")
    a(f"""
    v_lshl_add_u32 v{vt+6}, v4, 7, v7
    v_add_u32 v{vt+6}, {14*4096}, v{vt+6}
    s_add_u32 s80, s79, {14*4096}
    """)
    a.vmem(f"buffer_load_dwordx2 {vr(vt,2)}, v{vt+7}, {WS}, s79 offen sc1", "qf")
    a.vmem(f"buffer_load_dwordx2 {vr(vt+2,2)}, v{vt+6}, {WS}, s79 offen sc1", "qf")
    a.vmem(f"buffer_load_dwordx2 {vr(vt+4,2)}, v{vt+6}, {WS}, s80 offen sc1", "qf")
def qkv_flag_test(a):
    vt = FL
    a(f"""
    v_cmp_ne_u64 vcc, s[{NON}:{NON+1}], {vr(vt,2)}
    v_cmp_ne_u64 s[52:53], s[{NON}:{NON+1}], {vr(vt+2,2)}
    v_cmp_ne_u64 s[54:55], s[{NON}:{NON+1}], {vr(vt+4,2)}
    s_add_u32 s63, s63, 1
    s_or_b64 s[56:57], s[52:53], vcc
    s_or_b64 s[56:57], s[56:57], s[54:55]
    """)
def qkv_flag_check(a):
    vt = FL
    L = a.lab("qf")
    a.vm_wait("qf")
    a(f"s_mov_b32 s63, 0\n{L}:")
    qkv_flag_test(a)
    a(f"""
    s_cbranch_scc0 {L}_ok
    s_cmp_ge_u32 s63, {SPIN_MAX}
    s_cbranch_scc1 {L}_ok
    s_sleep {X("QSLEEP", 1)}
    s_or_b64 exec, vcc, 1
    buffer_load_dwordx2 {vr(vt,2)}, v{vt+7}, {WS}, s79 offen sc1
    s_or_b64 exec, s[52:53], 1
    buffer_load_dwordx2 {vr(vt+2,2)}, v{vt+6}, {WS}, s79 offen sc1
    s_or_b64 exec, s[54:55], 1
    buffer_load_dwordx2 {vr(vt+4,2)}, v{vt+6}, {WS}, s80 offen sc1
    s_mov_b64 exec, -1
    s_waitcnt vmcnt(0)
    s_branch {L}
    {L}_ok:
    """)

def service(a):
    a("s_setprio 3")
    a.vm_reset()
    a(f"""
    v_lshrrev_b32 v1, 3, v0
    v_and_b32 v2, 7, v0
    v_lshrrev_b32 v3, 1, v1
    s_and_b32 s51, s3, 1
    s_lshl_b32 s51, s51, 2
    v_add_u32 v4, s51, v3
    v_xor_b32 v4, v2, v4
    v_lshlrev_b32 v4, 4, v4
    v_mul_u32_u24 v5, 896, v1
    v_add_u32 v8, v4, v5
    v_add_u32 v9, 28672, v8
    v_add_u32 v10, 57344, v8
    v_and_b32 v3, 1, v3
    v_lshlrev_b32 v3, 2, v3
    v_xor_b32 v4, v2, v3
    v_lshlrev_b32 v4, 4, v4
    v_add_u32 v{VW}, v4, v5
    v_mul_u32_u24 v5, 2688, v1
    v_add_u32 v11, v4, v5
    v_add_u32 v12, {32*2688}, v11
    v_add_u32 v13, 128, v11
    v_add_u32 v14, 128, v12
    s_lshl_b32 s51, s{S_W4}, 3
    s_add_u32 s56, s{S_ROW}, s51
    s_mul_i32 s56, s56, 896
    s_mul_i32 s57, s51, 2688
    s_lshl_b32 s52, s{S_COL}, 6
    s_add_u32 s57, s57, s52
    s_lshl_b32 s58, s{S_W4}, 10
    s_add_u32 s59, s{S_RB}, s{S_CB}
    """)
    R = X("ROT", 7)
    if R == 7: a("s_mul_i32 s51, s59, 37\ns_lshr_b32 s51, s51, 8\ns_mul_i32 s51, s51, 7\ns_sub_u32 s59, s59, s51")
    if R == 2: a("s_and_b32 s59, s59, 1\ns_mul_i32 s59, s59, 3")
    if R == 3: a("s_mul_i32 s51, s59, 86\ns_lshr_b32 s51, s51, 8\ns_mul_i32 s51, s51, 3\ns_sub_u32 s59, s59, s51\ns_lshl_b32 s59, s59, 1")
    if R == 4: a("s_and_b32 s59, s59, 3\ns_mul_i32 s59, s59, 7\ns_lshr_b32 s59, s59, 2")
    if R == 0: a("s_mov_b32 s59, 0")
    a("s_waitcnt lgkmcnt(0)")
    srd(a, SRD_XB, P + 6, 1835008); srd(a, SRD_WB, P + 8, 448 * 2688)
    a(f"s_cmp_eq_u32 s{S_ACT}, 0\ns_cbranch_scc1 L_sv_nog")
    def issue(g):
        Xs, W = (SRD_XB, SRD_WB) if g < 7 or X('FAKEA') else (SRD_XA, SRD_WA)
        slot = (g % GNS) * GSLOT
        if g == 7 and X("ROTA", 3) == 7: a(f"s_add_u32 s59, s{S_RB}, s{S_CB}\ns_mul_i32 s51, s59, 37\ns_lshr_b32 s51, s51, 8\ns_mul_i32 s51, s51, 7\ns_sub_u32 s59, s59, s51")
        if g == 7 and X("ROTA", 3) == 2: a(f"s_add_u32 s59, s{S_RB}, s{S_CB}\ns_and_b32 s59, s59, 1\ns_mul_i32 s59, s59, 3")
        if g == 7 and X("ROTA", 3) == 3: a(f"s_add_u32 s59, s{S_RB}, s{S_CB}\ns_mul_i32 s51, s59, 86\ns_lshr_b32 s51, s51, 8\ns_mul_i32 s51, s51, 3\ns_sub_u32 s59, s59, s51\ns_lshl_b32 s59, s59, 1")
        if g == 7 and X("ROTA", 3) == 4: a(f"s_add_u32 s59, s{S_RB}, s{S_CB}\ns_and_b32 s59, s59, 3\ns_mul_i32 s59, s59, 7\ns_lshr_b32 s59, s59, 2")
        if g == 7 and X("ROTA", 3) == 0: a("s_mov_b32 s59, 0")
        a(f"""
        s_lshl_b32 s60, s59, 7
        s_add_u32 s60, s60, s56
        s_mul_i32 s61, s59, {64*2688}
        s_add_u32 s61, s61, s57
        """)
        order = [('x', 0), ('w', 0), ('w', 2), ('x', 1), ('w', 1), ('w', 3), ('x', 2)]
        fill = ["s_add_u32 s59, s59, 1", "s_nop 0", "s_nop 0", "s_nop 0", "s_nop 0", "s_nop 0", "s_cmp_ge_u32 s59, 7"]
        for (kind, u), fl in zip(order, fill):
            if kind == 'x':
                a(f"s_add_u32 m0, s58, {slot + u * 4096}\n{fl}")
                a.vmem(f"buffer_load_dwordx4 v{8+u}, {sr(Xs)}, s60 offen {os.environ.get('XF','')} lds", f"g{g}")
            else:
                j, v = u >> 1, u & 1
                a(f"s_add_u32 m0, s58, {slot + 12288 + j * 8192 + v * 4096}\n{fl}")
                a.vmem(f"buffer_load_dwordx4 v{11 + 2*j + v}, {sr(W)}, s61 offen {os.environ.get('WF','')} lds", f"g{g}")
        a("s_cselect_b32 s59, 0, s59")
    def touch(Xs, W, tag):
        a(f"""
        s_cmp_eq_u32 s{S_W4}, 0
        s_cbranch_scc0 L_t1{tag}
        s_mul_i32 s51, s{S_CB}, {62*128}
        s_mul_i32 s52, s{S_ROW}, 896
        s_add_u32 s51, s51, s52
        v_min_u32 v15, 61, v0
        v_lshl_add_u32 v15, v15, 7, s51
        buffer_load_dword v156, v15, {sr(Xs)}, 0 offen
        L_t1{tag}:
        s_cmp_eq_u32 s{S_W4}, 1
        s_cbranch_scc0 L_t2{tag}
        s_mul_i32 s51, s{S_RB}, {21*2688}
        s_lshl_b32 s52, s{S_COL}, 6
        s_add_u32 s51, s51, s52
        v_min_u32 v15, 41, v0
        v_lshrrev_b32 v157, 1, v15
        v_mul_u32_u24 v157, 2688, v157
        v_and_b32 v15, 1, v15
        v_lshl_add_u32 v15, v15, 7, v157
        v_add_u32 v15, s51, v15
        buffer_load_dword v156, v15, {sr(W)}, 0 offen
        L_t2{tag}:
        """)
        if X("TX2", 0):
            a(f"""
            s_cmp_eq_u32 s{S_W4}, 2
            s_cbranch_scc0 L_t3{tag}
            s_add_u32 s51, s{S_CB}, 6
            s_cmp_ge_u32 s51, 11
            s_cselect_b32 s52, 11, 0
            s_sub_u32 s51, s51, s52
            s_mul_i32 s51, s51, {62*128}
            s_mul_i32 s52, s{S_ROW}, 896
            s_add_u32 s51, s51, s52
            v_min_u32 v15, 61, v0
            v_lshlrev_b32 v15, 7, v15
            buffer_load_dword v156, v15, {sr(Xs)}, s51 offen
            L_t3{tag}:
            s_cmp_eq_u32 s{S_W4}, 3
            s_cbranch_scc0 L_t4{tag}
            s_add_u32 s51, s{S_RB}, 11
            s_cmp_ge_u32 s51, 22
            s_cselect_b32 s52, 22, 0
            s_sub_u32 s51, s51, s52
            s_mul_i32 s51, s51, {21*2688}
            s_lshl_b32 s52, s{S_COL}, 6
            s_add_u32 s51, s51, s52
            v_min_u32 v15, 41, v0
            v_lshrrev_b32 v157, 1, v15
            v_mul_u32_u24 v157, 2688, v157
            v_and_b32 v15, 1, v15
            v_lshl_add_u32 v15, v15, 7, v157
            buffer_load_dword v156, v15, {sr(W)}, s51 offen
            L_t4{tag}:
            """)
    trace(a, 48)
    if X("TB", 0) == 1: touch(SRD_XB, SRD_WB, "b")
    issue(0)
    if X("TB", 0) == 2: touch(SRD_XB, SRD_WB, "b")
    srd(a, SRD_XA, P + 0, 1835008); srd(a, SRD_WA, P + 2, 448 * 2688)
    common_srds(a)
    a(f"""
    s_sub_u32 s51, s3, 8
    s_or_b32 s51, s51, s2
    s_cmp_eq_u32 s51, 0
    s_cbranch_scc0 L_nonon
    v_mov_b32 v18, 0
    v_mov_b32 v19, 0
    s_or_b32 s53, s{NON+1}, 0x80000000
    v_mov_b32 v16, s{NON}
    v_mov_b32 v17, s53
    s_mov_b64 exec, 1
    buffer_atomic_cmpswap_x2 v[16:19], v18, {sr(SRD_DBG)}, 0 offen sc1
    s_mov_b64 exec, -1
    s_nop 1
    L_nonon:
    """)
    A = AttnA(a)
    def sv_setup():
        setup2(a); norm_masks(a)
        a(f"""
        v_mov_b32 v{SNV+2}, 0
        v_mov_b32 v{FL+6}, 0
        v_mov_b32 v{FL+7}, 0
        v_mul_u32_u24 v7, 448, v2
        v_lshl_add_u32 v7, v1, 4, v7
        s_lshl_b32 s51, s{S_ODD}, 6
        s_sub_u32 s51, 256, s51
        v_add_u32 v{VVA}, s51, v7
        v_subrev_u32 v{VVB}, 128, v{VVA}
        v_lshlrev_b32 v{VR0}, 12, v0
        v_add_u32 v{VR0}, {L_RELAY}, v{VR0}
        s_lshl_b32 s51, s{S_W4}, 12
        s_add_u32 s51, s51, {L_RELAY}
        v_mov_b32 v{VR1}, s51
        v_mov_b32 v7, 0
        ds_write_b32 v{VR1}, v7
        """)
        A.masks()
        a("s_mov_b64 s[76:77], s[56:57]\ns_mov_b32 s78, s58")
        oproj_params(a, "A"); oproj_init(a)
        a("s_mov_b64 s[56:57], s[76:77]\ns_mov_b32 s58, s78")
        a("s_waitcnt lgkmcnt(0)")
    def sv_setup_late():
        srd(a, SRD_WOA, P + 4, 448 * 896); srd(a, SRD_WOB, P + 10, 448 * 896)
        a(f"""
        s_lshl_b32 s58, s{S_W4}, 12
        s_mul_i32 s59, s{S_W4}, 28672
        s_add_u32 s59, s59, s{S_P0}
        s_add_u32 s59, s59, {KB}
        s_lshl_b32 s60, s{S_HD}, 6
        s_add_u32 s60, s60, s{S_W4}
        s_mul_i32 s60, s60, 1792
        s_add_u32 s60, s60, {VB - 256}
        """)
    def dma(st):
        a(f"s_add_u32 m0, s58, {slot_addr(st)}\ns_add_u32 s56, s59, {st*4*28672}")
        a.vmem(f"buffer_load_dwordx4 v6, {WS}, s56 offen sc1 lds", f"a{st}")
        a.vmem(f"buffer_load_dwordx4 v6, {WS}, s56 offen offset:1024 sc1 lds", f"a{st}")
        a(f"s_add_u32 m0, s58, {slot_addr(st) + 2048}\ns_add_u32 s57, s60, {st*4*1792}\ns_mov_b64 exec, s[{VMASK}:{VMASK+1}]")
        a.vmem(f"buffer_load_dwordx4 v{VVA}, {WS}, s57 offen sc1 lds", f"a{st}")
        a.vmem(f"buffer_load_dwordx4 v{VVB}, {WS}, s57 offen offset:1024 sc1 lds", f"a{st}")
        a("s_mov_b64 exec, -1")
    APRE = X("APRE", 3)
    def relay_set():
        a(f"v_mov_b32 v7, 1\ns_mov_b64 exec, 14\nds_write_b32 v{VR0}, v7\ns_mov_b64 exec, -1")
    def first_dmas():
        a(f"""
        s_mul_i32 s56, s{S_QB}, {4*28672}
        s_add_u32 s56, s56, s59
        s_lshr_b32 s51, s58, 1
        s_add_u32 m0, s51, {L_Q}
        s_sub_u32 s56, s56, {KB}
        """)
        a.vmem(f"buffer_load_dwordx4 v6, {WS}, s56 offen sc1 lds", "a0")
        a.vmem(f"buffer_load_dwordx4 v6, {WS}, s56 offen offset:1024 sc1 lds", "a0")
        for st in range(X('APRE0', 1)): dma(st)
    if X("TA", 3) == -1: touch(SRD_XA, SRD_WA, "a")
    issued = 1
    while issued < X("PRE", 2): issue(issued); issued += 1
    if X("TB", 0) == 3: touch(SRD_XB, SRD_WB, "b")
    SVAT = X("SVAT", 7)
    if SVAT < 0: sv_setup()
    FBAT = X("FBAT", 11)
    KVAT = X("KVAT", 13)
    def flags_uniform(tag):
        nonce_load(a, SNV)
        keep = list(a.vm)
        a(f"s_cmp_eq_u32 s{S_W4}, 0\ns_cbranch_scc1 L_fu{tag}")
        for i in range(3): nonce_load(a, SNV)
        a(f"s_branch L_fud{tag}\nL_fu{tag}:")
        a.vm = keep
        qkv_flag_loads(a, FB)
        a(f"L_fud{tag}:")
    for c in range(KVAT + 1):
        trace(a, 1 + 3*c)
        a.vm_wait(f"g{c}")
        trace(a, 2 + 3*c)
        a("s_barrier")
        trace(a, 3 + 3*c)
        if c == 0: stamp(a, 1)
        if c == X("TA", 3) and not X("TAS"): touch(SRD_XA, SRD_WA, "a")
        if X("TAS") and X("TA", 3) <= c < X("TA", 3) + X("TAS"):
            a(f"s_lshr_b32 s51, s2, 3\ns_and_b32 s51, s51, {X('TAS') - 1}\ns_cmp_eq_u32 s51, {c - X('TA', 3)}\ns_cbranch_scc0 L_ts{c}")
            touch(SRD_XA, SRD_WA, f"a{c}")
            a(f"L_ts{c}:")
        if c == FBAT and X("FBPRE", 1): flags_uniform(0)
        lim = min(13, c + GNS - 1)
        if c < 7: lim = min(lim, X("HOLD", 9))
        while issued <= lim: issue(issued); issued += 1
        if c == SVAT: sv_setup()
        if c == 10: sv_setup_late()
        if c == FBAT and not X("FBPRE", 1): flags_uniform(0)
    a.vm_wait("qf")
    keep2 = list(a.vm)
    a("s_branch L_sv_att\nL_sv_nog:")
    common_srds(a)
    sv_setup(); sv_setup_late()
    for i in range(X("IDLEW", 0)): a("s_sleep 64")
    flags_uniform(1)
    a("s_barrier\ns_waitcnt vmcnt(0)\nL_sv_att:")
    a.vm = keep2
    a(f"s_cmp_eq_u32 s{S_W4}, 0\ns_cbranch_scc0 L_relay")
    nonce_get(a, SNV)
    qkv_flag_check(a)
    relay_set()
    a(f"""
    s_branch L_relay_ok
    L_relay:
    s_mov_b32 s63, 0
    L_relay_w:
    ds_read_b32 v7, v{VR1}
    s_add_u32 s63, s63, 1
    s_waitcnt lgkmcnt(0)
    v_cmp_eq_u32 vcc, 0, v7
    s_cmp_ge_u32 s63, {SPIN_MAX*16}
    s_cbranch_scc1 L_relay_ok
    s_cbranch_vccnz L_relay_w
    L_relay_ok:
    """)
    stamp(a, 2); trace(a, 44)
    first_dmas()
    if KVAT == 12:
        a.vm_wait("g13")
        trace(a, 41)
        a(f"s_cmp_eq_u32 s{S_ACT}, 0\ns_cbranch_scc1 L_no13\ns_barrier\nL_no13:")
        trace(a, 42)
    for st in range(X("APRE0", 1), APRE): dma(st)
    nonce_get(a, SNV)
    def wo_dma(W, lds, i0, n, tag):
        a(f"""
        s_mul_i32 s61, s{S_W4}, {8*896}
        s_lshl_b32 s62, s{S_CB2}, 7
        s_add_u32 s61, s61, s62
        s_lshl_b32 s62, s{S_W4}, 10
        """)
        for j in range(i0, i0 + n):
            a(f"s_add_u32 m0, s62, {lds + j*4096}\ns_add_u32 s63, s61, {j*32*896}")
            a.vmem(f"buffer_load_dwordx4 v{VW}, {sr(W)}, s63 offen lds", tag)
    issued = APRE
    bars = [-2] + ABAR
    for i, n in enumerate(bars):
        need = bars[i + 1] // 2 if i + 1 < len(bars) else 15
        trace(a, 64 + 3*i)
        a.vm_wait(f"a{need}", "lgkmcnt(0)" if i == 0 else "")
        trace(a, 65 + 3*i)
        a("s_barrier")
        trace(a, 66 + 3*i)
        if X("PSTAMP") and n == 20: stamp(a, 1)
        if X("PSTAMP") and n == 8: stamp(a, 2)
        if n == 12 and not X("FAD", 0) and not X("FAE", 4): qkv_flag_loads(a, FA)
        if n == 12 and X("FAE", 4) and X("AFIRST", 0): qkv_flag_check(a); A.loads()
        if n == 20: A.pub()
        while issued <= min(15, max(n // 2 - 1, -1) + ANS) and (n >= 0 or issued <= X('A0ISS', 3)): dma(issued); issued += 1
        wb = dict(zip((4, 8, 12, 16, 20, 24), [int(x) for x in os.environ.get("WB", "4,6,0,4,0,0").split(",")]))
        assert sum(wb.values()) == 14
        if n == X("POI", 8) and X("POIF", 0): A.poison()
        if wb.get(n) and n != 12: wo_dma(SRD_WOB, L_WOB, sum(v for k, v in wb.items() if k < n), wb[n], "wob")
        if n == X("POI", 8) and not X("POIF", 0): A.poison()
        if n == X("WT", -9):
            a(f"""
            s_and_b32 s61, s{S_RB2}, 3
            s_lshl_b32 s61, s61, 2
            s_add_u32 s61, s61, s{S_W4}
            s_mul_i32 s61, s61, {28*896}
            s_lshl_b32 s62, s{S_CB2}, 7
            s_add_u32 s61, s61, s62
            v_min_u32 v15, 27, v0
            v_mul_u32_u24 v15, 896, v15
            """)
            a.vmem(f"buffer_load_dword v156, v15, {sr(SRD_WOA)}, s61 offen", "wt")
        if n == 12:
            if X("FAD", 0): qkv_flag_loads(a, FA)
            if not (X("FAE", 4) and X("AFIRST", 0)): qkv_flag_check(a); A.loads()
        if n == 12 and X("QE"): A.qk()
        if n == 8 and X("FAE", 4):
            if X("FAW", 0): a.vm_wait("a9")
            qkv_flag_loads(a, FA)
        if n == 16:
            if X("AP", 3) != 3: a(f"s_setprio {X('AP', 3)}")
            if not X("QE"): A.qk()
            A.pv(); a("s_nop 7")
            A.fin()
            if X("AP", 3) != 3: a("s_setprio 3")
        if n == 20: wo_dma(SRD_WOA, L_WOA, 0, 2, "woa")
        if n == 24:
            assert issued == 16
            wo_dma(SRD_WOA, L_WOA, 2, 8, "woa")
            oproj_params(a, "A")
            a.vm_wait("woa")
            A.oflag_load()
        if n == 28:
            wo_dma(SRD_WOA, L_WOA, 10, 4, "woa")
            A.oflag_check()
            for k in range(0 if X("NOOPA") else X("OAK", 8)): o_load(a, k)
    a.vm_wait("woa")
    assert "wob" not in a.vm
    a(f"""
    v_mov_b32 v7, {L_SYNC}
    v_lshl_add_u32 v7, v0, 2, v7
    v_mov_b32 v4, 0
    s_mov_b64 exec, 0xff
    ds_write_b32 v7, v4
    s_mov_b64 exec, -1
    s_waitcnt lgkmcnt(0)
    s_barrier
    s_barrier
    """)
    stamp(a, 3); trace(a, 113)
    a(f"s_setprio 0\ns_cmp_eq_u32 s{S_ACT2}, 0\ns_cbranch_scc1 L_end")
    if X("NOOPA"): a("s_branch L_end")
    if X("OAK", 8) < 8:
        a(f"s_sleep {X('OADELAY', 5)}")
        for k in range(X("OAK", 8), 8): o_load(a, k)
    oproj_main(a)

class AttnA:
    Q, KP, KC, VP, VC, SP, SC, OO, T, IX = 80, 88, 96, 112, 116, 16, 32, 48, 64, 124
    def __init__(s, a): s.a = a
    def tq(s): s.a(f"s_lshl_b32 s51, s{S_QB}, 2\ns_add_u32 s51, s51, s{S_W4}")
    def blk(s, sh, base):
        s.tq()
        s.a(f"s_lshl_b32 s51, s51, 4\ns_add_u32 s51, s51, s{S_HD}\ns_lshl_b32 s51, s51, {sh}\ns_add_u32 s51, s51, {base}")
    def masks(s):
        a = s.a; s.tq()
        a(f"""
        v_lshlrev_b32 v7, 3, v2
        v_sub_u32 v7, v1, v7
        v_add_u32 v7, 18, v7
        v_mov_b32 v126, 0x5555
        v_mov_b32 v127, 0
        v_lshlrev_b64 v[126:127], v7, v[126:127]
        s_cmp_eq_u32 s51, 0
        s_cselect_b32 s52, 0, -1
        v_and_b32 v126, s52, v126
        v_not_b32 v126, v126
        v_not_b32 v127, v127
        s_mov_b32 s52, 0xf149f2ca
        v_mov_b32 v{s.IX}, 0xdddddddd
        """)
        for r in range(16):
            g, i = r >> 2, r & 3
            c = 16 * (g >> 1) + 4 * (g & 1) + i
            a(f"v_bfe_i32 v{s.SC+r}, v127, {c}, 1\nv_and_b32 v{s.SC+r}, s52, v{s.SC+r}")
            if r >= 8: a(f"v_bfe_i32 v{s.SP+r}, v126, {c}, 1\nv_and_b32 v{s.SP+r}, s52, v{s.SP+r}")
            else: a(f"v_mov_b32 v{s.SP+r}, 0")
            a(f"v_mov_b32 v{s.OO+r}, 0")
        for r in range(12): a(f"v_mov_b32 v{s.VP+r}, 0x3f803f80")
        a(f"v_mov_b32 v140, {hex(f2u(QSCALE))}")
        for r in range(4): a(f"v_mov_b32 v{128+r}, -1")
        a(f"""
        v_and_b32 v7, 31, v3
        s_lshl_b32 s53, s{S_ODD}, 2
        v_subrev_u32 v7, s53, v7
        v_cmp_gt_u32 s[{AVM}:{AVM+1}], 28, v7
        v_mul_u32_u24 v125, 448, v2
        v_lshl_add_u32 v125, v7, 4, v125
        v_add_u32 v125, 256, v125
        """)
    def poison(s):
        a = s.a; s.blk(11, OB)
        a.vmem(f"buffer_store_dwordx4 v[128:131], v6, {WS}, s51 offen sc1", "poi")
        a.vmem(f"buffer_store_dwordx4 v[128:131], v6, {WS}, s51 offen offset:1024 sc1", "poi")
    def loads(s):
        a = s.a; s.tq()
        a(f"""
        s_mul_i32 s52, s51, 28672
        s_add_u32 s52, s52, s{S_P0}
        s_add_u32 s53, s52, {KA}
        s_add_u32 s52, s52, {QA}
        s_cmp_eq_u32 s51, 0
        s_cselect_b32 s54, 0, 28672
        s_cselect_b32 s55, 0, 1792
        s_sub_u32 s54, s53, s54
        """)
        a.vmem(f"buffer_load_dwordx4 {vr(s.Q,4)}, v6, {WS}, s52 offen sc1", "aq")
        a.vmem(f"buffer_load_dwordx4 {vr(s.Q+4,4)}, v6, {WS}, s52 offen offset:1024 sc1", "aq")
        a.vmem(f"buffer_load_dwordx4 {vr(s.KP,4)}, v5, {WS}, s54 offen sc1", "aq")
        a.vmem(f"buffer_load_dwordx4 {vr(s.KP+4,4)}, v5, {WS}, s54 offen offset:1024 sc1", "aq")
        a.vmem(f"buffer_load_dwordx4 {vr(s.KC,4)}, v5, {WS}, s53 offen sc1", "aq")
        a.vmem(f"buffer_load_dwordx4 {vr(s.KC+4,4)}, v5, {WS}, s53 offen offset:1024 sc1", "aq")
        a(f"""
        s_lshl_b32 s52, s{S_HD}, 6
        s_add_u32 s52, s52, s51
        s_mul_i32 s52, s52, 1792
        s_add_u32 s52, s52, {VA - 256}
        s_sub_u32 s55, s52, s55
        s_mov_b64 exec, s[{AVM}:{AVM+1}]
        """)
        a.vmem(f"buffer_load_dwordx4 {vr(s.VP,4)}, v125, {WS}, s55 offen offset:896 sc1", "aq")
        a.vmem(f"buffer_load_dwordx4 {vr(s.VC,4)}, v125, {WS}, s52 offen sc1", "aq")
        a.vmem(f"buffer_load_dwordx4 {vr(s.VC+4,4)}, v125, {WS}, s52 offen offset:896 sc1", "aq")
        a("s_mov_b64 exec, -1")
    def qk(s):
        a = s.a
        a.vm_wait("aq")
        zero_qpad(a, s.Q)
        a(f"""
        v_mfma_f32_32x32x16_bf16 {vr(s.SP,16)}, {vr(s.KP,4)}, {vr(s.Q,4)}, {vr(s.SP,16)}
        v_mfma_f32_32x32x16_bf16 {vr(s.SC,16)}, {vr(s.KC,4)}, {vr(s.Q,4)}, {vr(s.SC,16)}
        v_mfma_f32_32x32x16_bf16 {vr(s.SP,16)}, {vr(s.KP+4,4)}, {vr(s.Q+4,4)}, {vr(s.SP,16)}
        v_mfma_f32_32x32x16_bf16 {vr(s.SC,16)}, {vr(s.KC+4,4)}, {vr(s.Q+4,4)}, {vr(s.SC,16)}
        s_nop 11
        """)
        s.regs = regs = list(range(s.SP + 8, s.SP + 16)) + list(range(s.SC, s.SC + 16))
        a(f"v_max_f32 v8, v{regs[0]}, v{regs[1]}")
        for k in range(2, 24, 2): a(f"v_max3_f32 v8, v8, v{regs[k]}, v{regs[k+1]}")
        a("v_mov_b32 v9, v8\ns_nop 1\nv_permlane32_swap_b32 v8, v9\nv_max_f32 v8, v8, v9\nv_mul_f32 v8, v140, v8")
        for r in regs[::2]: a(f"v_pk_fma_f32 {vr(r,2)}, {vr(r,2)}, v[140:141], v[8:9] op_sel_hi:[1,0,0] neg_lo:[0,0,1] neg_hi:[0,0,1]")
    def pv(s):
        a = s.a
        for r in s.regs: a(f"v_exp_f32 v{r}, v{r}")
        a(f"""
        v_smfmac_f32_32x32x32_bf16 {vr(s.OO,16)}, {vr(s.VP,4)}, {vr(s.SP+8,8)}, v{s.IX}
        v_smfmac_f32_32x32x32_bf16 {vr(s.OO,16)}, {vr(s.VC,4)}, {vr(s.SC,8)}, v{s.IX}
        v_smfmac_f32_32x32x32_bf16 {vr(s.OO,16)}, {vr(s.VC+4,4)}, {vr(s.SC+8,8)}, v{s.IX}
        """)
    def fin(s):
        s.blk(11, OA)
        finish_O(s.a, s.OO, s.T, 51, True)
    def pub(s):
        s.blk(7, FOA)
        s.a("s_waitcnt vmcnt(0)"); s.a.vm_reset()
        put_flag(s.a, 51, SNV)
    def oflag_load(s):
        a = s.a
        a(f"""
        s_sub_u32 s59, s52, {OA}
        s_lshr_b32 s59, s59, 4
        s_add_u32 s59, s59, {FOA}
        v_min_u32 v10, 7, v0
        v_lshlrev_b32 v10, 7, v10
        """)
        a.vmem(f"buffer_load_dwordx2 v[8:9], v10, {WS}, s59 offen sc1", "oflag")
    def oflag_check(s):
        a = s.a
        a.vm_wait("oflag")
        a(f"""
        s_mov_b32 s63, 0
        L_of:
        v_cmp_ne_u64 vcc, s[{NON}:{NON+1}], v[8:9]
        s_add_u32 s63, s63, 1
        s_cbranch_vccz L_of_ok
        s_cmp_ge_u32 s63, {SPIN_MAX}
        s_cbranch_scc1 L_of_ok
        s_sleep 2
        s_mov_b64 exec, vcc
        buffer_load_dwordx2 v[8:9], v10, {WS}, s59 offen sc1
        s_mov_b64 exec, -1
        s_waitcnt vmcnt(0)
        s_branch L_of
        L_of_ok:
        """)


DOC = """; One persistent launch, 256 workgroups (one per CU) x 12 waves: G0 (4), G1 (4) compute, SV (4) load / hand-off service.
;  1. QKV GEMMs, 96x128 tiles through an LDS-DMA ring: branch B on G0, then branch A on G1. Results go to d_ws in
"""

def main(out):
    a = Asm()
    a("L_begin:")
    setup(a)
    service(a)
    a("s_branch L_end\nL_comp:")
    a.vm_reset()
    gemm_compute(a)
    attn_compute(a)
    a("L_end:")
    stamp_out(a)
    a("L_exit:\ns_endpgm\nL_codeend:")
    kn = NAME + "_kernel"
    if X("LIST"): hdr = f"; @launch kernel={kn} grid=(256,1,1) block=(768,1,1) lds=163840\n"
    else: hdr = "; @launch grid=(256,1,1) block=(768,1,1) lds=163840\n"
    hdr += DOC
    hdr += f'.amdgcn_target "amdgcn-amd-amdhsa--gfx950"\n.text\n.globl {kn}\n.p2align 8\n.type {kn},@function\n{kn}:\n'
    desc = f""".section .rodata,"a"
.p2align 6
.amdhsa_kernel {kn}
  .amdhsa_next_free_vgpr 168
  .amdhsa_next_free_sgpr 102
  .amdhsa_accum_offset 168
  .amdhsa_group_segment_fixed_size 0
  .amdhsa_kernarg_size 72
  .amdhsa_user_sgpr_count 2
  .amdhsa_user_sgpr_kernarg_segment_ptr 1
  .amdhsa_system_sgpr_workgroup_id_x 1
.end_amdhsa_kernel
"""
    txt = hdr + a.text() + desc
    open(out, "w").write(txt)
    e = lint(txt)
    for x in e: print("HAZARD", x)
    print("written", out, len(txt), "bytes;", len(e), "hazards")

if __name__ == "__main__":
    main(sys.argv[1] if len(sys.argv) > 1 else f"cdna_kernels/{NAME}.s")
```
